```python
import torch

def _softmax(x, axis=-1):
    return torch.softmax(x, dim=axis)
def _gelu(x):
    return torch.nn.functional.gelu(x, approximate="tanh")
def _silu(x):
    return torch.nn.functional.silu(x)
def _sigmoid(x):
    return torch.sigmoid(x)
def _layernorm(x, axis=-1, eps=1e-5):
    m = x.mean(dim=axis, keepdim=True)
    v = x.var(dim=axis, keepdim=True, unbiased=False)
    return (x - m) / torch.sqrt(v + eps)
def _scatter_add(tgt, idx, src, axis=0):
    return tgt.clone().index_add_(axis, idx, src)
def _segment_sum(src, seg, n):
    out = torch.zeros((n,) + src.shape[1:], dtype=src.dtype)
    return out.index_add_(0, seg, src)
def _pad(x, pw):
    flat = tuple(v for pair in reversed(pw) for v in pair)
    return torch.nn.functional.pad(x, flat)

kernel_name = 'gated_mix__ssm_conv_h3__dense_activation_gelu__prompt'

def setup_inputs():

    _w = (lambda a: (lambda t: t.to(torch.bfloat16) if t.is_floating_point() else t)(torch.as_tensor(a)))
    def _A_setup():
        B, S, D = 1, 2048, 576
        ks = 4
        return {
            "q": _w((lambda *s: torch.randn(*s, dtype=torch.bfloat16) * 0.05)(B, S, D)),
            "k": _w((lambda *s: torch.randn(*s, dtype=torch.bfloat16) * 0.4)(B, S, D)),
            "v": _w((lambda *s: torch.randn(*s, dtype=torch.bfloat16) * 0.2)(B, S, D)),
            "shift_k": _w((lambda *s: torch.randn(*s, dtype=torch.bfloat16) * 0.4)(D, ks) * 0.5),
            "ssm_k": _w((lambda *s: torch.randn(*s, dtype=torch.bfloat16) * 0.4)(D, S) * (1.0 / S ** 0.5)),
            "ssm_D": _w((lambda *s: torch.randn(*s, dtype=torch.bfloat16) * 0.2)(D)),
        }
    _A_in = _A_setup()

    def _B_setup():
        B, S, D, F = 1, 2048, 576, 4608
        return {
            "x": _w((lambda *s: torch.randn(*s, dtype=torch.bfloat16) * 0.05)(B, S, D)),
            "w1": _w((lambda *s: torch.randn(*s, dtype=torch.bfloat16) * 3.2)(D, F) * (D ** -0.5)),
            "b1": _w((lambda *s: torch.randn(*s, dtype=torch.bfloat16) * 3.2)(F) * 0.01),
            "w2": _w((lambda *s: torch.randn(*s, dtype=torch.bfloat16) * 0.05)(F, D) * (F ** -0.5)),
            "b2": _w((lambda *s: torch.randn(*s, dtype=torch.bfloat16) * 0.1)(D) * 0.01),
        }
    _B_in = _B_setup()

    return {
        "A_q": _A_in["q"],
        "A_k": _A_in["k"],
        "A_v": _A_in["v"],
        "A_shift_k": _A_in["shift_k"],
        "A_ssm_k": _A_in["ssm_k"],
        "A_ssm_D": _A_in["ssm_D"],
        "B_x": _B_in["x"],
        "B_w1": _B_in["w1"],
        "B_b1": _B_in["b1"],
        "B_w2": _B_in["w2"],
        "B_b2": _B_in["b2"],
        "gate_w": _w((lambda *s: torch.randn(*s, dtype=torch.bfloat16) * 0.05)(576) * 16.0),
    }

def reference(A_q, A_k, A_v, A_shift_k, A_ssm_k, A_ssm_D, B_x, B_w1, B_b1, B_w2, B_b2, gate_w):
    def _A_ref(q, k, v, shift_k, ssm_k, ssm_D):
        B, S, D = q.shape
        ks = shift_k.shape[-1]
        k_pad = _pad(k, ((0, 0), (ks - 1, 0), (0, 0)))
        k_shift = torch.zeros_like(k)
        for t in range(ks):
            k_shift = k_shift + k_pad[:, t:t + S, :] * shift_k[:, ks - 1 - t][None, None, :]
        kv = k_shift * v
        L = 2 * S
        kv_pad = _pad(kv, ((0, 0), (0, S), (0, 0)))
        kf_pad = _pad(ssm_k, ((0, 0), (0, S)))
        kv_f = (lambda x, axes=(-2,-1): torch.fft.rfft2(x.float(), dim=axes))(kv_pad[:, None, :, :], axes=(1, 2))
        kf_f = (lambda x, axes=(-2,-1): torch.fft.rfft2(x.float(), dim=axes))(kf_pad[:, None, :], axes=(1, 2))
        kf_f = (lambda x, *d: x.permute(*d))(kf_f, 1, 2, 0)
        y_f = kv_f * kf_f[None, :, :, :]
        y = (lambda x, s, axes=(-2,-1): torch.fft.irfft2(x, s=s, dim=axes).to(torch.bfloat16))(y_f, (1, L), axes=(1, 2))[:, 0, :S, :]
        y = y + kv * ssm_D[None, None, :]
        return q * y

    def _B_ref(x, w1, b1, w2, b2):
        h = torch.einsum("bsd,df->bsf", x, w1) + b1
        h = _gelu(h)
        return torch.einsum("bsf,fd->bsd", h, w2) + b2

    x = A_q
    g = _sigmoid((x * gate_w).sum(-1, keepdims=True))
    a = _A_ref(x, A_k, A_v, A_shift_k, A_ssm_k, A_ssm_D)
    b = _B_ref(x, B_w1, B_b1, B_w2, B_b2)
    return g * a + (1 - g) * b
```

```python
import struct
NAME = 'gated_mix__ssm_conv_h3__dense_activation_gelu__prompt'
S, D, F = 2048, 576, 4608
NCH = 12
FC = F // NCH
KA = dict(q=0, k=8, v=16, shift_k=24, ssm_k=32, ssm_D=40, x=48, w1=56, b1=64, w2=72, b2=80, gate_w=88, out=96, dbg=104, ws=112)
WS_PART = 0
PART_BYTES = 16*4*18*NCH*2048
WS_XR = PART_BYTES
WS_Y2 = WS_XR + D*S*2
WS_G = WS_Y2 + D*S*2
WS_FLAG = WS_G + S*4
WS_PROF = WS_FLAG + 65536
WS_TOTAL = WS_PROF + 65536
SLOT = 24576
NSLOT = 6
LDS_BIAS = NSLOT*SLOT
LDS_BYTES = 163840
def f2u(x): return struct.unpack('<I', struct.pack('<f', x))[0]
GC0 = -2.0*0.7978845608028654*1.4426950408889634
GC1 = GC0*0.044715
```

```python
class Emit:
    def __init__(self):
        self.lines = []
        self.n = 0
        self.lq = []
        self.vq = []
        self.lds_done = set()
        self.vm_done = set()
        self.mfma_w = {}
        self.valu_w = {}
        self.trans_w = {}
        self.check = True
    def raw(self, s):
        self.lines.append(s)
    def comment(self, s):
        self.lines.append('    ; ' + s)
    def label(self, s):
        self.lines.append(s + ':')
    def i(self, s):
        self.lines.append('    ' + s)
        self.n += 1
    def lds(self, s, tag=None):
        if len(self.lq) >= 15: self._wait(lg=14)
        self.i(s)
        self.lq.append(tag if tag is not None else ('anon', self.n))
    def wait_lds(self, tag):
        if tag in self.lds_done: return
        assert tag in self.lq, f'wait_lds on unknown tag {tag}'
        idx = len(self.lq) - 1 - self.lq[::-1].index(tag)
        n = len(self.lq) - idx - 1
        n = min(n, 15)
        self._wait(lg=n)
    def wait_lds_all(self):
        if self.lq: self._wait(lg=0)
    def vm(self, s, tag=None):
        self.i(s)
        self.vq.append(tag if tag is not None else ('anon', self.n))
        assert len(self.vq) <= 63, 'too many outstanding vmem'
    def wait_vm(self, tag):
        if tag in self.vm_done: return
        assert tag in self.vq, f'wait_vm on unknown tag {tag}'
        idx = len(self.vq) - 1 - self.vq[::-1].index(tag)
        n = len(self.vq) - idx - 1
        self._wait(vm=n)
    def wait_vm_all(self):
        if self.vq: self._wait(vm=0)
    def _wait(self, vm=None, lg=None):
        parts = []
        if vm is not None:
            parts.append(f'vmcnt({vm})')
            k = len(self.vq) - vm
            if k > 0:
                for t in self.vq[:k]: self.vm_done.add(t)
                self.vq = self.vq[k:]
        if lg is not None:
            parts.append(f'lgkmcnt({lg})')
            k = len(self.lq) - lg
            if k > 0:
                for t in self.lq[:k]: self.lds_done.add(t)
                self.lq = self.lq[k:]
        self.i('s_waitcnt ' + ' '.join(parts))
    def forget(self):
        self.lq = []; self.vq = []
    def nop(self, k):
        while k > 0:
            m = min(k, 16)
            self.lines.append(f'    s_nop {m-1}')
            self.n += m
            k -= m
    def mfma(self, s, dregs, srcregs=()):
        need = 0
        for r in srcregs:
            if r in self.valu_w:
                d = self.n - self.valu_w[r] - 1
                need = max(need, 2 - d)
        if need > 0: self.nop(need)
        self.i(s)
        for r in dregs: self.mfma_w[r] = self.n - 1
    def valu(self, s, dst=(), src=(), trans=False, mfma_wait=12):
        need = 0
        for r in list(src) + list(dst):
            if r in self.mfma_w:
                d = self.n - self.mfma_w[r] - 1
                need = max(need, mfma_wait - d)
        if not trans:
            for r in src:
                if r in self.trans_w:
                    d = self.n - self.trans_w[r] - 1
                    need = max(need, 1 - d)
        if need > 0:
            self.comment(f'hazard pad {need}')
            self.nop(need)
        self.i(s)
        for r in dst:
            self.valu_w[r] = self.n - 1
            if trans: self.trans_w[r] = self.n - 1
            elif r in self.trans_w: del self.trans_w[r]
            if r in self.mfma_w: del self.mfma_w[r]
    def text(self):
        return '\n'.join(self.lines) + '\n'
```

```python
from common import *

def ring_plan():
    slot = {0: 2, 1: 3}
    issue = {s: [] for s in range(0, 36)}
    slot[2] = 2; issue[1].append(2)
    slot[3] = 4; slot[4] = 5
    slot[5] = 3; issue[2].append(5)
    free = []
    nxt = 6
    ex = []
    for s in range(3, 36):
        free.append(slot[s-1])
        if s == 3: free = [0, 1] + free
        if s in (15, 16):
            ex.append(free.pop()); assert not free
            continue
        if s == 21: free += ex
        while free and nxt < 36:
            slot[nxt] = free.pop(0); issue[s].append(nxt); nxt += 1
    assert nxt == 36, nxt
    return slot, issue, ex

P2 = [(0,0),(1,0),(0,1),(1,1)] + [(dp, kb) for dp in range(2, 9) for kb in range(2)]

def gen_ffn(e, cfg):
    slot, issue, ex = ring_plan()
    vLANE = 1; vA0 = 2; vA1 = 3
    vPAT1 = 4; vPAT2 = 5
    vW1 = 6; vW2 = 7; vBIAS = 8; vC0 = 9
    vST = 10; vA2 = 11; vA3 = 12
    tmp = [13, 14, 15, 0]
    AF = 16
    ACC = [32, 48]
    HOWN = 64
    XF = 112
    HPART = 112
    PK = 160
    ACCP = [168, 184]
    vX0 = 32; vX1 = 33
    sW1 = 8; sW2 = 12; sX = 16; sWS = 20; sB1 = 24
    sWV = 28; sMI = 29; sP = 30; sC = 31; sT = 32
    sW1B = 33; sXB = 34; sM0B = 35; sOFF = 36; sGC1 = 37; sSTO = 38; sROT = 39
    sC1 = 44
    sR2 = 50
    sD2 = 56
    sPROF = 66
    nprof = [0]
    def stamp(name):
        if cfg.prof and nprof[0] < 16:
            k = nprof[0]; nprof[0] += 1
            e.i(f's_memtime s[{sPROF+2*k}:{sPROF+2*k+1}]')
    if cfg.prof: e.i('s_memrealtime s[98:99]')
    stamp('start')
    e.i('s_and_b32 s40, s2, 7')
    e.i('s_lshr_b32 s41, s2, 3')
    e.i('s_lshr_b32 s42, s40, 1')
    e.i('s_mul_i32 s42, s42, 3')
    e.i('s_lshr_b32 s43, s41, 3')
    e.i(f's_add_u32 s{sC}, s42, s43')
    e.i('s_and_b32 s42, s40, 1')
    e.i('s_lshl_b32 s42, s42, 3')
    e.i('s_and_b32 s43, s41, 7')
    e.i(f's_add_u32 s{sT}, s42, s43')
    e.i(f's_load_dwordx2 s[{sX}:{sX+1}], s[0:1], {KA["q"]}')
    e.i(f's_load_dwordx2 s[{sW1}:{sW1+1}], s[0:1], {KA["w1"]}')
    e.i(f's_load_dwordx2 s[{sB1}:{sB1+1}], s[0:1], {KA["b1"]}')
    e.i(f's_load_dwordx2 s[{sW2}:{sW2+1}], s[0:1], {KA["w2"]}')
    e.i(f's_load_dwordx2 s[{sWS}:{sWS+1}], s[0:1], {KA["ws"]}')
    L = vLANE
    e.i(f'v_and_b32 v{L}, 63, v0')
    e.i('v_lshrrev_b32 v13, 6, v0')
    e.i('s_nop 0')
    e.i(f'v_readfirstlane_b32 s{sWV}, v13')
    for s_, nb in ((sW1, D*F*2), (sW2, F*D*2), (sX, S*D*2), (sWS, WS_TOTAL), (sB1, F*2)):
        e.i(f's_mov_b32 s{s_+2}, {nb}')
        e.i(f's_mov_b32 s{s_+3}, 0x00020000')
    e.i(f's_mov_b32 s{sGC1}, {hex(f2u(GC1))}')
    e.i(f'v_mov_b32 v{vC0}, {hex(f2u(GC0))}')
    e.i(f's_and_b32 s{sMI}, s{sWV}, 3')
    e.i(f's_lshr_b32 s{sP}, s{sWV}, 2')
    e.i(f'v_lshrrev_b32 v13, 3, v{L}')
    e.i(f'v_lshrrev_b32 v14, 4, v{L}')
    e.i(f'v_and_b32 v15, 7, v{L}')
    e.i(f'v_xor_b32 v16, v15, v14')
    e.i(f'v_mul_u32_u24 v17, 1152, v13')
    e.i(f'v_lshl_add_u32 v{vX0}, v16, 4, v17')
    e.i(f'v_xor_b32 v16, 4, v16')
    e.i(f'v_lshl_add_u32 v{vX1}, v16, 4, v17')
    e.i(f'v_add_u32 v{vX1}, {8*1152}, v{vX1}')
    e.i(f's_lshl_b32 s41, s{sT}, 7')
    e.i(f's_lshl_b32 s42, s{sWV}, 4')
    e.i(f's_add_u32 s41, s41, s42')
    e.i(f's_mul_i32 s{sXB}, s41, 1152')
    e.i(f's_lshl_b32 s{sM0B}, s{sWV}, 11')
    e.i(f'v_and_b32 v14, 1, v14')
    e.i(f'v_lshlrev_b32 v14, 2, v14')
    e.i(f'v_xor_b32 v15, v15, v14')
    e.i(f'v_lshlrev_b32 v15, 4, v15')
    e.i(f'v_mul_u32_u24 v14, 9216, v13')
    e.i(f'v_add_u32 v{vW1}, v14, v15')
    e.i(f'v_add_u32 v{vW2}, v17, v15')
    e.i(f's_and_b32 s43, s{sT}, 7')
    e.i(f's_sub_u32 s42, s43, 6')
    e.i(f's_min_u32 s{sROT}, s43, s42')
    e.i(f's_mul_i32 s40, s{sC}, {FC}')
    e.i(f's_lshl_b32 s41, s40, 1')
    e.i(f's_mul_i32 s42, s{sWV}, {24*9216}')
    e.i(f's_add_u32 s{sW1B}, s41, s42')
    for fp in range(6):
        e.i(f's_add_u32 s42, s{sROT}, {fp}')
        e.i(f's_sub_u32 s41, s42, 6')
        e.i(f's_min_u32 s42, s42, s41')
        e.i(f's_lshl_b32 s42, s42, 7')
        e.i(f's_add_u32 s{sC1+fp}, s{sW1B}, s42')
    e.i('s_waitcnt lgkmcnt(0)')
    if cfg.prostamps: stamp('kernarg')
    for s_ in (sW1, sW2, sX, sWS, sB1):
        e.i(f's_and_b32 s{s_+1}, s{s_+1}, 0xffff')
    def xdma(blk, base):
        for a, vx in ((0, vX0), (1, vX1)):
            e.i(f's_add_u32 m0, s{sM0B}, {base + a*1024}')
            e.i(f's_add_u32 s{sOFF}, s{sXB}, {blk*128}')
            e.vm(f'buffer_load_dwordx4 v{vx}, s[{sX}:{sX+3}], s{sOFF} offen lds', ('xd', blk, a))
    def dma_one(it, i):
        if cfg.nodma and it >= 6:
            e.vq.append(('dma', it, i)); e.vm_done.add(('dma', it, i)); e.vq.pop(); return
        sl = slot[it]
        e.i(f's_add_u32 m0, s{sM0C}, {sl*SLOT + i*1024}')
        if it < 18:
            fp, kb = it // 3, it % 3
            e.i(f's_add_u32 s{sOFF}, s{sC1+fp}, {(192*kb + 8*i)*9216}')
            e.vm(f'buffer_load_dwordx4 v{vW1}, s[{sW1}:{sW1+3}], s{sOFF} offen lds', ('dma', it, i))
        else:
            dp, kb = P2[it-18]
            e.i(f's_add_u32 s{sOFF}, s{sR2+3*kb+i}, s{sD2+dp}')
            e.vm(f'buffer_load_dwordx4 v{vW2}, s[{sW2}:{sW2+3}], s{sOFF} offen lds', ('dma', it, i))
    sM0C = 65
    e.i(f's_mul_i32 s{sM0C}, s{sWV}, 3072')
    def dma_item(it):
        for i in range(3): dma_one(it, i)
    for b in range(3): xdma(b, b*16384)
    e.i(f'v_lshrrev_b32 v13, 5, v{L}')
    e.i(f's_lshl_b32 s42, s{sWV}, 1')
    e.i(f's_add_u32 s42, s42, s{sROT}')
    e.i(f'v_add_u32 v13, s42, v13')
    e.i(f'v_subrev_u32 v14, 6, v13')
    e.i(f'v_min_u32 v13, v13, v14')
    e.i(f'v_lshlrev_b32 v13, 7, v13')
    e.i(f'v_and_b32 v14, 31, v{L}')
    e.i(f'v_lshl_add_u32 v13, v14, 2, v13')
    e.i(f's_lshl_b32 s44, s40, 1') if False else None
    e.i(f's_lshl_b32 s41, s40, 1')
    e.i(f's_cmp_lt_u32 s{sWV}, 3')
    e.i(f's_cbranch_scc0 Lffn_nobias_ld')
    e.i(f'buffer_load_dword v34, v13, s[{sB1}:{sB1+3}], s41 offen')
    e.label('Lffn_nobias_ld')
    dma_item(0); dma_item(1)
    for b in range(3, 6): xdma(b, 4*SLOT + (b-3)*16384)
    if cfg.prostamps: stamp('issued')
    for i in range(3):
        e.i(f's_mul_i32 s41, s{sWV}, 24')
        e.i(f's_add_u32 s41, s41, {8*i}')
        e.i(f's_lshr_b32 s42, s41, 6')
        e.i(f's_and_b32 s41, s41, 63')
        e.i(f's_add_u32 s41, s41, s40')
        e.i(f's_add_u32 s42, s42, s{sROT}')
        for kb in range(2):
            e.i(f's_add_u32 s{sOFF}, s42, {3*kb}')
            e.i(f's_sub_u32 s{sSTO}, s{sOFF}, 6')
            e.i(f's_min_u32 s{sOFF}, s{sOFF}, s{sSTO}')
            e.i(f's_lshl_b32 s{sOFF}, s{sOFF}, 6')
            e.i(f's_add_u32 s{sOFF}, s{sOFF}, s41')
            e.i(f's_mul_i32 s{sR2+3*kb+i}, s{sOFF}, 1152')
    for dp in range(9):
        e.i(f's_add_u32 s42, s43, {dp}')
        e.i(f's_sub_u32 s41, s42, 9')
        e.i(f's_min_u32 s42, s42, s41')
        e.i(f's_lshl_b32 s{sD2+dp}, s42, 7')
    e.i(f's_lshl_b32 s42, s{sT}, 2')
    e.i(f's_add_u32 s42, s42, s{sMI}')
    e.i(f's_mul_i32 s42, s42, 18')
    e.i(f's_add_u32 s42, s42, s{sP}')
    e.i(f's_mul_i32 s42, s42, {NCH}')
    e.i(f's_add_u32 s42, s42, s{sC}')
    e.i(f's_lshl_b32 s{sSTO}, s42, 11')
    e.i(f's_add_u32 s{sSTO}, s{sSTO}, {WS_PART}')
    e.i(f'v_lshrrev_b32 v15, 5, v{L}')
    e.i(f's_lshl_b32 s42, s{sP}, 7')
    e.i(f's_add_u32 s42, s42, {LDS_BIAS}')
    e.i(f'v_lshl_add_u32 v{vBIAS}, v15, 4, s42')
    e.i(f'v_and_b32 v13, 15, v{L}')
    e.i(f'v_lshrrev_b32 v14, 2, v13')
    e.i(f'v_lshrrev_b32 v0, 3, v13')
    e.i(f'v_xor_b32 v0, s{sP}, v0')
    e.i(f'v_lshlrev_b32 v0, 6, v0')
    e.i(f'v_lshrrev_b32 v{vA0}, 4, v{L}')
    e.i(f'v_and_b32 v{vA0}, 1, v{vA0}')
    e.i(f'v_lshl_add_u32 v0, v{vA0}, 5, v0')
    e.i(f'v_and_b32 v{vA0}, 3, v13')
    e.i(f'v_lshl_add_u32 v0, v{vA0}, 3, v0')
    e.i(f'v_lshl_add_u32 v{vA0}, v15, 3, v14')
    e.i(f'v_lshl_add_u32 v{vPAT1}, v{vA0}, 7, v0')
    e.i(f'v_lshl_add_u32 v{vA0}, v15, 2, v14')
    e.i(f'v_lshl_add_u32 v{vPAT2}, v{vA0}, 7, v0')
    e.i(f'v_and_b32 v13, 31, v{L}')
    e.i(f'v_lshrrev_b32 v14, 1, v13')
    e.i(f'v_and_b32 v14, 7, v14')
    e.i(f'v_xor_b32 v14, v14, v15')
    e.i(f'v_lshlrev_b32 v14, 4, v14')
    e.i(f's_lshl_b32 s42, s{sMI}, 12')
    e.i(f'v_lshl_add_u32 v13, v13, 7, v14')
    e.i(f'v_add_u32 v{vST}, s42, v13')
    def xaddr(region):
        for tl in range(4):
            e.valu(f'v_xor_b32 v{tmp[tl]}, {32*tl}, v{vST}', dst=[tmp[tl]])
            if region:
                e.valu(f'v_add_u32 v{tmp[tl]}, {region}, v{tmp[tl]}', dst=[tmp[tl]])
    def xread(t):
        g = t // 12; tt = t % 12
        e.lds(f'ds_read_b128 v[{XF+4*t}:{XF+4*t+3}], v{tmp[tt & 3]} offset:{(tt >> 2)*16384}', ('x', t))
    if cfg.prostamps: stamp('setup done')
    if cfg.prostamps:
        e.wait_vm(('xd', 0, 0)); stamp('first landed')
    e.wait_vm(('xd', 2, 1))
    if cfg.prostamps: stamp('XA landed')
    e.i('s_barrier')
    stamp('Ba')
    xaddr(0)
    for t in range(12): xread(t)
    e.wait_vm(('dma', 0, 0))
    e.i(f's_cmp_lt_u32 s{sWV}, 3')
    e.i(f's_cbranch_scc0 Lffn_nobias_st')
    e.i('v_lshlrev_b32 v36, 16, v34')
    e.i('v_and_b32 v37, 0xffff0000, v34')
    e.i(f'v_lshlrev_b32 v35, 3, v{L}')
    e.i(f's_lshl_b32 s42, s{sWV}, 9')
    e.i(f's_add_u32 s42, s42, {LDS_BIAS}')
    e.i(f'v_add_u32 v35, s42, v35')
    e.i('ds_write_b64 v35, v[36:37]')
    e.label('Lffn_nobias_st')
    e.i('s_waitcnt lgkmcnt(0)')
    e.lq = []; e.lds_done.update(('x', t) for t in range(12))
    e.wait_vm(('dma', 1, 2))
    e.i('s_barrier')
    stamp('Bb')
    for b in range(6, 9): xdma(b, (b-6)*16384)

    beats = [(s, b) for s in range(36) for b in range(12)]
    PD = 3
    NOPREF = {2, 3}
    def addr_reg(s, partner=False):
        if s < 18: return (vA0, vA1)[s & 1]
        return ((vA2, vA3) if partner else (vA0, vA1))[s & 1]
    addr_set = set()
    def ensure_addr(s):
        if s in addr_set or s >= 36: return
        addr_set.add(s)
        base = slot[s]*SLOT
        e.valu(f'v_add_u32 v{addr_reg(s)}, {base}, v{vPAT1}', dst=[addr_reg(s)])
        if s >= 18:
            e.valu(f'v_add_u32 v{addr_reg(s, True)}, {base}, v{vPAT2}', dst=[addr_reg(s, True)])
    def p2_beat(b):
        return b >= 6, (b % 6) // 2, b % 2
    issued = set()
    def issue_reads(gb):
        if gb >= len(beats) or gb in issued: return
        issued.add(gb)
        s, b = beats[gb]
        fr = AF + 4*(gb % 4)
        if s < 18:
            a = addr_reg(s); o1 = b*2048; o2 = o1 + 512
        else:
            partner, u, tp = p2_beat(b)
            a = addr_reg(s, partner); o1 = u*8192 + tp*2048; o2 = o1 + 1024
        e.lds(f'ds_read_b64_tr_b16 v[{fr}:{fr+1}], v{a} offset:{o1}', ('af', gb, 0))
        e.lds(f'ds_read_b64_tr_b16 v[{fr+2}:{fr+3}], v{a} offset:{o2}', ('af', gb, 1))
    def bias_read(tile, j):
        acc = ACC[tile & 1]
        e.lds(f'ds_read_b128 v[{acc+4*j}:{acc+4*j+3}], v{vBIAS} offset:{256*tile + 32*j}', ('bias', tile, j))
    def gelu_ops(tile):
        acc = ACC[tile & 1]
        ops = []
        for pr in range(8):
            a = acc + 2*pr; b = a + 1
            t0, t1 = (tmp[0], tmp[1]) if pr % 2 == 0 else (tmp[2], tmp[3])
            h = HOWN + 8*tile + pr
            seq = [
                (f'v_mul_f32_e32 v{t0}, v{a}, v{a}', [t0], [a], False),
                (f'v_mul_f32_e32 v{t1}, v{b}, v{b}', [t1], [b], False),
                (f'v_fma_f32 v{t0}, v{t0}, s{sGC1}, v{vC0}', [t0], [t0], False),
                (f'v_fma_f32 v{t1}, v{t1}, s{sGC1}, v{vC0}', [t1], [t1], False),
                (f'v_mul_f32_e32 v{t0}, v{t0}, v{a}', [t0], [t0, a], False),
                (f'v_mul_f32_e32 v{t1}, v{t1}, v{b}', [t1], [t1, b], False),
                (f'v_exp_f32_e32 v{t0}, v{t0}', [t0], [t0], True),
                (f'v_exp_f32_e32 v{t1}, v{t1}', [t1], [t1], True),
                (f'v_add_f32_e32 v{t0}, 1.0, v{t0}', [t0], [t0], False),
                (f'v_add_f32_e32 v{t1}, 1.0, v{t1}', [t1], [t1], False),
                (f'v_rcp_f32_e32 v{t0}, v{t0}', [t0], [t0], True),
                (f'v_rcp_f32_e32 v{t1}, v{t1}', [t1], [t1], True),
                (f'v_mul_f32_e32 v{t0}, v{t0}, v{a}', [t0], [t0, a], False),
                (f'v_mul_f32_e32 v{t1}, v{t1}, v{b}', [t1], [t1, b], False),
                (f'v_cvt_pk_bf16_f32 v{h}, v{t0}, v{t1}', [h], [t0, t1], False),
            ]
            for (txt, d, s_, tr) in (seq if not cfg.nogelu else seq[-1:]):
                ops.append(lambda txt=txt, d=d, s_=s_, tr=tr: e.valu(txt, dst=d, src=s_, trans=tr))
            if pr % 2 == 1 and tile + 2 < 6:
                ops.append(lambda j=pr // 2: bias_read(tile + 2, j))
        return ops
    def store_ops(dp):
        acc = ACCP[dp & 1]
        ops = []
        for half in range(2):
            for k in range(4):
                r = acc + 8*half + 2*k
                d = PK + 4*half + k
                ops.append(lambda r=r, d=d: e.valu(f'v_cvt_pk_bf16_f32 v{d}, v{r}, v{r+1}', dst=[d], src=[r, r+1]))
            def st(half=half):
                if half == 0:
                    e.i(f's_mul_i32 s{sOFF}, s{sD2+dp}, {2*NCH*2048//128}')
                    e.i(f's_add_u32 s{sOFF}, s{sOFF}, s{sSTO}')
                else:
                    e.i(f's_mul_i32 s{sOFF}, s{sD2+dp}, {2*NCH*2048//128}')
                    e.i(f's_add_u32 s{sOFF}, s{sOFF}, s{sSTO}')
                if not cfg.nostore:
                    e.vm(f'buffer_store_dwordx4 v[{PK+4*half}:{PK+4*half+3}], v{vST}, s[{sWS}:{sWS+3}], s{sOFF} offen offset:{1024*half} {cfg.stflag}', ('st', dp, half))
            ops.append(st)
        return ops
    for j in range(4): bias_read(0, j)
    for j in range(4): bias_read(1, j)
    ensure_addr(0)
    e.nop(1)
    for gb in range(PD): issue_reads(gb)
    fill = []
    dma_list = []
    dp_done = {}
    for idx, (dp, kb) in enumerate(P2):
        if kb == 1: dp_done[18 + idx + 1] = dp
    for gb, (s, b) in enumerate(beats):
        if b == 0:
            e.comment(f'---- stage {s} (slot {slot[s]}) ----')
            if s in cfg.stamps: stamp('stage')
            dma_list = [(it, i) for it in issue[s] for i in range(3)]
            if s in NOPREF:
                ensure_addr(s)
                for k in range(PD): issue_reads(gb + k)
            ensure_addr(s + 1)
            if s == 1:
                xaddr(4*SLOT)
                for t in range(12, 24): xread(t)
            if s == 2:
                xaddr(0)
                for t in range(24, 36): xread(t)
            if s < 18 and s % 3 == 0 and s >= 3:
                fill = gelu_ops(s // 3 - 1); nfill = len(fill); fill_span = (2, 34); fill_base = gb
            if s == 18:
                fill = gelu_ops(5); nfill = len(fill); fill_span = (2, 21); fill_base = gb
            if s in dp_done:
                assert not fill
                fill = store_ops(dp_done[s]); nfill = len(fill); fill_span = (3, 10); fill_base = gb
            if s == 16:
                e.valu(f'v_lshlrev_b32 v{vST}, 4, v{vLANE}', dst=[vST])
                e.i(f's_mul_i32 s42, s{sMI}, 6144')
                e.i(f's_mul_i32 s43, s{sP}, {(ex[1]-ex[0])*SLOT}')
                e.i(f's_add_u32 s41, s43, {ex[0]*SLOT}')
                e.i(f's_sub_u32 s43, {ex[1]*SLOT}, s43')
                e.i(f's_add_u32 s41, s41, s42')
                e.i(f's_add_u32 s43, s43, s42')
                e.valu(f'v_add_u32 v{vBIAS}, s41, v{vST}', dst=[vBIAS])
                e.valu(f'v_add_u32 v{vW1}, s43, v{vST}', dst=[vW1])
        if cfg.prio and b % 3 == 0:
            e.i(f's_setprio {3 - b // 3}')
        if cfg.looptest and b == 0 and s in (6, 9):
            if s == 6:
                e.i('s_mov_b32 s101, 0'); e.label('Lrep6')
            else:
                e.i('s_add_u32 s101, s101, 1'); e.i('s_cmp_lt_u32 s101, 2'); e.i('s_cbranch_scc1 Lrep6')
        e.wait_lds(('af', gb, 1))
        fr = AF + 4*(gb % 4)
        if s < 18:
            tile = s // 3; t = (s % 3)*12 + b
            if tile == 0: e.wait_lds(('x', t))
            acc = ACC[tile & 1]
            if t == 0:
                for j in range(4): e.wait_lds(('bias', tile, j))
            xb = XF + 4*t
            e.mfma(f'v_mfma_f32_32x32x16_bf16 v[{acc}:{acc+15}], v[{fr}:{fr+3}], v[{xb}:{xb+3}], v[{acc}:{acc+15}]',
                   list(range(acc, acc+16)), list(range(fr, fr+4)) + list(range(xb, xb+4)))
        else:
            dp, kb = P2[s-18]
            partner, u, tp = p2_beat(b)
            fp = 3*kb + u
            hb = (HPART if partner else HOWN) + 8*fp + 4*tp
            if partner and (s == 18 or s == 20):
                e.wait_lds(('exr', fp*2 + tp))
            acc = ACCP[dp & 1]
            c = '0' if (kb == 0 and b == 0) else f'v[{acc}:{acc+15}]'
            e.mfma(f'v_mfma_f32_32x32x16_bf16 v[{acc}:{acc+15}], v[{fr}:{fr+3}], v[{hb}:{hb+3}], {c}',
                   list(range(acc, acc+16)), list(range(fr, fr+4)) + list(range(hb, hb+4)))
        nb = gb + PD
        if nb < len(beats) and not (beats[nb][0] in NOPREF and beats[nb][0] != s):
            issue_reads(nb)
        if s == 1 and b == 3:
            e.wait_lds(('x', 23))
            e.i('s_barrier')
            dma_list += [(3, i) for i in range(3)] + [(4, i) for i in range(3)]
        if b == 0: ndma0 = len(dma_list); ndma_done = 0
        if s == 1 and b == 3: ndma0 = len(dma_list) ; ndma_done = 0; dma_b0 = 3
        elif b == 0: dma_b0 = 0
        if dma_list:
            if cfg.dmaspread:
                span = 10 - dma_b0
                tgt = ndma0 if b >= 10 else -(-ndma0 * (b - dma_b0) // span) if b > dma_b0 else 0
                if ndma0 <= 3:
                    pts = cfg.dmabeats
                    tgt = sum(1 for p_ in pts[:ndma0] if b >= p_)
                    if s < 3: tgt = ndma0 if b >= dma_b0 + 2 else min(ndma0, b - dma_b0 + 1)
                while ndma_done < tgt and dma_list:
                    dma_one(*dma_list.pop(0)); ndma_done += 1
            else:
                k = -(-len(dma_list) // max(1, 7 - b)) if b < 7 else len(dma_list)
                for _ in range(min(k, len(dma_list))):
                    dma_one(*dma_list.pop(0))
        if cfg.prefetch and s in (4, 5) and b == 8:
            k = s - 4
            e.i(f's_and_b32 s41, s{sT}, 7')
            e.i(f's_lshl_b32 s41, s41, 3')
            e.i(f's_add_u32 s41, s41, s{sWV}')
            e.i(f's_lshl_b32 s41, s41, 1')
            e.i(f's_add_u32 s41, s41, {k}')
            e.i(f's_lshl_b32 s41, s41, 12')
            e.i(f's_mul_i32 s42, s{sC}, {FC*1152}')
            e.i(f's_add_u32 s41, s41, s42')
            e.i(f's_min_u32 s41, s41, {F*D*2 - 4096}')
            e.valu(f'v_lshlrev_b32 v{vA3}, 6, v{vLANE}', dst=[vA3])
            e.vm(f'buffer_load_dword v{vA2}, v{vA3}, s[{sW2}:{sW2+3}], s41 offen', ('pf', k))
        if s == 16 and b % 2 == 0:
            k = b // 2
            r = HOWN + 4*k
            e.lds(f'ds_write_b128 v{vBIAS}, v[{r}:{r+3}] offset:{1024*k}', ('exw', k))
        if s == 17 and b < 6:
            r = HPART + 4*b
            e.lds(f'ds_read_b128 v[{r}:{r+3}], v{vW1} offset:{1024*b}', ('exr', b))
        if s == 19 and b in (0, 2, 4, 6):
            k = b // 2
            r = HOWN + 24 + 4*k
            e.lds(f'ds_write_b128 v{vBIAS}, v[{r}:{r+3}] offset:{1024*k}', ('exw', 6 + k))
        if s == 20 and b < 6:
            r = HPART + 24 + 4*b
            e.lds(f'ds_read_b128 v[{r}:{r+3}], v{vW1} offset:{1024*b}', ('exr', 6 + b))
        if fill:
            rel = gb - fill_base
            lo, hi = fill_span
            if rel >= lo:
                tgt = nfill if rel >= hi else (nfill * (rel - lo + 1)) // (hi - lo + 1)
                donec = nfill - len(fill)
                while donec < tgt:
                    fill.pop(0)(); donec += 1
        if s == 19 and b == 11:
            assert not fill
            for k in (4, 5):
                r = HOWN + 24 + 4*k
                e.lds(f'ds_write_b128 v{vBIAS}, v[{r}:{r+3}] offset:{1024*k}', ('exw', 6 + k))
        if s == 16 and b == 11:
            e.i(f's_lshl_b32 s42, s{sP}, 12')
            e.i(f's_xor_b32 s43, s42, 4096')
            e.valu(f'v_add_u32 v{vPAT1}, s42, v{vPAT2}', dst=[vPAT1])
            e.valu(f'v_add_u32 v{vPAT2}, s43, v{vPAT2}', dst=[vPAT2])
        if b == 11:
            assert not dma_list
            if s in cfg.prestamps: stamp('prewait')
            if s == 0:
                e.wait_vm(('xd', 5, 1))
            elif s == 1:
                e.wait_vm(('dma', 2, 2)); e.wait_vm(('xd', 8, 1))
            elif s + 2 < 36:
                e.wait_vm(('dma', s + 2, 2))
            if s in (16, 19):
                e.wait_lds(('exw', 5 if s == 16 else 11))
            if s == 17: e.wait_lds(('exr', 5))
            if s == 20: e.wait_lds(('exr', 11))
            if s == 2: e.wait_lds(('x', 35))
            if s < 35 and not (cfg.nobar and s >= 3):
                e.i('s_barrier')
    stamp('mainloop end')
    for op in store_ops(8): op()
    e.wait_vm_all()
    stamp('end')
    if cfg.prof:
        e.i('s_memrealtime s[100:101]')
        e.i('s_waitcnt lgkmcnt(0)')
        e.i(f's_cmp_eq_u32 s{sWV}, 0')
        e.i('s_cbranch_scc0 Lffn_noprof')
        e.i(f's_lshl_b32 s42, s2, 7')
        e.i(f's_add_u32 s42, s42, {WS_PROF}')
        e.i(f'v_mov_b32 v14, 0')
        for k in range(nprof[0]):
            e.i(f'v_mov_b32 v13, s{sPROF+2*k}')
            e.i(f'buffer_store_dword v13, v14, s[{sWS}:{sWS+3}], s42 offen offset:{4*k}')
        e.i(f'v_mov_b32 v13, s98')
        e.i(f'buffer_store_dword v13, v14, s[{sWS}:{sWS+3}], s42 offen offset:{4*30}')
        e.i(f'v_mov_b32 v13, s100')
        e.i(f'buffer_store_dword v13, v14, s[{sWS}:{sWS+3}], s42 offen offset:{4*31}')
        e.i('s_waitcnt vmcnt(0)')
        e.label('Lffn_noprof')
    e.i('s_endpgm')
```

```python
from common import *

def gen_final_unit(e, R, lbl=''):
    sWS, sQ, sB2, sOUT = R['sWS'], R['sQ'], R['sB2'], R['sOUT']
    sT, sMI, sDT, sLDS = R['sT'], R['sMI'], R['sDT'], R['sLDS']
    t0, t1, t2, t3 = R['tmp']
    PR = 32
    QR = 128
    YR = 136
    BR = 144
    GR = 152
    AC = 156
    OP = 172
    L = 1
    e.i(f's_lshl_b32 s{t0}, s{sT}, 2')
    e.i(f's_add_u32 s{t0}, s{t0}, s{sMI}')
    e.i(f's_mul_i32 s{t1}, s{t0}, 18')
    e.i(f's_add_u32 s{t1}, s{t1}, s{sDT}')
    e.i(f's_mul_i32 s{t1}, s{t1}, {NCH*2048}')
    e.i(f's_add_u32 s{t1}, s{t1}, {WS_PART}')
    e.i(f'v_lshlrev_b32 v2, 4, v{L}')
    e.i(f'v_lshrrev_b32 v3, 2, v{L}')
    e.i(f'v_lshlrev_b32 v3, 12, v3')
    e.i(f'v_and_b32 v4, 3, v{L}')
    e.i(f'v_lshl_add_u32 v3, v4, 4, v3')
    e.i(f's_lshl_b32 s{t2}, s{sDT}, 17')
    e.i(f's_lshl_b32 s{t3}, s{t0}, 6')
    e.i(f's_add_u32 s{t2}, s{t2}, s{t3}')
    e.i(f's_add_u32 s{t2}, s{t2}, {WS_Y2}')
    e.i(f's_mov_b32 m0, s{sLDS}')
    e.i('s_nop 0')
    e.i(f'buffer_load_dwordx4 v3, s[{sWS}:{sWS+3}], s{t2} offen lds')
    e.i(f's_add_u32 m0, s{sLDS}, 1024')
    e.i(f's_add_u32 s{t2}, s{t2}, {16*4096}')
    e.i(f'buffer_load_dwordx4 v3, s[{sWS}:{sWS+3}], s{t2} offen lds')
    e.i(f'v_and_b32 v4, 31, v{L}')
    e.i(f'v_lshrrev_b32 v5, 5, v{L}')
    e.i(f'v_mul_u32_u24 v6, 1152, v4')
    e.i(f'v_lshl_add_u32 v6, v5, 4, v6')
    e.i(f's_mul_i32 s{t2}, s{t0}, {32*1152}')
    e.i(f's_lshl_b32 s{t3}, s{sDT}, 6')
    e.i(f's_add_u32 s{t2}, s{t2}, s{t3}')
    for jj in range(2):
        e.i(f'buffer_load_dwordx4 v[{QR+4*jj}:{QR+4*jj+3}], v6, s[{sQ}:{sQ+3}], s{t2} offen offset:{32*jj}')
    e.i(f'v_lshlrev_b32 v7, 2, v4')
    e.i(f's_lshl_b32 s{t0}, s{t0}, 7')
    e.i(f's_add_u32 s{t0}, s{t0}, {WS_G}')
    e.i(f'buffer_load_dword v{GR}, v7, s[{sWS}:{sWS+3}], s{t0} offen')
    e.i(f'v_lshlrev_b32 v7, 3, v5')
    for j in range(4):
        e.i(f'buffer_load_dwordx2 v[{BR+2*j}:{BR+2*j+1}], v7, s[{sB2}:{sB2+3}], s{t3} offen offset:{16*j}')
    for i in range(2*NCH):
        if i and i % 4 == 0:
            e.i(f's_add_u32 s{t1}, s{t1}, 4096')
        e.i(f'buffer_load_dwordx4 v[{PR+4*i}:{PR+4*i+3}], v2, s[{sWS}:{sWS+3}], s{t1} offen offset:{1024*(i%4)} {R.get("ldflag","")}')
    e.i(f'v_and_b32 v8, 15, v{L}')
    e.i(f'v_lshrrev_b32 v9, 2, v8')
    e.i(f'v_lshl_add_u32 v9, v5, 2, v9')
    e.i(f'v_lshlrev_b32 v9, 6, v9')
    e.i(f'v_and_b32 v8, 3, v8')
    e.i(f'v_lshl_add_u32 v9, v8, 3, v9')
    e.i(f'v_lshrrev_b32 v8, 4, v{L}')
    e.i(f'v_and_b32 v8, 1, v8')
    e.i(f'v_lshl_add_u32 v9, v8, 5, v9')
    e.i(f'v_add_u32 v9, s{sLDS}, v9')
    e.i(f's_waitcnt vmcnt({2*NCH + 7})')
    for j in range(4):
        e.i(f'ds_read_b64_tr_b16 v[{YR+2*j}:{YR+2*j+1}], v9 offset:{512*j}')
    for c in range(NCH):
        e.i(f's_waitcnt vmcnt({2*(NCH-1-c)})')
        for half in range(2):
            for k in range(4):
                r = PR + 8*c + 4*half + k
                a = AC + 8*half + 2*k
                if c == 0:
                    e.i(f'v_lshlrev_b32 v{a}, 16, v{r}')
                    e.i(f'v_and_b32 v{a+1}, 0xffff0000, v{r}')
                else:
                    e.i(f'v_lshlrev_b32 v10, 16, v{r}')
                    e.i(f'v_and_b32 v11, 0xffff0000, v{r}')
                    e.i(f'v_add_f32 v{a}, v{a}, v10')
                    e.i(f'v_add_f32 v{a+1}, v{a+1}, v11')
    for jj in range(2):
        e.i(f'v_permlane32_swap_b32 v{QR+4*jj}, v{QR+4*jj+2}')
        e.i(f'v_permlane32_swap_b32 v{QR+4*jj+1}, v{QR+4*jj+3}')
    e.i('s_waitcnt lgkmcnt(0)')
    e.i(f'v_sub_f32 v12, 1.0, v{GR}')
    for j in range(4):
        for k in range(2):
            q = QR + 2*j + k; y = YR + 2*j + k; b = BR + 2*j + k
            for hi in range(2):
                a = AC + 4*j + 2*k + hi
                if hi == 0:
                    e.i(f'v_lshlrev_b32 v10, 16, v{q}'); e.i(f'v_lshlrev_b32 v11, 16, v{y}'); e.i(f'v_lshlrev_b32 v13, 16, v{b}')
                else:
                    e.i(f'v_and_b32 v10, 0xffff0000, v{q}'); e.i(f'v_and_b32 v11, 0xffff0000, v{y}'); e.i(f'v_and_b32 v13, 0xffff0000, v{b}')
                e.i(f'v_add_f32 v{a}, v{a}, v13')
                e.i(f'v_mul_f32 v10, v10, v11')
                e.i(f'v_mul_f32 v{a}, v{a}, v12')
                e.i(f'v_fmac_f32 v{a}, v10, v{GR}')
            e.i(f'v_cvt_pk_bf16_f32 v{OP+2*j+k}, v{AC+4*j+2*k}, v{AC+4*j+2*k+1}')
    e.i('s_nop 1')
    for jj in range(2):
        e.i(f'v_permlane32_swap_b32 v{OP+4*jj}, v{OP+4*jj+2}')
        e.i(f'v_permlane32_swap_b32 v{OP+4*jj+1}, v{OP+4*jj+3}')
    for jj in range(2):
        e.i(f'buffer_store_dwordx4 v[{OP+4*jj}:{OP+4*jj+3}], v6, s[{sOUT}:{sOUT+3}], s{t2} offen offset:{32*jj}')

def gen_final_kernel(e, cfg):
    sWS = 8; sQ = 12; sB2 = 16; sOUT = 20
    e.i('s_cmp_ge_u32 s2, 288')
    e.i('s_cbranch_scc1 Lk2_exit')
    for s_, nm in ((sWS, 'ws'), (sQ, 'q'), (sB2, 'b2'), (sOUT, 'out')):
        e.i(f's_load_dwordx2 s[{s_}:{s_+1}], s[0:1], {KA[nm]}')
    e.i('v_and_b32 v1, 63, v0')
    e.i('v_lshrrev_b32 v2, 6, v0')
    e.i('s_nop 0')
    e.i('v_readfirstlane_b32 s24, v2')
    for s_, nb in ((sWS, WS_TOTAL), (sQ, S*D*2), (sB2, D*2), (sOUT, S*D*2)):
        e.i(f's_mov_b32 s{s_+2}, {nb}')
        e.i(f's_mov_b32 s{s_+3}, 0x00020000')
    e.i(f's_mul_hi_u32 s25, s2, {(1 << 32)//9 + 1}')
    e.i('s_mul_i32 s26, s25, 9')
    e.i('s_sub_u32 s26, s2, s26')
    e.i('s_lshr_b32 s27, s25, 1')
    e.i('s_and_b32 s25, s25, 1')
    e.i('s_lshl_b32 s25, s25, 1')
    e.i('s_lshr_b32 s28, s24, 1')
    e.i('s_add_u32 s28, s28, s25')
    e.i('s_lshl_b32 s26, s26, 1')
    e.i('s_and_b32 s29, s24, 1')
    e.i('s_add_u32 s29, s29, s26')
    e.i('s_lshl_b32 s30, s24, 11')
    e.i('s_waitcnt lgkmcnt(0)')
    for s_ in (sWS, sQ, sB2, sOUT):
        e.i(f's_and_b32 s{s_+1}, s{s_+1}, 0xffff')
    gen_final_unit(e, dict(sWS=sWS, sQ=sQ, sB2=sB2, sOUT=sOUT, sT=27, sMI=28, sDT=29, sLDS=30, tmp=(32, 33, 34, 35)))
    e.i('s_waitcnt vmcnt(0)')
    e.label('Lk2_exit')
    e.i('s_endpgm')
```

```python
from common import *

WREG = 12928
OFF_O = 4160
OFF_X = 8320

def gen_ssm(e, cfg):
    sQ = 8; sK = 12; sV = 16; sWS = 20; sSK = 24; sH = 40; sGW = 44; sDB = 48; sSD = 52
    sWV = 28; sJ = 29; sTILE = 30; sOFF = 36
    sPROF = 66
    nprof = [0]
    def stamp(name):
        if cfg.prof and nprof[0] < 16:
            k = nprof[0]; nprof[0] += 1
            e.i(f's_memtime s[{sPROF+2*k}:{sPROF+2*k+1}]')
    if cfg.prof: e.i('s_memrealtime s[98:99]')
    stamp('start')
    e.i(f's_sub_u32 s{sJ}, s2, 192')
    for s_, nm in ((sQ, 'q'), (sK, 'k'), (sV, 'v'), (sWS, 'ws'), (sSK, 'shift_k'), (sH, 'ssm_k'), (sGW, 'gate_w'), (sDB, 'dbg'), (sSD, 'ssm_D')):
        e.i(f's_load_dwordx2 s[{s_}:{s_+1}], s[0:1], {KA[nm]}')
    L = 1
    e.i(f'v_and_b32 v{L}, 63, v0')
    e.i('v_lshrrev_b32 v2, 6, v0')
    e.i('s_nop 0')
    e.i(f'v_readfirstlane_b32 s{sWV}, v2')
    for s_, nb in ((sQ, S*D*2), (sK, S*D*2), (sV, S*D*2), (sWS, WS_TOTAL), (sSK, D*8), (sH, D*S*2), (sGW, D*2), (sDB, 256), (sSD, D*2)):
        e.i(f's_mov_b32 s{s_+2}, {nb}')
        e.i(f's_mov_b32 s{s_+3}, 0x00020000')
    e.i('s_waitcnt lgkmcnt(0)')
    for s_ in (sQ, sK, sV, sWS, sSK, sH, sGW, sDB, sSD):
        e.i(f's_and_b32 s{s_+1}, s{s_+1}, 0xffff')
    sCH = 31
    e.i(f's_mul_i32 s{sCH}, s{sJ}, 9')
    e.i(f's_add_u32 s{sCH}, s{sCH}, s{sWV}')
    e.i(f's_lshl_b32 s{sTILE}, s{sJ}, 2')
    e.i(f's_add_u32 s{sTILE}, s{sTILE}, s{sWV}')
    e.i(f's_cmp_lt_u32 s{sWV}, 4')
    e.i('s_cbranch_scc1 Lssm_prep')
    e.i(f's_add_u32 s{sTILE}, s{sJ}, 256')
    e.i(f's_cmp_eq_u32 s{sWV}, 4')
    e.i('s_cbranch_scc0 Lssm_gate')
    e.i(f's_cmp_lt_u32 s{sJ}, 32')
    e.i('s_cbranch_scc0 Lssm_gate')
    e.label('Lssm_prep')
    e.i(f's_mul_hi_u32 s32, s{sTILE}, {(1 << 32)//9 + 1}')
    e.i(f's_mul_i32 s33, s32, 9')
    e.i(f's_sub_u32 s33, s{sTILE}, s33')
    e.i(f's_lshl_b32 s32, s32, 6')
    e.i(f's_lshl_b32 s33, s33, 6')
    e.i(f'v_and_b32 v2, 7, v{L}')
    e.i(f'v_lshrrev_b32 v3, 3, v{L}')
    e.i(f'v_lshl_add_u32 v4, v3, 3, s32')
    e.i(f'v_lshl_add_u32 v5, v2, 3, s33')
    e.i(f'v_mul_u32_u24 v6, 1152, v4')
    e.i(f'v_lshl_add_u32 v6, v5, 1, v6')
    e.i(f'v_subrev_u32 v7, 3456, v6')
    e.i(f'v_cmp_eq_u32 vcc, 0, v4')
    e.i(f'v_mov_b32 v8, 0x80000000')
    e.i('s_nop 0')
    e.i(f'v_cndmask_b32 v7, v7, v8, vcc')
    e.i(f'v_lshlrev_b32 v8, 3, v5')
    KR = 16
    VR = 60
    WR = 92
    e.i('s_mov_b32 s34, 4608')
    for i in range(3):
        e.i(f'buffer_load_dwordx4 v[{KR+4*i}:{KR+4*i+3}], v7, s[{sK}:{sK+3}], 0 offen offset:{1152*i}')
    for i in range(8):
        so = '0' if i < 4 else 's34'
        e.i(f'buffer_load_dwordx4 v[{KR+12+4*i}:{KR+12+4*i+3}], v6, s[{sK}:{sK+3}], {so} offen offset:{1152*(i%4)}')
    for i in range(4):
        e.i(f'buffer_load_dwordx4 v[{WR+4*i}:{WR+4*i+3}], v8, s[{sSK}:{sSK+3}], 0 offen offset:{16*i}')
    for i in range(8):
        so = '0' if i < 4 else 's34'
        e.i(f'buffer_load_dwordx4 v[{VR+4*i}:{VR+4*i+3}], v6, s[{sV}:{sV+3}], {so} offen offset:{1152*(i%4)}')
    e.i(f'v_lshlrev_b32 v9, 12, v5')
    e.i(f'v_lshlrev_b32 v10, 1, v4')
    e.i(f'v_sub_u32 v9, v9, v10')
    e.i(f'v_add_u32 v9, {4080}, v9')
    e.i(f's_mov_b32 s35, {WS_XR}')
    KU = 108
    VU = 130
    WU = 146
    AC = 154
    PKD = 170
    e.i('s_waitcnt vmcnt(0)')
    for q in range(4):
        for r in range(11):
            e.i(f'v_lshlrev_b32 v{KU+2*r}, 16, v{KR+4*r+q}')
            e.i(f'v_and_b32 v{KU+2*r+1}, 0xffff0000, v{KR+4*r+q}')
        for c in range(2):
            w = WR + 2*(2*q + c)
            e.i(f'v_lshlrev_b32 v{WU+4*c}, 16, v{w}')
            e.i(f'v_and_b32 v{WU+4*c+1}, 0xffff0000, v{w}')
            e.i(f'v_lshlrev_b32 v{WU+4*c+2}, 16, v{w+1}')
            e.i(f'v_and_b32 v{WU+4*c+3}, 0xffff0000, v{w+1}')
        for r in range(8):
            e.i(f'v_lshlrev_b32 v{VU+2*r}, 16, v{VR+4*r+q}')
            e.i(f'v_and_b32 v{VU+2*r+1}, 0xffff0000, v{VR+4*r+q}')
        for r in range(8):
            for c in range(2):
                a = AC + 2*r + c
                e.i(f'v_mul_f32 v{a}, v{KU+2*(r+0)+c}, v{WU+4*c+3}')
        for j in (2, 1, 0):
            for r in range(8):
                for c in range(2):
                    a = AC + 2*r + c
                    e.i(f'v_fmac_f32 v{a}, v{KU+2*(r+3-j)+c}, v{WU+4*c+j}')
        for r in range(8):
            for c in range(2):
                a = AC + 2*r + c
                e.i(f'v_mul_f32 v{a}, v{a}, v{VU+2*r+c}')
        for c in range(2):
            for k in range(4):
                e.i(f'v_cvt_pk_bf16_f32 v{PKD+4*c+k}, v{AC+2*(7-2*k)+c}, v{AC+2*(6-2*k)+c}')
        for c in range(2):
            ch = 2*q + c
            if ch == 0:
                pass
            e.i(f'buffer_store_dwordx4 v[{PKD+4*c}:{PKD+4*c+3}], v9, s[{sWS}:{sWS+3}], s35 offen sc1')
            e.i(f'v_add_u32 v9, 4096, v9')
        e.i('s_nop 1')
    e.label('Lssm_gate')
    e.i(f's_cmp_lt_u32 s{sWV}, 4')
    e.i('s_cbranch_scc1 Lssm_gate_done')
    e.i(f's_lshl_b32 s32, s{sJ}, 5')
    e.i(f's_sub_u32 s33, s{sWV}, 4')
    e.i(f's_lshl_b32 s33, s33, 3')
    e.i(f's_add_u32 s32, s32, s33')
    e.i(f'v_and_b32 v2, 7, v{L}')
    e.i(f'v_lshrrev_b32 v3, 3, v{L}')
    e.i(f'v_add_u32 v4, s32, v3')
    e.i(f'v_mul_u32_u24 v6, 1152, v4')
    e.i(f'v_lshl_add_u32 v6, v2, 4, v6')
    e.i(f'v_lshlrev_b32 v7, 4, v2')
    QR = 16; GR = 52
    for i in range(9):
        e.i(f'buffer_load_dwordx4 v[{QR+4*i}:{QR+4*i+3}], v6, s[{sQ}:{sQ+3}], 0 offen offset:{128*i}')
    for i in range(9):
        e.i(f'buffer_load_dwordx4 v[{GR+4*i}:{GR+4*i+3}], v7, s[{sGW}:{sGW+3}], 0 offen offset:{128*i}')
    e.i('v_mov_b32 v8, 0')
    e.i('v_mov_b32 v9, 0')
    e.i('s_waitcnt vmcnt(0)')
    for i in range(36):
        e.i(f'v_lshlrev_b32 v10, 16, v{QR+i}')
        e.i(f'v_lshlrev_b32 v11, 16, v{GR+i}')
        e.i(f'v_and_b32 v12, 0xffff0000, v{QR+i}')
        e.i(f'v_and_b32 v13, 0xffff0000, v{GR+i}')
        e.i(f'v_fmac_f32 v8, v10, v11')
        e.i(f'v_fmac_f32 v9, v12, v13')
    e.i('v_add_f32 v8, v8, v9')
    for off in (0x041F, 0x081F, 0x101F):
        e.i(f'ds_swizzle_b32 v9, v8 offset:{hex(off)}')
        e.i('s_waitcnt lgkmcnt(0)')
        e.i('v_add_f32 v8, v8, v9')
    e.i(f'v_mul_f32 v8, {hex(f2u(-1.4426950408889634))}, v8')
    e.i('v_exp_f32 v8, v8')
    e.i('s_nop 0')
    e.i('v_add_f32 v8, 1.0, v8')
    e.i('v_rcp_f32 v8, v8')
    e.i('v_lshlrev_b32 v10, 2, v4')
    e.i(f's_mov_b32 s35, {WS_G}')
    e.i('v_cmp_eq_u32 vcc, 0, v2')
    e.i('s_and_saveexec_b64 s[38:39], vcc')
    e.i('s_cbranch_execz Lssm_gate_st')
    e.i(f'buffer_store_dword v8, v10, s[{sWS}:{sWS+3}], s35 offen sc1')
    e.label('Lssm_gate_st')
    e.i('s_mov_b64 exec, s[38:39]')
    e.label('Lssm_gate_done')
    stamp('prep issued')
    e.i('s_waitcnt vmcnt(0)')
    e.i('s_barrier')
    stamp('prep done')
    e.i(f's_cmp_eq_u32 s{sWV}, 0')
    e.i('s_cbranch_scc0 Lssm_nosig')
    e.i('v_mov_b32 v2, 0')
    e.i('v_mov_b32 v3, 1')
    e.i('v_cmp_eq_u32 vcc, 0, v1')
    e.i('s_and_saveexec_b64 s[38:39], vcc')
    e.i('s_cbranch_execz Lssm_sig_r')
    e.i(f'buffer_atomic_add v3, v2, s[{sDB}:{sDB+3}], 0 offen sc1')
    e.label('Lssm_sig_r')
    e.i('s_mov_b64 exec, s[38:39]')
    e.label('Lssm_nosig')
    sBASE = 32
    e.i(f's_mul_i32 s{sBASE}, s{sWV}, {WREG}')
    vN = 2; vG = 3; vAa = [4, 5, 6, 7]; vBa = 8; vXa = 9; vYo = 10; vT = 11
    e.i(f'v_and_b32 v{vN}, 15, v{L}')
    e.i(f'v_lshrrev_b32 v{vG}, 4, v{L}')
    sDV = 33; sPASS = 34
    e.i(f's_mov_b32 s{sPASS}, 0')
    e.label('Lssm_chan')
    HR = 16
    e.i(f's_lshl_b32 s35, s{sCH}, 12')
    e.i(f'v_lshlrev_b32 v12, 4, v{L}')
    for i in range(4):
        e.i(f'buffer_load_dwordx4 v[{HR+8*i}:{HR+8*i+3}], v12, s[{sH}:{sH+3}], s35 offen offset:{1024*i}')
        e.i(f'buffer_load_dword v{HR+8*i+4}, v12, s[{sH}:{sH+3}], s35 offen offset:{1024*i+16}')
    e.i(f's_lshl_b32 s37, s{sCH}, 1')
    e.i(f's_and_b32 s37, s37, 0xfffffffc')
    e.i(f'v_mov_b32 v13, 0')
    e.i(f'buffer_load_dword v14, v13, s[{sSD}:{sSD+3}], s37 offen')
    e.i(f'v_mov_b32 v52, 0'); e.i('v_mov_b32 v53, 0'); e.i('v_mov_b32 v54, 0'); e.i('v_mov_b32 v55, 0')
    e.i(f'v_lshl_add_u32 v13, v{L}, 4, s{sBASE}')
    e.i(f'v_cmp_gt_u32 vcc, 32, v{L}')
    e.i('s_and_saveexec_b64 s[38:39], vcc')
    e.i(f'ds_write_b128 v13, v[52:55] offset:{OFF_X + 4096}')
    e.i(f'v_cmp_gt_u32 vcc, 2, v{L}')
    e.i('s_and_b64 exec, exec, vcc')
    e.i(f'ds_write_b128 v13, v[52:55]')
    e.i(f'ds_write_b128 v13, v[52:55] offset:{OFF_O}')
    e.i('s_mov_b64 exec, s[38:39]')
    e.i('s_waitcnt vmcnt(0) lgkmcnt(0)')
    e.i(f'v_readfirstlane_b32 s{sDV}, v14')
    e.i(f's_bitcmp1_b32 s{sCH}, 0')
    e.i(f's_cselect_b32 s37, 0, 16')
    e.i(f's_lshl_b32 s{sDV}, s{sDV}, s37')
    e.i(f's_and_b32 s{sDV}, s{sDV}, 0xffff0000')
    for i in range(4):
        h = HR + 8*i
        e.i(f'ds_write_b128 v13, v[{h}:{h+3}] offset:{32 + 1024*i}')
        for k in range(4):
            e.i(f'v_alignbit_b32 v{56+k}, v{h+k+1}, v{h+k}, 16')
        e.i(f'ds_write_b128 v13, v[56:59] offset:{OFF_O + 32 + 1024*i}')
        e.i('s_nop 0')
    e.i(f'v_lshlrev_b32 v56, 16, v{HR}')
    e.i(f'v_cmp_eq_u32 vcc, 0, v{L}')
    e.i('s_and_saveexec_b64 s[38:39], vcc')
    e.i(f'ds_write_b32 v13, v56 offset:{OFF_O + 28}')
    e.i('s_mov_b64 exec, s[38:39]')
    stamp('h built')
    e.i('s_waitcnt lgkmcnt(0)')
    e.i(f's_cmp_eq_u32 s{sPASS}, 0')
    e.i('s_cbranch_scc0 Lssm_nowait')
    e.i(f's_cmp_eq_u32 s{sWV}, 0')
    e.i('s_cbranch_scc0 Lssm_pollbar')
    e.i('v_mov_b32 v12, 0')
    e.label('Lssm_poll')
    e.i(f'buffer_load_dword v14, v12, s[{sDB}:{sDB+3}], 0 offen sc1')
    e.i('s_waitcnt vmcnt(0)')
    e.i('v_readfirstlane_b32 s37, v14')
    e.i('s_cmp_ge_u32 s37, 64')
    e.i('s_cbranch_scc1 Lssm_pollbar')
    e.i('s_sleep 4')
    e.i('s_branch Lssm_poll')
    e.label('Lssm_pollbar')
    e.i('s_barrier')
    e.label('Lssm_nowait')
    stamp('sync done')
    e.i(f's_lshl_b32 s35, s{sCH}, 12')
    e.i(f's_add_u32 s35, s35, {WS_XR}')
    e.i(f'v_lshlrev_b32 v12, 4, v{L}')
    for i in range(4):
        e.i(f'buffer_load_dwordx4 v[{HR+4*i}:{HR+4*i+3}], v12, s[{sWS}:{sWS+3}], s35 offen offset:{1024*i} sc1')
    e.i(f'v_add_u32 v12, 1, v{vN}')
    e.i(f'v_lshrrev_b32 v12, 1, v12')
    e.i(f'v_lshlrev_b32 v12, 2, v12')
    e.i(f'v_lshl_add_u32 v12, v{vG}, 4, v12')
    e.i(f'v_and_b32 v14, 1, v{vN}')
    e.i(f'v_xor_b32 v14, 1, v14')
    e.i(f'v_mul_u32_u24 v14, {OFF_O}, v14')
    e.i(f'v_add3_u32 v12, v12, v14, s{sBASE}')
    for k in range(4):
        e.i(f'v_add_u32 v{vAa[k]}, {1024*k}, v12')
    e.i(f'v_lshlrev_b32 v12, 5, v{vN}')
    e.i(f'v_lshlrev_b32 v14, 4, v{vG}')
    e.i(f'v_sub_u32 v14, v14, v12')
    e.i(f's_add_u32 s37, s{sBASE}, {OFF_X + 480}')
    e.i(f'v_add_u32 v{vBa}, s37, v14')
    e.i(f'v_lshlrev_b32 v14, 3, v{vG}')
    e.i(f'v_add_u32 v14, v14, v12')
    e.i(f's_add_u32 s37, s{sBASE}, {OFF_X + 504}')
    e.i(f'v_sub_u32 v{vXa}, s37, v14')
    e.i(f'v_mov_b32 v{vYo}, v14')
    e.i('s_waitcnt vmcnt(0)')
    for i in range(4):
        e.i(f'ds_write_b128 v13, v[{HR+4*i}:{HR+4*i+3}] offset:{OFF_X + 1024*i}')
    e.i('s_waitcnt lgkmcnt(0)')
    stamp('x loaded')
    ACC = 16
    AB = [48, 80]
    BB = [112, 144]
    for r in range(ACC, ACC+32): e.i(f'v_mov_b32 v{r}, 0')
    def reads(rho):
        st = rho & 1
        for ee in range(8):
            a = vAa[ee >> 1]; o = 16*rho + 128*(ee & 1)
            r = AB[st] + 4*ee
            e.lds(f'ds_read2_b32 v[{r}:{r+1}], v{a} offset0:{o} offset1:{o+1}', ('a', rho, ee, 0))
            e.lds(f'ds_read2_b32 v[{r+2}:{r+3}], v{a} offset0:{o+2} offset1:{o+3}', ('a', rho, ee, 1))
        for u in range(8):
            r = BB[st] + 4*u
            kap = 8*u - rho
            e.lds(f'ds_read_b128 v[{r}:{r+3}], v{vBa} offset:{3584 - 64*kap}', ('b', rho, u))
    def read_list(rho):
        st = rho & 1
        out = []
        for k in range(8):
            a = vAa[k >> 1]; o = 16*rho + 128*(k & 1)
            r = AB[st] + 4*k
            rb = BB[st] + 4*k
            kap = 8*k - rho
            out.append((f'ds_read_b128 v[{rb}:{rb+3}], v{vBa} offset:{3584 - 64*kap}', ('b', rho, k)))
            out.append((f'ds_read2_b32 v[{r}:{r+1}], v{a} offset0:{o} offset1:{o+1}', ('a', rho, k, 0)))
            out.append((f'ds_read2_b32 v[{r+2}:{r+3}], v{a} offset0:{o+2} offset1:{o+3}', ('a', rho, k, 1)))
        return out
    assert 16*7 + 128 + 3 <= 255
    e.lq = [];
    for (t, tag) in read_list(0): e.lds(t, tag)
    for rho in range(8):
        st = rho & 1
        nxt = read_list(rho + 1) if rho < 7 else []
        cnt = 0
        for ee in range(8):
            for u in range(8 - ee):
                tau = ee + u
                e.wait_lds(('a', rho, ee, 1)); e.wait_lds(('b', rho, u))
                a = AB[st] + 4*ee; b = BB[st] + 4*u; acc = ACC + 4*tau
                e.mfma(f'v_mfma_f32_16x16x32_bf16 v[{acc}:{acc+3}], v[{a}:{a+3}], v[{b}:{b+3}], v[{acc}:{acc+3}]',
                       list(range(acc, acc+4)), [])
                cnt += 1
                if nxt and cnt >= 6:
                    t, tag = nxt.pop(0); e.lds(t, tag)
        assert not nxt
    for tau in range(8):
        e.lds(f'ds_read_b64 v[{48+2*tau}:{49+2*tau}], v{vXa} offset:{3584 - 512*tau}', ('xv', tau))
    e.i(f's_lshl_b32 s35, s{sCH}, 12')
    e.i(f's_add_u32 s35, s35, {WS_Y2}')
    e.nop(8)
    for tau in range(8):
        e.wait_lds(('xv', tau))
        x0 = 48 + 2*tau; acc = ACC + 4*tau
        e.valu(f'v_and_b32 v64, 0xffff0000, v{x0+1}', dst=[64])
        e.valu(f'v_lshlrev_b32 v65, 16, v{x0+1}', dst=[65])
        e.valu(f'v_and_b32 v66, 0xffff0000, v{x0}', dst=[66])
        e.valu(f'v_lshlrev_b32 v67, 16, v{x0}', dst=[67])
        for r in range(4):
            e.valu(f'v_fma_f32 v{64+r}, v{64+r}, s{sDV}, v{acc+r}', dst=[64+r], src=[acc+r])
        pk = 68 + 2*(tau & 1)
        e.valu(f'v_cvt_pk_bf16_f32 v{pk}, v64, v65', dst=[pk])
        e.valu(f'v_cvt_pk_bf16_f32 v{pk+1}, v66, v67', dst=[pk+1])
        e.i(f'buffer_store_dwordx2 v[{pk}:{pk+1}], v{vYo}, s[{sWS}:{sWS+3}], s35 offen offset:{512*tau}')
    stamp('chan done')
    e.i(f's_cmp_eq_u32 s{sPASS}, 0')
    e.i('s_cbranch_scc0 Lssm_end')
    e.i(f's_cmp_eq_u32 s{sWV}, 0')
    e.i('s_cbranch_scc0 Lssm_end')
    e.i(f's_mov_b32 s{sPASS}, 1')
    e.i(f's_add_u32 s{sCH}, s{sCH}, 8')
    e.i('s_branch Lssm_chan')
    e.label('Lssm_end')
    e.i('s_waitcnt vmcnt(0)')
    stamp('end')
    if cfg.prof:
        e.i('s_memrealtime s[100:101]')
        e.i('s_waitcnt lgkmcnt(0)')
        e.i(f's_cmp_eq_u32 s{sWV}, 1')
        e.i('s_cbranch_scc0 Lssm_noprof')
        e.i(f's_lshl_b32 s42, s2, 7')
        e.i(f's_add_u32 s42, s42, {WS_PROF}')
        e.i(f'v_mov_b32 v14, 0')
        for k in range(nprof[0]):
            e.i(f'v_mov_b32 v13, s{sPROF+2*k}')
            e.i(f'buffer_store_dword v13, v14, s[{sWS}:{sWS+3}], s42 offen offset:{4*k}')
        e.i(f'v_mov_b32 v13, s98')
        e.i(f'buffer_store_dword v13, v14, s[{sWS}:{sWS+3}], s42 offen offset:{4*30}')
        e.i(f'v_mov_b32 v13, s100')
        e.i(f'buffer_store_dword v13, v14, s[{sWS}:{sWS+3}], s42 offen offset:{4*31}')
        e.i('s_waitcnt vmcnt(0)')
        e.label('Lssm_noprof')
    e.i('s_endpgm')
```

```python
import sys, os
from emit import Emit
from common import *
from ffn import gen_ffn
from ssm import gen_ssm
from fin import gen_final_kernel

class Cfg:
    prof = False
    stflag = 'sc1'
    nostore = False
    prio = False
    looptest = False
    prefetch = False
    prostamps = False
    nodma = False
    nogelu = False
    nobar = False
    dmaspread = False
    dmabeats = (1, 5, 9)
    stamps = (1, 2, 3, 6, 9, 12, 15, 18, 20, 22, 25, 28, 31)
    prestamps = ()

def kernel_header(e, name):
    e.raw('.p2align 8')
    e.raw(f'.globl {name}')
    e.raw(f'.type {name},@function')
    e.raw(f'{name}:')

def kernel_desc(name, vgpr=256, sgpr=102):
    return f'''.amdhsa_kernel {name}
  .amdhsa_next_free_vgpr {vgpr}
  .amdhsa_next_free_sgpr {sgpr}
  .amdhsa_accum_offset {((vgpr+3)//4)*4}
  .amdhsa_group_segment_fixed_size 0
  .amdhsa_kernarg_size 120
  .amdhsa_user_sgpr_count 2
  .amdhsa_user_sgpr_kernarg_segment_ptr 1
  .amdhsa_system_sgpr_workgroup_id_x 1
.end_amdhsa_kernel
'''

def main():
    cfg = Cfg()
    cfg.prof = '--prof' in sys.argv
    for a in sys.argv:
        if a.startswith('--st='): cfg.stflag = a[5:].replace('+', ' ')
    cfg.nostore = '--nostore' in sys.argv
    cfg.prio = '--prio' in sys.argv
    cfg.looptest = '--looptest' in sys.argv
    cfg.prefetch = '--prefetch' in sys.argv
    cfg.prostamps = '--prostamps' in sys.argv
    cfg.nodma = '--nodma' in sys.argv
    cfg.nogelu = '--nogelu' in sys.argv
    cfg.nobar = '--nobar' in sys.argv
    cfg.dmaspread = '--dmaspread' in sys.argv
    for a in sys.argv:
        if a.startswith('--dmabeats='): cfg.dmabeats = tuple(int(x) for x in a[11:].split(','))
    for a in sys.argv:
        if a.startswith('--stamps='): cfg.stamps = tuple(int(x) for x in a[9:].split(',') if x)
        if a.startswith('--prestamps='): cfg.prestamps = tuple(int(x) for x in a[12:].split(',') if x)
    e = Emit()
    k1 = NAME + '_kernel'
    here = os.path.dirname(os.path.abspath(__file__))
    hdr = open(here + '/header.txt').read()
    out = [hdr.rstrip('\n')]
    out.append(f'; @launch kernel={k1} grid=(256,1,1) block=(512,1,1) lds={LDS_BYTES}')
    k2 = 'final_kernel'
    out.append(f'; @launch kernel={k2} grid=(288,1,1) block=(256,1,1) lds=8192')
    out.append('.amdgcn_target "amdgcn-amd-amdhsa--gfx950"')
    out.append('.text')
    kernel_header(e, k1)
    e.i('s_cmp_ge_u32 s2, 256') ; e.i('s_cbranch_scc1 Lk1_exit')
    e.i('s_cmp_ge_u32 s2, 192') ; e.i('s_cbranch_scc1 Lk1_ssm')
    e.i('s_branch Lk1_ffn')
    e.label('Lk1_exit')
    e.i('s_endpgm')
    e.label('Lk1_ssm')
    es = Emit(); gen_ssm(es, cfg); e.raw(es.text())
    e.label('Lk1_ffn')
    ef = Emit(); gen_ffn(ef, cfg); e.raw(ef.text())
    e2 = Emit()
    kernel_header(e2, k2)
    gen_final_kernel(e2, cfg)
    out.append(e.text())
    out.append(e2.text())
    out.append('.section .rodata,"a"\n.p2align 6')
    out.append(kernel_desc(k1))
    out.append('.p2align 6')
    out.append(kernel_desc(k2, vgpr=180, sgpr=40))
    print('\n'.join(out))

if __name__ == '__main__':
    main()
```

```python
import struct
NAME = 'gated_mix__ssm_conv_h3__dense_activation_gelu__prompt'
S, D, F = 2048, 576, 4608
NCH = 12
FC = F // NCH
KA = dict(q=0, k=8, v=16, shift_k=24, ssm_k=32, ssm_D=40, x=48, w1=56, b1=64, w2=72, b2=80, gate_w=88, out=96, dbg=104, ws=112)
WS_PART = 0
PART_BYTES = 16*4*18*NCH*2048
WS_XR = PART_BYTES
WS_Y2 = WS_XR + D*S*2
WS_G = WS_Y2 + D*S*2
WS_FLAG = WS_G + S*4
WS_PROF = WS_FLAG + 655360
WS_TOTAL = WS_PROF + 65536
SLOT = 24576
NSLOT = 6
LDS_BIAS = NSLOT*SLOT
LDS_BYTES = 163840
def f2u(x): return struct.unpack('<I', struct.pack('<f', x))[0]
GC0 = -2.0*0.7978845608028654*1.4426950408889634
GC1 = GC0*0.044715

DBG_CNT1 = 0
DBG_CNT2 = 64
DBG_NONCE = 128

WS_FLAG2 = WS_FLAG + 16*9*12*256
WS_FLAG3 = WS_FLAG2 + 288*256
assert WS_FLAG3 + 64*256 <= WS_PROF
```

```python
from common import *

def ring_plan():
    slot = {0: 2, 1: 3}
    issue = {s: [] for s in range(0, 36)}
    slot[2] = 2; issue[1].append(2)
    slot[3] = 4; slot[4] = 5
    slot[5] = 3; issue[2].append(5)
    free = []
    nxt = 6
    ex = []
    for s in range(3, 36):
        free.append(slot[s-1])
        if s == 3: free = [0, 1] + free
        if s in (15, 16):
            ex.append(free.pop()); assert not free
            continue
        if s == 21: free += ex
        while free and nxt < 36:
            slot[nxt] = free.pop(0); issue[s].append(nxt); nxt += 1
    assert nxt == 36, nxt
    return slot, issue, ex

P2 = [(0,0),(1,0),(0,1),(1,1)] + [(dp, kb) for dp in range(2, 9) for kb in range(2)]

def gen_ffn(e, cfg):
    slot, issue, ex = ring_plan()
    vLANE = 1; vA0 = 2; vA1 = 3
    vPAT1 = 4; vPAT2 = 5
    vW1 = 6; vW2 = 7; vBIAS = 8; vC0 = 9
    vST = 10; vA2 = 11; vA3 = 12
    tmp = [13, 14, 15, 0]
    AF = 16
    ACC = [32, 48]
    HOWN = 64
    XF = 112
    HPART = 112
    PK = 160
    ACCP = [168, 184]
    vX0 = 32; vX1 = 33
    sW1 = 8; sW2 = 12; sX = 16; sWS = 20; sB1 = 24
    sWV = 28; sMI = 29; sP = 30; sC = 31; sT = 32
    sW1B = 33; sXB = 34; sM0B = 35; sOFF = 36; sGC1 = 37; sSTO = 38; sROT = 39
    sC1 = 44
    sR2 = 50
    sD2 = 56
    sNONCE = 66; sFLB = 67; sDB = 68
    vNON = 200; vZERO = 201
    sPROF = 72
    nprof = [0]
    def stamp(name):
        if cfg.prof and nprof[0] < 13:
            k = nprof[0]; nprof[0] += 1
            e.i(f's_memtime s[{sPROF+2*k}:{sPROF+2*k+1}]')
    if cfg.prof: e.i('s_memrealtime s[98:99]')
    stamp('start')
    e.i('s_and_b32 s40, s2, 7')
    e.i('s_lshr_b32 s41, s2, 3')
    e.i('s_lshr_b32 s42, s40, 1')
    e.i('s_mul_i32 s42, s42, 3')
    e.i('s_lshr_b32 s43, s41, 3')
    e.i(f's_add_u32 s{sC}, s42, s43')
    e.i('s_and_b32 s42, s40, 1')
    e.i('s_lshl_b32 s42, s42, 3')
    e.i('s_and_b32 s43, s41, 7')
    e.i(f's_add_u32 s{sT}, s42, s43')
    e.i(f's_load_dwordx2 s[{sX}:{sX+1}], s[0:1], {KA["q"]}')
    e.i(f's_load_dwordx2 s[{sW1}:{sW1+1}], s[0:1], {KA["w1"]}')
    e.i(f's_load_dwordx2 s[{sB1}:{sB1+1}], s[0:1], {KA["b1"]}')
    e.i(f's_load_dwordx2 s[{sW2}:{sW2+1}], s[0:1], {KA["w2"]}')
    e.i(f's_load_dwordx2 s[{sWS}:{sWS+1}], s[0:1], {KA["ws"]}')
    e.i(f's_load_dwordx2 s[{sDB}:{sDB+1}], s[0:1], {KA["dbg"]}')
    L = vLANE
    e.i(f'v_and_b32 v{L}, 63, v0')
    e.i('v_lshrrev_b32 v13, 6, v0')
    e.i('s_nop 0')
    e.i(f'v_readfirstlane_b32 s{sWV}, v13')
    for s_, nb in ((sW1, D*F*2), (sW2, F*D*2), (sX, S*D*2), (sWS, WS_TOTAL), (sB1, F*2), (sDB, 256)):
        e.i(f's_mov_b32 s{s_+2}, {nb}')
        e.i(f's_mov_b32 s{s_+3}, 0x00020000')
    e.i(f's_mov_b32 s{sGC1}, {hex(f2u(GC1))}')
    e.i(f'v_mov_b32 v{vC0}, {hex(f2u(GC0))}')
    e.i(f's_and_b32 s{sMI}, s{sWV}, 3')
    e.i(f's_lshr_b32 s{sP}, s{sWV}, 2')
    e.i(f'v_lshrrev_b32 v13, 3, v{L}')
    e.i(f'v_lshrrev_b32 v14, 4, v{L}')
    e.i(f'v_and_b32 v15, 7, v{L}')
    e.i(f'v_xor_b32 v16, v15, v14')
    e.i(f'v_mul_u32_u24 v17, 1152, v13')
    e.i(f'v_lshl_add_u32 v{vX0}, v16, 4, v17')
    e.i(f'v_xor_b32 v16, 4, v16')
    e.i(f'v_lshl_add_u32 v{vX1}, v16, 4, v17')
    e.i(f'v_add_u32 v{vX1}, {8*1152}, v{vX1}')
    e.i(f's_lshl_b32 s41, s{sT}, 7')
    e.i(f's_lshl_b32 s42, s{sWV}, 4')
    e.i(f's_add_u32 s41, s41, s42')
    e.i(f's_mul_i32 s{sXB}, s41, 1152')
    e.i(f's_lshl_b32 s{sM0B}, s{sWV}, 11')
    e.i(f'v_and_b32 v14, 1, v14')
    e.i(f'v_lshlrev_b32 v14, 2, v14')
    e.i(f'v_xor_b32 v15, v15, v14')
    e.i(f'v_lshlrev_b32 v15, 4, v15')
    e.i(f'v_mul_u32_u24 v14, 9216, v13')
    e.i(f'v_add_u32 v{vW1}, v14, v15')
    e.i(f'v_add_u32 v{vW2}, v17, v15')
    e.i(f's_and_b32 s43, s{sT}, 7')
    e.i(f's_sub_u32 s42, s43, 6')
    e.i(f's_min_u32 s{sROT}, s43, s42')
    e.i(f's_mul_i32 s40, s{sC}, {FC}')
    e.i(f's_lshl_b32 s41, s40, 1')
    e.i(f's_mul_i32 s42, s{sWV}, {24*9216}')
    e.i(f's_add_u32 s{sW1B}, s41, s42')
    for fp in range(6):
        e.i(f's_add_u32 s42, s{sROT}, {fp}')
        e.i(f's_sub_u32 s41, s42, 6')
        e.i(f's_min_u32 s42, s42, s41')
        e.i(f's_lshl_b32 s42, s42, 7')
        e.i(f's_add_u32 s{sC1+fp}, s{sW1B}, s42')
    e.i('s_waitcnt lgkmcnt(0)')
    if cfg.prostamps: stamp('kernarg')
    for s_ in (sW1, sW2, sX, sWS, sB1, sDB):
        e.i(f's_and_b32 s{s_+1}, s{s_+1}, 0xffff')
    def xdma(blk, base):
        for a, vx in ((0, vX0), (1, vX1)):
            e.i(f's_add_u32 m0, s{sM0B}, {base + a*1024}')
            e.i(f's_add_u32 s{sOFF}, s{sXB}, {blk*128}')
            e.vm(f'buffer_load_dwordx4 v{vx}, s[{sX}:{sX+3}], s{sOFF} offen lds', ('xd', blk, a))
    def dma_one(it, i):
        if cfg.nodma and it >= 6:
            e.vq.append(('dma', it, i)); e.vm_done.add(('dma', it, i)); e.vq.pop(); return
        sl = slot[it]
        e.i(f's_add_u32 m0, s{sM0C}, {sl*SLOT + i*1024}')
        if it < 18:
            fp, kb = it // 3, it % 3
            e.i(f's_add_u32 s{sOFF}, s{sC1+fp}, {(192*kb + 8*i)*9216}')
            e.vm(f'buffer_load_dwordx4 v{vW1}, s[{sW1}:{sW1+3}], s{sOFF} offen lds', ('dma', it, i))
        else:
            dp, kb = P2[it-18]
            e.i(f's_add_u32 s{sOFF}, s{sR2+3*kb+i}, s{sD2+dp}')
            e.vm(f'buffer_load_dwordx4 v{vW2}, s[{sW2}:{sW2+3}], s{sOFF} offen lds', ('dma', it, i))
    sM0C = 65
    e.i(f's_mul_i32 s{sM0C}, s{sWV}, 3072')
    def dma_item(it):
        for i in range(3): dma_one(it, i)
    for b in range(3): xdma(b, b*16384)
    e.i(f'v_lshrrev_b32 v13, 5, v{L}')
    e.i(f's_lshl_b32 s42, s{sWV}, 1')
    e.i(f's_add_u32 s42, s42, s{sROT}')
    e.i(f'v_add_u32 v13, s42, v13')
    e.i(f'v_subrev_u32 v14, 6, v13')
    e.i(f'v_min_u32 v13, v13, v14')
    e.i(f'v_lshlrev_b32 v13, 7, v13')
    e.i(f'v_and_b32 v14, 31, v{L}')
    e.i(f'v_lshl_add_u32 v13, v14, 2, v13')
    e.i(f's_lshl_b32 s44, s40, 1') if False else None
    e.i(f's_lshl_b32 s41, s40, 1')
    e.i(f's_cmp_lt_u32 s{sWV}, 3')
    e.i(f's_cbranch_scc0 Lffn_nobias_ld')
    e.i(f'buffer_load_dword v34, v13, s[{sB1}:{sB1+3}], s41 offen')
    e.label('Lffn_nobias_ld')
    dma_item(0); dma_item(1)
    for b in range(3, 6): xdma(b, 4*SLOT + (b-3)*16384)
    if cfg.prostamps: stamp('issued')
    for i in range(3):
        e.i(f's_mul_i32 s41, s{sWV}, 24')
        e.i(f's_add_u32 s41, s41, {8*i}')
        e.i(f's_lshr_b32 s42, s41, 6')
        e.i(f's_and_b32 s41, s41, 63')
        e.i(f's_add_u32 s41, s41, s40')
        e.i(f's_add_u32 s42, s42, s{sROT}')
        for kb in range(2):
            e.i(f's_add_u32 s{sOFF}, s42, {3*kb}')
            e.i(f's_sub_u32 s{sSTO}, s{sOFF}, 6')
            e.i(f's_min_u32 s{sOFF}, s{sOFF}, s{sSTO}')
            e.i(f's_lshl_b32 s{sOFF}, s{sOFF}, 6')
            e.i(f's_add_u32 s{sOFF}, s{sOFF}, s41')
            e.i(f's_mul_i32 s{sR2+3*kb+i}, s{sOFF}, 1152')
    for dp in range(9):
        e.i(f's_add_u32 s42, s43, {dp}')
        e.i(f's_sub_u32 s41, s42, 9')
        e.i(f's_min_u32 s42, s42, s41')
        e.i(f's_lshl_b32 s{sD2+dp}, s42, 7')
    e.i(f's_lshl_b32 s42, s{sT}, 2')
    e.i(f's_add_u32 s42, s42, s{sMI}')
    e.i(f's_mul_i32 s42, s42, 18')
    e.i(f's_add_u32 s42, s42, s{sP}')
    e.i(f's_mul_i32 s42, s42, {NCH}')
    e.i(f's_add_u32 s42, s42, s{sC}')
    e.i(f's_lshl_b32 s{sSTO}, s42, 11')
    e.i(f's_add_u32 s{sSTO}, s{sSTO}, {WS_PART}')
    e.i(f's_mul_i32 s42, s{sT}, {9*12}')
    e.i(f's_add_u32 s42, s42, s{sC}')
    e.i(f's_lshl_b32 s42, s42, 8')
    e.i(f's_add_u32 s42, s42, {WS_FLAG}')
    e.i(f's_cmp_eq_u32 s{sWV}, 0')
    e.i(f's_cselect_b32 s{sFLB}, s42, 0x70000000')
    e.i(f'v_lshrrev_b32 v15, 5, v{L}')
    e.i(f's_lshl_b32 s42, s{sP}, 7')
    e.i(f's_add_u32 s42, s42, {LDS_BIAS}')
    e.i(f'v_lshl_add_u32 v{vBIAS}, v15, 4, s42')
    e.i(f'v_and_b32 v13, 15, v{L}')
    e.i(f'v_lshrrev_b32 v14, 2, v13')
    e.i(f'v_lshrrev_b32 v0, 3, v13')
    e.i(f'v_xor_b32 v0, s{sP}, v0')
    e.i(f'v_lshlrev_b32 v0, 6, v0')
    e.i(f'v_lshrrev_b32 v{vA0}, 4, v{L}')
    e.i(f'v_and_b32 v{vA0}, 1, v{vA0}')
    e.i(f'v_lshl_add_u32 v0, v{vA0}, 5, v0')
    e.i(f'v_and_b32 v{vA0}, 3, v13')
    e.i(f'v_lshl_add_u32 v0, v{vA0}, 3, v0')
    e.i(f'v_lshl_add_u32 v{vA0}, v15, 3, v14')
    e.i(f'v_lshl_add_u32 v{vPAT1}, v{vA0}, 7, v0')
    e.i(f'v_lshl_add_u32 v{vA0}, v15, 2, v14')
    e.i(f'v_lshl_add_u32 v{vPAT2}, v{vA0}, 7, v0')
    e.i(f'v_and_b32 v13, 31, v{L}')
    e.i(f'v_lshrrev_b32 v14, 1, v13')
    e.i(f'v_and_b32 v14, 7, v14')
    e.i(f'v_xor_b32 v14, v14, v15')
    e.i(f'v_lshlrev_b32 v14, 4, v14')
    e.i(f's_lshl_b32 s42, s{sMI}, 12')
    e.i(f'v_lshl_add_u32 v13, v13, 7, v14')
    e.i(f'v_add_u32 v{vST}, s42, v13')
    def xaddr(region):
        for tl in range(4):
            e.valu(f'v_xor_b32 v{tmp[tl]}, {32*tl}, v{vST}', dst=[tmp[tl]])
            if region:
                e.valu(f'v_add_u32 v{tmp[tl]}, {region}, v{tmp[tl]}', dst=[tmp[tl]])
    def xread(t):
        g = t // 12; tt = t % 12
        e.lds(f'ds_read_b128 v[{XF+4*t}:{XF+4*t+3}], v{tmp[tt & 3]} offset:{(tt >> 2)*16384}', ('x', t))
    if cfg.prostamps: stamp('setup done')
    if cfg.prostamps:
        e.wait_vm(('xd', 0, 0)); stamp('first landed')
    e.wait_vm(('xd', 2, 1))
    if cfg.prostamps: stamp('XA landed')
    e.i('s_barrier')
    stamp('Ba')
    xaddr(0)
    for t in range(12): xread(t)
    e.wait_vm(('dma', 0, 0))
    e.i(f's_cmp_lt_u32 s{sWV}, 3')
    e.i(f's_cbranch_scc0 Lffn_nobias_st')
    e.i('v_lshlrev_b32 v36, 16, v34')
    e.i('v_and_b32 v37, 0xffff0000, v34')
    e.i(f'v_lshlrev_b32 v35, 3, v{L}')
    e.i(f's_lshl_b32 s42, s{sWV}, 9')
    e.i(f's_add_u32 s42, s42, {LDS_BIAS}')
    e.i(f'v_add_u32 v35, s42, v35')
    e.i('ds_write_b64 v35, v[36:37]')
    e.label('Lffn_nobias_st')
    e.i('s_waitcnt lgkmcnt(0)')
    e.lq = []; e.lds_done.update(('x', t) for t in range(12))
    e.wait_vm(('dma', 1, 2))
    e.i('s_barrier')
    stamp('Bb')
    for b in range(6, 9): xdma(b, (b-6)*16384)

    beats = [(s, b) for s in range(36) for b in range(12)]
    PD = 3
    NOPREF = {2, 3}
    def addr_reg(s, partner=False):
        if s < 18: return (vA0, vA1)[s & 1]
        return ((vA2, vA3) if partner else (vA0, vA1))[s & 1]
    addr_set = set()
    def ensure_addr(s):
        if s in addr_set or s >= 36: return
        addr_set.add(s)
        base = slot[s]*SLOT
        e.valu(f'v_add_u32 v{addr_reg(s)}, {base}, v{vPAT1}', dst=[addr_reg(s)])
        if s >= 18:
            e.valu(f'v_add_u32 v{addr_reg(s, True)}, {base}, v{vPAT2}', dst=[addr_reg(s, True)])
    def p2_beat(b):
        return b >= 6, (b % 6) // 2, b % 2
    issued = set()
    def issue_reads(gb):
        if gb >= len(beats) or gb in issued: return
        issued.add(gb)
        s, b = beats[gb]
        fr = AF + 4*(gb % 4)
        if s < 18:
            a = addr_reg(s); o1 = b*2048; o2 = o1 + 512
        else:
            partner, u, tp = p2_beat(b)
            a = addr_reg(s, partner); o1 = u*8192 + tp*2048; o2 = o1 + 1024
        e.lds(f'ds_read_b64_tr_b16 v[{fr}:{fr+1}], v{a} offset:{o1}', ('af', gb, 0))
        e.lds(f'ds_read_b64_tr_b16 v[{fr+2}:{fr+3}], v{a} offset:{o2}', ('af', gb, 1))
    def bias_read(tile, j):
        acc = ACC[tile & 1]
        e.lds(f'ds_read_b128 v[{acc+4*j}:{acc+4*j+3}], v{vBIAS} offset:{256*tile + 32*j}', ('bias', tile, j))
    def gelu_ops(tile):
        acc = ACC[tile & 1]
        ops = []
        for pr in range(8):
            a = acc + 2*pr; b = a + 1
            t0, t1 = (tmp[0], tmp[1]) if pr % 2 == 0 else (tmp[2], tmp[3])
            h = HOWN + 8*tile + pr
            seq = [
                (f'v_mul_f32_e32 v{t0}, v{a}, v{a}', [t0], [a], False),
                (f'v_mul_f32_e32 v{t1}, v{b}, v{b}', [t1], [b], False),
                (f'v_fma_f32 v{t0}, v{t0}, s{sGC1}, v{vC0}', [t0], [t0], False),
                (f'v_fma_f32 v{t1}, v{t1}, s{sGC1}, v{vC0}', [t1], [t1], False),
                (f'v_mul_f32_e32 v{t0}, v{t0}, v{a}', [t0], [t0, a], False),
                (f'v_mul_f32_e32 v{t1}, v{t1}, v{b}', [t1], [t1, b], False),
                (f'v_exp_f32_e32 v{t0}, v{t0}', [t0], [t0], True),
                (f'v_exp_f32_e32 v{t1}, v{t1}', [t1], [t1], True),
                (f'v_add_f32_e32 v{t0}, 1.0, v{t0}', [t0], [t0], False),
                (f'v_add_f32_e32 v{t1}, 1.0, v{t1}', [t1], [t1], False),
                (f'v_rcp_f32_e32 v{t0}, v{t0}', [t0], [t0], True),
                (f'v_rcp_f32_e32 v{t1}, v{t1}', [t1], [t1], True),
                (f'v_mul_f32_e32 v{t0}, v{t0}, v{a}', [t0], [t0, a], False),
                (f'v_mul_f32_e32 v{t1}, v{t1}, v{b}', [t1], [t1, b], False),
                (f'v_cvt_pk_bf16_f32 v{h}, v{t0}, v{t1}', [h], [t0, t1], False),
            ]
            for (txt, d, s_, tr) in (seq if not cfg.nogelu else seq[-1:]):
                ops.append(lambda txt=txt, d=d, s_=s_, tr=tr: e.valu(txt, dst=d, src=s_, trans=tr))
            if pr % 2 == 1 and tile + 2 < 6:
                ops.append(lambda j=pr // 2: bias_read(tile + 2, j))
        return ops
    def store_ops(dp):
        acc = ACCP[dp & 1]
        ops = []
        for half in range(2):
            for k in range(4):
                r = acc + 8*half + 2*k
                d = PK + 4*half + k
                ops.append(lambda r=r, d=d: e.valu(f'v_cvt_pk_bf16_f32 v{d}, v{r}, v{r+1}', dst=[d], src=[r, r+1]))
            def st(half=half):
                if half == 0:
                    e.i(f's_mul_i32 s{sOFF}, s{sD2+dp}, {2*NCH*2048//128}')
                    e.i(f's_add_u32 s{sOFF}, s{sOFF}, s{sSTO}')
                else:
                    e.i(f's_mul_i32 s{sOFF}, s{sD2+dp}, {2*NCH*2048//128}')
                    e.i(f's_add_u32 s{sOFF}, s{sOFF}, s{sSTO}')
                if not cfg.nostore:
                    e.vm(f'buffer_store_dwordx4 v[{PK+4*half}:{PK+4*half+3}], v{vST}, s[{sWS}:{sWS+3}], s{sOFF} offen offset:{1024*half} {cfg.stflag}', ('st', dp, half))
            ops.append(st)
        return ops
    flags_sent = set()
    st_waited = set()
    def send_flag(dp):
        if dp in flags_sent: return
        assert dp in st_waited, dp
        flags_sent.add(dp)
        e.i(f's_mul_i32 s{sOFF}, s{sD2+dp}, 24')
        e.i(f's_add_u32 s{sOFF}, s{sOFF}, s{sFLB}')
        e.vm(f'buffer_store_dword v{vNON}, v{vZERO}, s[{sWS}:{sWS+3}], s{sOFF} offen sc1', ('flag', dp))
    for j in range(4): bias_read(0, j)
    for j in range(4): bias_read(1, j)
    ensure_addr(0)
    e.nop(1)
    for gb in range(PD): issue_reads(gb)
    fill = []
    dma_list = []
    dp_done = {}
    for idx, (dp, kb) in enumerate(P2):
        if kb == 1: dp_done[18 + idx + 1] = dp
    flag_at = {}
    for st_s, dp_ in dp_done.items():
        fs = st_s + cfg.flaglag
        if fs > 35: fs = 35 if st_s + 2 <= 35 else None
        if fs is not None: flag_at.setdefault(fs, []).append(dp_)
    for gb, (s, b) in enumerate(beats):
        if b == 0:
            e.comment(f'---- stage {s} (slot {slot[s]}) ----')
            if s in cfg.stamps: stamp('stage')
            dma_list = [(it, i) for it in issue[s] for i in range(3)]
            if s in NOPREF:
                ensure_addr(s)
                for k in range(PD): issue_reads(gb + k)
            ensure_addr(s + 1)
            if s == 1:
                xaddr(4*SLOT)
                for t in range(12, 24): xread(t)
            if s == 2:
                xaddr(0)
                for t in range(24, 36): xread(t)
            if s < 18 and s % 3 == 0 and s >= 3:
                fill = gelu_ops(s // 3 - 1); nfill = len(fill); fill_span = (2, 34); fill_base = gb
            if s == 18:
                fill = gelu_ops(5); nfill = len(fill); fill_span = (2, 21); fill_base = gb
            if s in dp_done:
                assert not fill
                fill = store_ops(dp_done[s]); nfill = len(fill); fill_span = (3, 10); fill_base = gb
            if s == 16:
                e.valu(f'v_lshlrev_b32 v{vST}, 4, v{vLANE}', dst=[vST])
                e.i(f's_mul_i32 s42, s{sMI}, 6144')
                e.i(f's_mul_i32 s43, s{sP}, {(ex[1]-ex[0])*SLOT}')
                e.i(f's_add_u32 s41, s43, {ex[0]*SLOT}')
                e.i(f's_sub_u32 s43, {ex[1]*SLOT}, s43')
                e.i(f's_add_u32 s41, s41, s42')
                e.i(f's_add_u32 s43, s43, s42')
                e.valu(f'v_add_u32 v{vBIAS}, s41, v{vST}', dst=[vBIAS])
                e.valu(f'v_add_u32 v{vW1}, s43, v{vST}', dst=[vW1])
        if cfg.prio and b % 3 == 0:
            e.i(f's_setprio {3 - b // 3}')
        if cfg.looptest and b == 0 and s in (6, 9):
            if s == 6:
                e.i('s_mov_b32 s101, 0'); e.label('Lrep6')
            else:
                e.i('s_add_u32 s101, s101, 1'); e.i('s_cmp_lt_u32 s101, 2'); e.i('s_cbranch_scc1 Lrep6')
        e.wait_lds(('af', gb, 1))
        fr = AF + 4*(gb % 4)
        if s < 18:
            tile = s // 3; t = (s % 3)*12 + b
            if tile == 0: e.wait_lds(('x', t))
            acc = ACC[tile & 1]
            if t == 0:
                for j in range(4): e.wait_lds(('bias', tile, j))
            xb = XF + 4*t
            e.mfma(f'v_mfma_f32_32x32x16_bf16 v[{acc}:{acc+15}], v[{fr}:{fr+3}], v[{xb}:{xb+3}], v[{acc}:{acc+15}]',
                   list(range(acc, acc+16)), list(range(fr, fr+4)) + list(range(xb, xb+4)))
        else:
            dp, kb = P2[s-18]
            partner, u, tp = p2_beat(b)
            fp = 3*kb + u
            hb = (HPART if partner else HOWN) + 8*fp + 4*tp
            if partner and (s == 18 or s == 20):
                e.wait_lds(('exr', fp*2 + tp))
            acc = ACCP[dp & 1]
            c = '0' if (kb == 0 and b == 0) else f'v[{acc}:{acc+15}]'
            e.mfma(f'v_mfma_f32_32x32x16_bf16 v[{acc}:{acc+15}], v[{fr}:{fr+3}], v[{hb}:{hb+3}], {c}',
                   list(range(acc, acc+16)), list(range(fr, fr+4)) + list(range(hb, hb+4)))
        nb = gb + PD
        if nb < len(beats) and not (beats[nb][0] in NOPREF and beats[nb][0] != s):
            issue_reads(nb)
        if s == 1 and b == 3:
            e.wait_lds(('x', 23))
            e.i('s_barrier')
            dma_list += [(3, i) for i in range(3)] + [(4, i) for i in range(3)]
        if b == 0: ndma0 = len(dma_list); ndma_done = 0
        if s == 1 and b == 3: ndma0 = len(dma_list) ; ndma_done = 0; dma_b0 = 3
        elif b == 0: dma_b0 = 0
        if dma_list:
            if cfg.dmaspread:
                span = 10 - dma_b0
                tgt = ndma0 if b >= 10 else -(-ndma0 * (b - dma_b0) // span) if b > dma_b0 else 0
                if ndma0 <= 3:
                    pts = cfg.dmabeats
                    tgt = sum(1 for p_ in pts[:ndma0] if b >= p_)
                    if s < 3: tgt = ndma0 if b >= dma_b0 + 2 else min(ndma0, b - dma_b0 + 1)
                while ndma_done < tgt and dma_list:
                    dma_one(*dma_list.pop(0)); ndma_done += 1
            else:
                k = -(-len(dma_list) // max(1, 7 - b)) if b < 7 else len(dma_list)
                for _ in range(min(k, len(dma_list))):
                    dma_one(*dma_list.pop(0))
        if cfg.prefetch and s in (4, 5) and b == 8:
            k = s - 4
            e.i(f's_and_b32 s41, s{sT}, 7')
            e.i(f's_lshl_b32 s41, s41, 3')
            e.i(f's_add_u32 s41, s41, s{sWV}')
            e.i(f's_lshl_b32 s41, s41, 1')
            e.i(f's_add_u32 s41, s41, {k}')
            e.i(f's_lshl_b32 s41, s41, 12')
            e.i(f's_mul_i32 s42, s{sC}, {FC*1152}')
            e.i(f's_add_u32 s41, s41, s42')
            e.i(f's_min_u32 s41, s41, {F*D*2 - 4096}')
            e.valu(f'v_lshlrev_b32 v{vA3}, 6, v{vLANE}', dst=[vA3])
            e.vm(f'buffer_load_dword v{vA2}, v{vA3}, s[{sW2}:{sW2+3}], s41 offen', ('pf', k))
        if cfg.tlbwarm and s == cfg.tlbwarm and b == 8:
            e.valu(f'v_min_u32 v{vA3}, 9, v{vLANE}', dst=[vA3])
            e.valu(f'v_mul_u32_u24 v{vA3}, {2*NCH*2048}, v{vA3}', dst=[vA3])
            e.vm(f'buffer_load_dword v{vA2}, v{vA3}, s[{sWS}:{sWS+3}], s{sSTO} offen', ('tw', 0))
            e.valu(f'v_mov_b32 v{vA3}, 0', dst=[vA3])
            e.vm(f'buffer_load_dword v{vA2}, v{vA3}, s[{sWS}:{sWS+3}], s{sFLB} offen', ('tw', 1))
            e.valu(f'v_min_u32 v{vA3}, 6, v{vLANE}', dst=[vA3])
            e.valu(f'v_mul_u32_u24 v{vA3}, {64*1152}, v{vA3}', dst=[vA3])
            e.i(f's_mul_i32 s41, s{sC}, {FC*1152}')
            e.vm(f'buffer_load_dword v{vA2}, v{vA3}, s[{sW2}:{sW2+3}], s41 offen', ('tw', 2))
        if cfg.fuse and s == 17 and b == 1:
            e.valu(f'v_mov_b32 v{vZERO}, 0', dst=[vZERO])
            e.vm(f'buffer_load_dword v{vNON}, v{vZERO}, s[{sDB}:{sDB+3}], 0 offen offset:{DBG_NONCE} sc1', ('nonce',))
        if cfg.fuse and not cfg.nossm and s == 20 and b == 8:
            e.wait_vm(('nonce',))
            e.label('Lffn_npoll')
            e.i(f'v_readfirstlane_b32 s{sNONCE}, v{vNON}')
            e.i(f's_cmp_lg_u32 s{sNONCE}, 0')
            e.i('s_cbranch_scc1 Lffn_nok')
            e.i(f'buffer_load_dword v{vNON}, v{vZERO}, s[{sDB}:{sDB+3}], 0 offen offset:{DBG_NONCE} sc1')
            e.i('s_waitcnt vmcnt(0)')
            e.i('s_branch Lffn_npoll')
            e.label('Lffn_nok')
            e.valu(f'v_lshlrev_b32 v{vZERO}, 2, v{vLANE}', dst=[vZERO])
        if cfg.fuse and b == 1:
            for dp_ in flag_at.get(s, []): send_flag(dp_)
        if s == 16 and b % 2 == 0:
            k = b // 2
            r = HOWN + 4*k
            e.lds(f'ds_write_b128 v{vBIAS}, v[{r}:{r+3}] offset:{1024*k}', ('exw', k))
        if s == 17 and b < 6:
            r = HPART + 4*b
            e.lds(f'ds_read_b128 v[{r}:{r+3}], v{vW1} offset:{1024*b}', ('exr', b))
        if s == 19 and b in (0, 2, 4, 6):
            k = b // 2
            r = HOWN + 24 + 4*k
            e.lds(f'ds_write_b128 v{vBIAS}, v[{r}:{r+3}] offset:{1024*k}', ('exw', 6 + k))
        if s == 20 and b < 6:
            r = HPART + 24 + 4*b
            e.lds(f'ds_read_b128 v[{r}:{r+3}], v{vW1} offset:{1024*b}', ('exr', 6 + b))
        if fill:
            rel = gb - fill_base
            lo, hi = fill_span
            if rel >= lo:
                tgt = nfill if rel >= hi else (nfill * (rel - lo + 1)) // (hi - lo + 1)
                donec = nfill - len(fill)
                while donec < tgt:
                    fill.pop(0)(); donec += 1
        if s == 19 and b == 11:
            assert not fill
            for k in (4, 5):
                r = HOWN + 24 + 4*k
                e.lds(f'ds_write_b128 v{vBIAS}, v[{r}:{r+3}] offset:{1024*k}', ('exw', 6 + k))
        if s == 16 and b == 11:
            e.i(f's_lshl_b32 s42, s{sP}, 12')
            e.i(f's_xor_b32 s43, s42, 4096')
            e.valu(f'v_add_u32 v{vPAT1}, s42, v{vPAT2}', dst=[vPAT1])
            e.valu(f'v_add_u32 v{vPAT2}, s43, v{vPAT2}', dst=[vPAT2])
        if b == 11:
            assert not dma_list
            if s in cfg.prestamps: stamp('prewait')
            if s == 0:
                e.wait_vm(('xd', 5, 1))
            elif s == 1:
                e.wait_vm(('dma', 2, 2)); e.wait_vm(('xd', 8, 1))
            elif s + 2 < 36:
                e.wait_vm(('dma', s + 2, 2))
            if s in (16, 19):
                e.wait_lds(('exw', 5 if s == 16 else 11))
            if s == 17: e.wait_lds(('exr', 5))
            if s == 20: e.wait_lds(('exr', 11))
            if s == 2: e.wait_lds(('x', 35))
            if cfg.fuse:
                for dp_ in flag_at.get(s + 1, []):
                    if not cfg.nostore: e.wait_vm(('st', dp_, 1))
                    st_waited.add(dp_)
            if s in cfg.prestamps: stamp('postwait')
            if s < 35 and not (cfg.nobar and s >= 3):
                e.i('s_barrier')
    stamp('mainloop end')
    for op in store_ops(8): op()
    if cfg.fuse:
        e.wait_vm_all()
        e.i('s_barrier')
        for dp in range(9):
            st_waited.add(dp); send_flag(dp)
    e.wait_vm_all()
    stamp('end')
    if cfg.prof:
        e.i('s_memrealtime s[100:101]')
        e.i('s_waitcnt lgkmcnt(0)')
        e.i(f's_cmp_eq_u32 s{sWV}, 0')
        e.i('s_cbranch_scc0 Lffn_noprof')
        e.i(f's_lshl_b32 s42, s2, 7')
        e.i(f's_add_u32 s42, s42, {WS_PROF}')
        e.i(f'v_mov_b32 v14, 0')
        for k in range(nprof[0]):
            e.i(f'v_mov_b32 v13, s{sPROF+2*k}')
            e.i(f'buffer_store_dword v13, v14, s[{sWS}:{sWS+3}], s42 offen offset:{4*k}')
        e.i(f'v_mov_b32 v13, s98')
        e.i(f'buffer_store_dword v13, v14, s[{sWS}:{sWS+3}], s42 offen offset:{4*30}')
        e.i(f'v_mov_b32 v13, s100')
        e.i(f'buffer_store_dword v13, v14, s[{sWS}:{sWS+3}], s42 offen offset:{4*31}')
        e.i('s_waitcnt vmcnt(0)')
        e.label('Lffn_noprof')
    e.i('s_endpgm')
```

```python
from common import *

def gen_final_consts(e, base):
    e.i('v_and_b32 v2, 31, v1')
    e.i('v_lshrrev_b32 v3, 5, v1')
    e.i('v_lshlrev_b32 v3, 2, v3')
    e.i('v_sub_u32 v2, v2, v3')
    e.i('v_mov_b32 v4, 0x3f80')
    e.i('v_mov_b32 v5, 0x3f800000')
    for m in range(2):
        for k in range(4):
            r = base + 4*m + k
            j = 2*k
            t_lo = 16*m + 8*(j >> 2) + (j & 3)
            e.i(f'v_cmp_eq_u32 vcc, {t_lo}, v2')
            e.i('s_nop 1')
            e.i(f'v_cndmask_b32 v{r}, 0, v4, vcc')
            e.i(f'v_cmp_eq_u32 vcc, {t_lo+1}, v2')
            e.i('s_nop 1')
            e.i(f'v_cndmask_b32 v{r}, v{r}, v5, vcc')

def gen_pre_a_issue(e, R, first):
    sWS, sQ, sB2 = R['sWS'], R['sQ'], R['sB2']
    sT, sMI, sDT = R['sT'], R['sMI'], R['sDT']
    t0, t1, t2, t3 = R['tmp']
    ldf = R.get("ldflag", "")
    BR, QR, sPB, sOB = R['BR'], R['QR'], R['sPB'], R['sOB']
    L = 1
    e.i(f's_lshl_b32 s{t0}, s{sT}, 2')
    e.i(f's_add_u32 s{t0}, s{t0}, s{sMI}')
    if first:
        e.i(f'v_lshrrev_b32 v5, 5, v{L}')
        e.i(f'v_and_b32 v4, 31, v{L}')
        e.i(f'v_lshlrev_b32 v7, 2, v4')
        e.i(f's_lshl_b32 s{t1}, s{t0}, 7')
        e.i(f's_add_u32 s{t1}, s{t1}, {WS_G}')
        e.i(f'buffer_load_dword v152, v7, s[{sWS}:{sWS+3}], s{t1} offen {ldf}')
        e.i(f'v_mul_u32_u24 v6, 1152, v4')
        e.i(f'v_lshl_add_u32 v6, v5, 4, v6')
        e.i(f'v_lshlrev_b32 v7, 3, v5')
        e.i(f'v_lshlrev_b32 v2, 4, v{L}')
    e.i(f's_lshl_b32 s{t3}, s{sDT}, 6')
    for j in range(4):
        e.i(f'buffer_load_dwordx2 v[{BR+2*j}:{BR+2*j+1}], v7, s[{sB2}:{sB2+3}], s{t3} offen offset:{16*j}')
    e.i(f's_mul_i32 s{t2}, s{t0}, {32*1152}')
    e.i(f's_add_u32 s{sOB}, s{t2}, s{t3}')
    for jj in range(2):
        e.i(f'buffer_load_dwordx4 v[{QR+4*jj}:{QR+4*jj+3}], v6, s[{sQ}:{sQ+3}], s{sOB} offen offset:{32*jj}')
    e.i(f's_mul_i32 s{t1}, s{t0}, 18')
    e.i(f's_add_u32 s{t1}, s{t1}, s{sDT}')
    e.i(f's_mul_i32 s{t1}, s{t1}, {NCH*2048}')
    e.i(f's_add_u32 s{sPB}, s{t1}, {WS_PART}')

def gen_pre_a_comp(e, R, first):
    QR, QG = R['QR'], R['QG']
    for jj in range(2):
        e.i(f'v_permlane32_swap_b32 v{QR+4*jj}, v{QR+4*jj+2}')
        e.i(f'v_permlane32_swap_b32 v{QR+4*jj+1}, v{QR+4*jj+3}')
    if first: e.i(f'v_sub_f32 v24, 1.0, v152')
    for j in range(4):
        for k in range(2):
            q = QR + 2*j + k
            e.i(f'v_lshlrev_b32 v{QG+4*j+2*k}, 16, v{q}')
            e.i(f'v_and_b32 v{QG+4*j+2*k+1}, 0xffff0000, v{q}')
    for r in range(16):
        e.i(f'v_mul_f32 v{QG+r}, v{QG+r}, v152')

def gen_pre_c_issue(e, R, first):
    sWS = R['sWS']; sT, sMI, sDT = R['sT'], R['sMI'], R['sDT']
    t0, t1, t2, t3 = R['tmp']; ldf = R.get("ldflag", ""); YS = R['YS']
    L = 1
    if first:
        e.i(f'v_lshrrev_b32 v3, 2, v{L}')
        e.i(f'v_lshlrev_b32 v3, 12, v3')
        e.i(f'v_and_b32 v4, 3, v{L}')
        e.i(f'v_lshl_add_u32 v3, v4, 4, v3')
    e.i(f's_lshl_b32 s{t0}, s{sT}, 2')
    e.i(f's_add_u32 s{t0}, s{t0}, s{sMI}')
    e.i(f's_lshl_b32 s{t2}, s{sDT}, 17')
    e.i(f's_lshl_b32 s{t3}, s{t0}, 6')
    e.i(f's_add_u32 s{t2}, s{t2}, s{t3}')
    e.i(f's_add_u32 s{t2}, s{t2}, {WS_Y2}')
    e.i(f'buffer_load_dwordx4 v[{YS}:{YS+3}], v3, s[{sWS}:{sWS+3}], s{t2} offen {ldf}')
    e.i(f's_add_u32 s{t2}, s{t2}, {16*4096}')
    e.i(f'buffer_load_dwordx4 v[{YS+4}:{YS+7}], v3, s[{sWS}:{sWS+3}], s{t2} offen {ldf}')

def gen_pre_c_lds(e, R, first):
    sLDS = R['sLDS']; YS = R['YS']; k = R['k']
    L = 1
    if first:
        e.i(f'v_lshrrev_b32 v5, 5, v{L}')
        e.i(f'v_and_b32 v8, 15, v{L}')
        e.i(f'v_lshrrev_b32 v9, 2, v8')
        e.i(f'v_lshl_add_u32 v9, v5, 2, v9')
        e.i(f'v_lshlrev_b32 v9, 6, v9')
        e.i(f'v_and_b32 v8, 3, v8')
        e.i(f'v_lshl_add_u32 v9, v8, 3, v9')
        e.i(f'v_lshrrev_b32 v8, 4, v{L}')
        e.i(f'v_and_b32 v8, 1, v8')
        e.i(f'v_lshl_add_u32 v9, v8, 5, v9')
        e.i(f'v_add_u32 v9, s{sLDS}, v9')
        e.i(f'v_add_u32 v8, s{sLDS}, v2')
    e.i(f'ds_write_b128 v8, v[{YS}:{YS+3}] offset:{2048*k}')
    e.i(f'ds_write_b128 v8, v[{YS+4}:{YS+7}] offset:{2048*k+1024}')

def gen_pre_c_comp(e, R):
    k = R['k']; QG = R['QG']; YR = 72; YU = 80
    for j in range(4):
        e.i(f'ds_read_b64_tr_b16 v[{YR+2*j}:{YR+2*j+1}], v9 offset:{2048*k + 512*j}')
    e.i('s_waitcnt lgkmcnt(0)')
    for j in range(4):
        for kk in range(2):
            y = YR + 2*j + kk
            e.i(f'v_lshlrev_b32 v{YU+4*j+2*kk}, 16, v{y}')
            e.i(f'v_and_b32 v{YU+4*j+2*kk+1}, 0xffff0000, v{y}')
    for r in range(16):
        e.i(f'v_mul_f32 v{QG+r}, v{QG+r}, v{YU+r}')

def gen_final_post(e, R):
    sWS, sOUT = R['sWS'], R['sOUT']
    t0, t1, t2, t3 = R['tmp']
    vA = R['vA']; ldf = R.get("ldflag", "")
    st = R.get('stamp', lambda n: None)
    PR = 32; AC = 156; OP = 172
    BR = R['BR']; QG = R['QG']; sPB = R['sPB']; sOB = R['sOB']
    for i in range(2*NCH):
        if i and i % 4 == 0:
            e.i(f's_add_u32 s{sPB}, s{sPB}, 4096')
        e.i(f'buffer_load_dwordx4 v[{PR+4*i}:{PR+4*i+3}], v2, s[{sWS}:{sWS+3}], s{sPB} offen offset:{1024*(i%4)} {ldf}')
    e.i(f'v_mfma_f32_32x32x16_bf16 v[{AC}:{AC+15}], v[{vA}:{vA+3}], v[{BR}:{BR+3}], 0')
    e.i(f'v_mfma_f32_32x32x16_bf16 v[{AC}:{AC+15}], v[{vA+4}:{vA+7}], v[{BR+4}:{BR+7}], v[{AC}:{AC+15}]')
    st(0)
    for i in range(2*NCH):
        e.i(f's_waitcnt vmcnt({2*NCH - 1 - i})')
        if i == 0: st(1)
        a = vA + 4*(i & 1)
        e.i(f'v_mfma_f32_32x32x16_bf16 v[{AC}:{AC+15}], v[{a}:{a+3}], v[{PR+4*i}:{PR+4*i+3}], v[{AC}:{AC+15}]')
    st(2)
    e.i('s_nop 7'); e.i('s_nop 3')
    for r in range(16):
        e.i(f'v_fma_f32 v{AC+r}, v{AC+r}, v24, v{QG+r}')
    for j in range(8):
        e.i(f'v_cvt_pk_bf16_f32 v{OP+j}, v{AC+2*j}, v{AC+2*j+1}')
    e.i('s_nop 1')
    for jj in range(2):
        e.i(f'v_permlane32_swap_b32 v{OP+4*jj}, v{OP+4*jj+2}')
        e.i(f'v_permlane32_swap_b32 v{OP+4*jj+1}, v{OP+4*jj+3}')
    st(4)
    for jj in range(2):
        e.i(f'buffer_store_dwordx4 v[{OP+4*jj}:{OP+4*jj+3}], v6, s[{sOUT}:{sOUT+3}], s{sOB} offen offset:{32*jj}')
```

```python
from common import *
from fin import *

WREG = 12928
OFF_O = 4160
OFF_X = 8320
R8 = 8*WREG
FB = 9*WREG

def gen_ssm(e, cfg):
    sQ = 8; sK = 12; sV = 16; sWS = 20; sSK = 24; sH = 40; sGW = 44; sDB = 48; sSD = 52; sB2 = 56; sOUT = 60
    sWV = 28; sJ = 29; sTILE = 30; sCH = 31; sBASE = 32
    sNONCE = 64; sN = 65; sPF = 4
    sPROF = 66
    nprof = [0]
    def stamp(name):
        if cfg.prof and nprof[0] < 16:
            k = nprof[0]; nprof[0] += 1
            e.i(f's_memtime s[{sPROF+2*k}:{sPROF+2*k+1}]')
    def lanes_lt(n, body):
        e.i(f'v_cmp_gt_u32 vcc, {n}, v1')
        e.i('s_and_saveexec_b64 s[38:39], vcc')
        body()
        e.i('s_mov_b64 exec, s[38:39]')
    def signal(off, lbl):
        e.i(f's_cmp_eq_u32 s{sWV}, 0')
        e.i(f's_cbranch_scc0 {lbl}')
        e.i('v_mov_b32 v2, 0')
        e.i('v_mov_b32 v3, 1')
        lanes_lt(1, lambda: e.i(f'buffer_atomic_add v3, v2, s[{sDB}:{sDB+3}], 0 offen offset:{off} sc1'))
        e.label(lbl)
    def wait_count(off, lbl):
        e.i(f's_cmp_eq_u32 s{sWV}, 0')
        e.i(f's_cbranch_scc0 {lbl}_bar')
        e.i('v_mov_b32 v12, 0')
        e.label(f'{lbl}_poll')
        e.i(f'buffer_load_dword v14, v12, s[{sDB}:{sDB+3}], 0 offen offset:{off} sc1')
        e.i('s_waitcnt vmcnt(0)')
        e.i('v_readfirstlane_b32 s37, v14')
        e.i('s_cmp_ge_u32 s37, 64')
        e.i(f's_cbranch_scc1 {lbl}_bar')
        e.i(f's_sleep {cfg.csleep}')
        e.i(f's_branch {lbl}_poll')
        e.label(f'{lbl}_bar')
        e.i('s_barrier')
    if cfg.nossm: e.i('s_endpgm')
    if cfg.prof: e.i('s_memrealtime s[98:99]')
    stamp('start')
    e.i(f's_sub_u32 s{sJ}, s2, 192')
    srds = ((sH, 'ssm_k', D*S*2), (sK, 'k', S*D*2), (sV, 'v', S*D*2), (sSK, 'shift_k', D*8), (sQ, 'q', S*D*2), (sWS, 'ws', WS_TOTAL),
            (sGW, 'gate_w', D*2), (sDB, 'dbg', 256), (sSD, 'ssm_D', D*2), (sB2, 'b2', D*2), (sOUT, 'out', S*D*2))
    for s_, nm, nb in srds:
        e.i(f's_load_dwordx2 s[{s_}:{s_+1}], s[0:1], {KA[nm]}')
    e.i(f's_memrealtime s[34:35]')
    e.i(f'v_and_b32 v1, 63, v0')
    e.i('v_lshrrev_b32 v2, 6, v0')
    e.i('s_nop 0')
    e.i(f'v_readfirstlane_b32 s{sWV}, v2')
    for s_, nm, nb in srds:
        e.i(f's_mov_b32 s{s_+2}, {nb}')
        e.i(f's_mov_b32 s{s_+3}, 0x00020000')
    e.i(f's_mul_i32 s{sCH}, s{sJ}, 9')
    e.i(f's_add_u32 s33, s{sCH}, 8')
    e.i(f's_add_u32 s{sCH}, s{sCH}, s{sWV}')
    e.i('s_waitcnt lgkmcnt(0)')
    for s_, nm, nb in srds:
        e.i(f's_and_b32 s{s_+1}, s{s_+1}, 0xffff')
    e.i(f's_or_b32 s34, s34, 1')
    e.i(f's_add_u32 s36, s{sJ}, s{sWV}')
    e.i(f's_cmp_eq_u32 s36, 0')
    e.i('s_cbranch_scc0 Lssm_nononce')
    e.i('v_mov_b32 v2, s34')
    e.i('v_mov_b32 v3, 0')
    e.i(f'buffer_store_dword v2, v3, s[{sDB}:{sDB+3}], 0 offen offset:{DBG_NONCE} sc1')
    e.label('Lssm_nononce')
    HR = 184; H9 = 220; vD = 216; vD9 = 217
    e.i(f's_lshl_b32 s35, s{sCH}, 12')
    e.i(f'v_lshlrev_b32 v12, 4, v1')
    for i in range(4):
        e.i(f'buffer_load_dwordx4 v[{HR+8*i}:{HR+8*i+3}], v12, s[{sH}:{sH+3}], s35 offen offset:{1024*i}')
        e.i(f'buffer_load_dword v{HR+8*i+4}, v12, s[{sH}:{sH+3}], s35 offen offset:{1024*i+16}')
    e.i(f's_lshl_b32 s35, s33, 12')
    e.i(f's_lshl_b32 s36, s{sWV}, 9')
    e.i(f's_add_u32 s35, s35, s36')
    e.i(f'buffer_load_dwordx4 v[{H9}:{H9+3}], v12, s[{sH}:{sH+3}], s35 offen')
    e.i(f'buffer_load_dword v{H9+4}, v12, s[{sH}:{sH+3}], s35 offen offset:16')
    e.i(f'v_mov_b32 v13, 0')
    e.i(f's_lshl_b32 s37, s{sCH}, 1')
    e.i(f's_and_b32 s37, s37, 0xfffffffc')
    e.i(f'buffer_load_dword v{vD}, v13, s[{sSD}:{sSD+3}], s37 offen')
    e.i(f's_lshl_b32 s37, s33, 1')
    e.i(f's_and_b32 s37, s37, 0xfffffffc')
    e.i(f'buffer_load_dword v{vD9}, v13, s[{sSD}:{sSD+3}], s37 offen')
    e.i(f's_lshl_b32 s{sTILE}, s{sJ}, 2')
    e.i(f's_add_u32 s{sTILE}, s{sTILE}, s{sWV}')
    e.i(f's_cmp_lt_u32 s{sWV}, 4')
    e.i('s_cbranch_scc1 Lssm_prep')
    e.i(f's_add_u32 s{sTILE}, s{sJ}, 256')
    e.i(f's_cmp_eq_u32 s{sWV}, 4')
    e.i('s_cbranch_scc0 Lssm_noprep')
    e.i(f's_cmp_lt_u32 s{sJ}, 32')
    e.i('s_cbranch_scc1 Lssm_prep')
    e.label('Lssm_noprep')
    e.i(f's_mov_b32 s{sPF}, -1')
    e.i('s_waitcnt vmcnt(0)')
    e.i('s_branch Lssm_hb')
    e.label('Lssm_prep')
    e.i(f's_mul_hi_u32 s36, s{sTILE}, {(1 << 32)//9 + 1}')
    e.i(f's_mul_i32 s37, s36, 9')
    e.i(f's_sub_u32 s37, s{sTILE}, s37')
    e.i(f's_lshl_b32 s{sPF}, s37, 5')
    e.i(f's_add_u32 s{sPF}, s{sPF}, s36')
    e.i(f's_lshl_b32 s{sPF}, s{sPF}, 8')
    e.i(f's_add_u32 s{sPF}, s{sPF}, {WS_FLAG2}')
    e.i(f's_lshl_b32 s36, s36, 6')
    e.i(f's_lshl_b32 s37, s37, 6')
    e.i(f'v_and_b32 v2, 7, v1')
    e.i(f'v_lshrrev_b32 v3, 3, v1')
    e.i(f'v_lshl_add_u32 v4, v3, 3, s36')
    e.i(f'v_lshl_add_u32 v5, v2, 3, s37')
    e.i(f'v_mul_u32_u24 v6, 1152, v4')
    e.i(f'v_lshl_add_u32 v6, v5, 1, v6')
    e.i(f'v_subrev_u32 v7, 3456, v6')
    e.i(f'v_cmp_eq_u32 vcc, 0, v4')
    e.i(f'v_mov_b32 v8, 0x80000000')
    e.i('s_nop 0')
    e.i(f'v_cndmask_b32 v7, v7, v8, vcc')
    e.i(f'v_lshlrev_b32 v8, 3, v5')
    KR = 16; VR = 60; WR = 92
    e.i('s_mov_b32 s35, 4608')
    for i in range(3):
        e.i(f'buffer_load_dwordx4 v[{KR+4*i}:{KR+4*i+3}], v7, s[{sK}:{sK+3}], 0 offen offset:{1152*i}')
    for i in range(8):
        so = '0' if i < 4 else 's35'
        e.i(f'buffer_load_dwordx4 v[{KR+12+4*i}:{KR+12+4*i+3}], v6, s[{sK}:{sK+3}], {so} offen offset:{1152*(i%4)}')
    for i in range(4):
        e.i(f'buffer_load_dwordx4 v[{WR+4*i}:{WR+4*i+3}], v8, s[{sSK}:{sSK+3}], 0 offen offset:{16*i}')
    for i in range(8):
        so = '0' if i < 4 else 's35'
        e.i(f'buffer_load_dwordx4 v[{VR+4*i}:{VR+4*i+3}], v6, s[{sV}:{sV+3}], {so} offen offset:{1152*(i%4)}')
    e.i(f'v_lshlrev_b32 v9, 12, v5')
    e.i(f'v_lshlrev_b32 v10, 1, v4')
    e.i(f'v_sub_u32 v9, v9, v10')
    e.i(f'v_add_u32 v9, {4080}, v9')
    e.i(f's_mov_b32 s35, {WS_XR}')
    KU = 108; VU = 130; WU = 146; AC = 154; PKD = 170
    e.i('s_waitcnt vmcnt(0)')
    for q in range(4):
        for r in range(11):
            e.i(f'v_lshlrev_b32 v{KU+2*r}, 16, v{KR+4*r+q}')
            e.i(f'v_and_b32 v{KU+2*r+1}, 0xffff0000, v{KR+4*r+q}')
        for c in range(2):
            w = WR + 2*(2*q + c)
            e.i(f'v_lshlrev_b32 v{WU+4*c}, 16, v{w}')
            e.i(f'v_and_b32 v{WU+4*c+1}, 0xffff0000, v{w}')
            e.i(f'v_lshlrev_b32 v{WU+4*c+2}, 16, v{w+1}')
            e.i(f'v_and_b32 v{WU+4*c+3}, 0xffff0000, v{w+1}')
        for r in range(8):
            e.i(f'v_lshlrev_b32 v{VU+2*r}, 16, v{VR+4*r+q}')
            e.i(f'v_and_b32 v{VU+2*r+1}, 0xffff0000, v{VR+4*r+q}')
        for r in range(8):
            for c in range(2):
                e.i(f'v_mul_f32 v{AC+2*r+c}, v{KU+2*(r+0)+c}, v{WU+4*c+3}')
        for j in (2, 1, 0):
            for r in range(8):
                for c in range(2):
                    e.i(f'v_fmac_f32 v{AC+2*r+c}, v{KU+2*(r+3-j)+c}, v{WU+4*c+j}')
        for r in range(8):
            for c in range(2):
                e.i(f'v_mul_f32 v{AC+2*r+c}, v{AC+2*r+c}, v{VU+2*r+c}')
        for c in range(2):
            for k in range(4):
                e.i(f'v_cvt_pk_bf16_f32 v{PKD+4*c+k}, v{AC+2*(7-2*k)+c}, v{AC+2*(6-2*k)+c}')
        for c in range(2):
            e.i(f'buffer_store_dwordx4 v[{PKD+4*c}:{PKD+4*c+3}], v9, s[{sWS}:{sWS+3}], s35 offen sc1')
            e.i(f'v_add_u32 v9, 4096, v9')
        e.i('s_nop 1')
    e.label('Lssm_hb')
    stamp('prep issued')
    e.i(f's_mul_i32 s{sBASE}, s{sWV}, {WREG}')
    e.i(f'v_mov_b32 v52, 0'); e.i('v_mov_b32 v53, 0'); e.i('v_mov_b32 v54, 0'); e.i('v_mov_b32 v55, 0')
    e.i(f'v_lshl_add_u32 v13, v1, 4, s{sBASE}')
    e.i(f'v_lshlrev_b32 v15, 4, v1')
    lanes_lt(32, lambda: e.i(f'ds_write_b128 v13, v[52:55] offset:{OFF_X + 4096}'))
    def pads():
        e.i(f'ds_write_b128 v13, v[52:55]')
        e.i(f'ds_write_b128 v13, v[52:55] offset:{OFF_O}')
    lanes_lt(2, pads)
    e.i(f's_cmp_eq_u32 s{sWV}, 0')
    e.i('s_cbranch_scc0 Lssm_nopad9')
    e.i(f'v_add_u32 v14, {R8}, v15')
    lanes_lt(32, lambda: e.i(f'ds_write_b128 v14, v[52:55] offset:{OFF_X + 4096}'))
    def pads9():
        e.i(f'ds_write_b128 v14, v[52:55]')
        e.i(f'ds_write_b128 v14, v[52:55] offset:{OFF_O}')
    lanes_lt(2, pads9)
    e.label('Lssm_nopad9')
    e.i('s_waitcnt lgkmcnt(0)')
    for i in range(4):
        h = HR + 8*i
        e.i(f'ds_write_b128 v13, v[{h}:{h+3}] offset:{32 + 1024*i}')
        for k in range(4):
            e.i(f'v_alignbit_b32 v{56+k}, v{h+k+1}, v{h+k}, 16')
        e.i(f'ds_write_b128 v13, v[56:59] offset:{OFF_O + 32 + 1024*i}')
        e.i('s_nop 0')
    e.i(f'v_lshlrev_b32 v56, 16, v{HR}')
    lanes_lt(1, lambda: e.i(f'ds_write_b32 v13, v56 offset:{OFF_O + 28}'))
    e.i(f's_lshl_b32 s36, s{sWV}, 9')
    e.i(f's_add_u32 s36, s36, {R8}')
    e.i(f'v_add_u32 v14, s36, v15')
    for k in range(4):
        e.i(f'v_alignbit_b32 v{56+k}, v{H9+k+1}, v{H9+k}, 16')
    def w9():
        e.i(f'ds_write_b128 v14, v[{H9}:{H9+3}] offset:32')
        e.i(f'ds_write_b128 v14, v[56:59] offset:{OFF_O + 32}')
    lanes_lt(32, w9)
    e.i(f's_cmp_eq_u32 s{sWV}, 0')
    e.i('s_cbranch_scc0 Lssm_nosp9')
    e.i(f'v_lshlrev_b32 v56, 16, v{H9}')
    lanes_lt(1, lambda: e.i(f'ds_write_b32 v14, v56 offset:{OFF_O + 28}'))
    e.label('Lssm_nosp9')
    sDV = 33; sDV9 = 34
    e.i(f'v_readfirstlane_b32 s{sDV}, v{vD}')
    e.i(f'v_readfirstlane_b32 s{sDV9}, v{vD9}')
    e.i(f's_bitcmp1_b32 s{sCH}, 0')
    e.i(f's_cselect_b32 s37, 0, 16')
    e.i(f's_lshl_b32 s{sDV}, s{sDV}, s37')
    e.i(f's_and_b32 s{sDV}, s{sDV}, 0xffff0000')
    e.i(f's_bitcmp1_b32 s{sJ}, 0')
    e.i(f's_cselect_b32 s37, 0, 16')
    e.i(f's_lshl_b32 s{sDV9}, s{sDV9}, s37')
    e.i(f's_and_b32 s{sDV9}, s{sDV9}, 0xffff0000')
    stamp('h built')
    e.i('v_mov_b32 v12, 0')
    e.label('Lssm_npoll')
    e.i(f'buffer_load_dword v14, v12, s[{sDB}:{sDB+3}], 0 offen offset:{DBG_NONCE} sc1')
    e.i('s_waitcnt vmcnt(0) lgkmcnt(0)')
    e.i(f'v_readfirstlane_b32 s{sNONCE}, v14')
    e.i(f's_cmp_eq_u32 s{sNONCE}, 0')
    e.i('s_cbranch_scc1 Lssm_npoll')
    e.i(f'v_mov_b32 v232, s{sNONCE}')
    e.i(f's_cmp_lt_u32 s{sPF}, 0x7fffffff')
    e.i('s_cbranch_scc0 Lssm_notileflag')
    e.i('v_lshlrev_b32 v12, 2, v1')
    e.i(f'buffer_store_dword v232, v12, s[{sWS}:{sWS+3}], s{sPF} offen sc1')
    e.label('Lssm_notileflag')
    stamp('prep done')
    e.i(f's_cmp_lt_u32 s{sWV}, 4')
    e.i('s_cbranch_scc1 Lssm_gate_done')
    e.i(f's_lshl_b32 s36, s{sJ}, 5')
    e.i(f's_sub_u32 s37, s{sWV}, 4')
    e.i(f's_lshl_b32 s37, s37, 3')
    e.i(f's_add_u32 s36, s36, s37')
    e.i(f'v_and_b32 v2, 7, v1')
    e.i(f'v_lshrrev_b32 v3, 3, v1')
    e.i(f'v_add_u32 v4, s36, v3')
    e.i(f'v_mul_u32_u24 v6, 1152, v4')
    e.i(f'v_lshl_add_u32 v6, v2, 4, v6')
    e.i(f'v_lshlrev_b32 v7, 4, v2')
    QR = 16; GR = 60
    for i in range(9):
        e.i(f'buffer_load_dwordx4 v[{QR+4*i}:{QR+4*i+3}], v6, s[{sQ}:{sQ+3}], 0 offen offset:{128*i}')
    for i in range(9):
        e.i(f'buffer_load_dwordx4 v[{GR+4*i}:{GR+4*i+3}], v7, s[{sGW}:{sGW+3}], 0 offen offset:{128*i}')
    e.i('v_mov_b32 v8, 0')
    e.i('v_mov_b32 v9, 0')
    e.i('s_waitcnt vmcnt(0)')
    for i in range(36):
        e.i(f'v_lshlrev_b32 v10, 16, v{QR+i}')
        e.i(f'v_lshlrev_b32 v11, 16, v{GR+i}')
        e.i(f'v_and_b32 v12, 0xffff0000, v{QR+i}')
        e.i(f'v_and_b32 v14, 0xffff0000, v{GR+i}')
        e.i(f'v_fmac_f32 v8, v10, v11')
        e.i(f'v_fmac_f32 v9, v12, v14')
    e.i('v_add_f32 v8, v8, v9')
    for off in (0x041F, 0x081F, 0x101F):
        e.i(f'ds_swizzle_b32 v9, v8 offset:{hex(off)}')
        e.i('s_waitcnt lgkmcnt(0)')
        e.i('v_add_f32 v8, v8, v9')
    e.i(f'v_mul_f32 v8, {hex(f2u(-1.4426950408889634))}, v8')
    e.i('v_exp_f32 v8, v8')
    e.i('s_nop 0')
    e.i('v_add_f32 v8, 1.0, v8')
    e.i('v_rcp_f32 v8, v8')
    e.i('v_lshlrev_b32 v10, 2, v4')
    e.i(f's_mov_b32 s35, {WS_G}')
    e.i('v_cmp_eq_u32 vcc, 0, v2')
    e.i('s_and_saveexec_b64 s[38:39], vcc')
    e.i(f'buffer_store_dword v8, v10, s[{sWS}:{sWS+3}], s35 offen sc1')
    e.i('s_mov_b64 exec, s[38:39]')
    e.label('Lssm_gate_done')
    e.i(f's_cmp_eq_u32 s{sWV}, 0')
    e.i('s_cbranch_scc0 Lssm_w1_bar')
    e.i(f's_mul_i32 s36, s{sJ}, 9')
    e.i(f's_lshr_b32 s37, s36, 6')
    e.i(f's_add_u32 s36, s36, 8')
    e.i(f's_lshr_b32 s36, s36, 6')
    e.i('v_and_b32 v12, 31, v1')
    e.i('v_lshlrev_b32 v12, 8, v12')
    e.i(f's_lshl_b32 s37, s37, 13')
    e.i(f's_lshl_b32 s36, s36, 13')
    e.i('v_mov_b32 v14, s37')
    e.i('v_mov_b32 v16, s36')
    e.i('v_cmp_gt_u32 vcc, 32, v1')
    e.i('s_nop 1')
    e.i('v_cndmask_b32 v14, v16, v14, vcc')
    e.i('v_add_u32 v12, v12, v14')
    e.i(f's_mov_b32 s36, {WS_FLAG2}')
    e.label('Lssm_w1_poll')
    e.i(f'buffer_load_dword v14, v12, s[{sWS}:{sWS+3}], s36 offen sc1')
    e.i('s_waitcnt vmcnt(0)')
    e.i(f'v_cmp_eq_u32 vcc, s{sNONCE}, v14')
    e.i('s_nop 1')
    e.i('s_cmp_eq_u64 vcc, -1')
    e.i('s_cbranch_scc1 Lssm_w1_bar')
    e.i(f's_sleep {cfg.csleep}')
    e.i('s_branch Lssm_w1_poll')
    e.label('Lssm_w1_bar')
    e.i('s_barrier')
    stamp('sync done')
    XL = 16
    e.i(f's_lshl_b32 s35, s{sCH}, 12')
    e.i(f's_add_u32 s35, s35, {WS_XR}')
    e.i(f'v_lshlrev_b32 v12, 4, v1')
    for i in range(4):
        e.i(f'buffer_load_dwordx4 v[{XL+4*i}:{XL+4*i+3}], v12, s[{sWS}:{sWS+3}], s35 offen offset:{1024*i} sc1')
    e.i(f's_mul_i32 s36, s{sJ}, 9')
    e.i(f's_add_u32 s36, s36, 8')
    e.i(f's_lshl_b32 s36, s36, 12')
    e.i(f's_lshl_b32 s37, s{sWV}, 9')
    e.i(f's_add_u32 s36, s36, s37')
    e.i(f's_add_u32 s36, s36, {WS_XR}')
    e.i(f'buffer_load_dwordx4 v[{XL+16}:{XL+19}], v12, s[{sWS}:{sWS+3}], s36 offen sc1')
    vN = 2; vG = 3; vAa = [4, 5, 6, 7]; vBa = 8; vXa = 9; vYo = 10
    e.i(f'v_and_b32 v{vN}, 15, v1')
    e.i(f'v_lshrrev_b32 v{vG}, 4, v1')
    e.i(f'v_add_u32 v12, 1, v{vN}')
    e.i(f'v_lshrrev_b32 v12, 1, v12')
    e.i(f'v_lshlrev_b32 v12, 2, v12')
    e.i(f'v_lshl_add_u32 v12, v{vG}, 4, v12')
    e.i(f'v_and_b32 v14, 1, v{vN}')
    e.i(f'v_xor_b32 v14, 1, v14')
    e.i(f'v_mul_u32_u24 v14, {OFF_O}, v14')
    e.i(f'v_add_u32 v11, v12, v14')
    for k in range(4):
        e.i(f'v_add_u32 v{vAa[k]}, {1024*k}, v11')
        e.i(f'v_add_u32 v{vAa[k]}, s{sBASE}, v{vAa[k]}')
    e.i(f'v_lshlrev_b32 v12, 5, v{vN}')
    e.i(f'v_lshlrev_b32 v14, 4, v{vG}')
    e.i(f'v_sub_u32 v60, v14, v12')
    e.i(f's_add_u32 s37, s{sBASE}, {OFF_X + 480}')
    e.i(f'v_add_u32 v{vBa}, s37, v60')
    e.i(f'v_lshlrev_b32 v14, 3, v{vG}')
    e.i(f'v_add_u32 v{vYo}, v14, v12')
    e.i(f's_add_u32 s37, s{sBASE}, {OFF_X + 504}')
    e.i(f'v_sub_u32 v{vXa}, s37, v{vYo}')
    e.i('s_waitcnt vmcnt(0)')
    for i in range(4):
        e.i(f'ds_write_b128 v13, v[{XL+4*i}:{XL+4*i+3}] offset:{OFF_X + 1024*i}')
    e.i(f's_lshl_b32 s36, s{sWV}, 9')
    e.i(f's_add_u32 s36, s36, {R8 + OFF_X}')
    e.i(f'v_add_u32 v14, s36, v15')
    lanes_lt(32, lambda: e.i(f'ds_write_b128 v14, v[{XL+16}:{XL+19}]'))
    e.i('s_waitcnt lgkmcnt(0)')
    e.i('s_barrier')
    stamp('x loaded')
    ACC = 16; AB = [48+16, 96]; BB = [128, 160]
    AB = [64, 96]
    def read_list(rho, st, aregs, breg):
        out = []
        for k in range(8):
            a = aregs[k >> 1]; o = 16*rho + 128*(k & 1)
            r = AB[st] + 4*k; rb = BB[st] + 4*k
            kap = 8*k - rho
            out.append((f'ds_read_b128 v[{rb}:{rb+3}], v{breg} offset:{3584 - 64*kap}', ('b', rho, st, k)))
            out.append((f'ds_read2_b32 v[{r}:{r+1}], v{a} offset0:{o} offset1:{o+1}', ('a', rho, st, k, 0)))
            out.append((f'ds_read2_b32 v[{r+2}:{r+3}], v{a} offset0:{o+2} offset1:{o+3}', ('a', rho, st, k, 1)))
        return out
    def mfmas(rho, st, nxt, first, ACC=16):
        cnt = 0
        for ee in range(8):
            for u in range(8 - ee):
                tau = ee + u
                e.wait_lds(('a', rho, st, ee, 1)); e.wait_lds(('b', rho, st, u))
                a = AB[st] + 4*ee; b = BB[st] + 4*u; acc = ACC + 4*tau
                c = '0' if (first and ee == 0) else f'v[{acc}:{acc+3}]'
                e.mfma(f'v_mfma_f32_16x16x32_bf16 v[{acc}:{acc+3}], v[{a}:{a+3}], v[{b}:{b+3}], {c}',
                       list(range(acc, acc+4)), [])
                cnt += 1
                if nxt and cnt >= 6:
                    t, tag = nxt.pop(0); e.lds(t, tag)
        assert not nxt
    a9 = [48, 49, 50, 51]; b9 = 52
    e.i(f's_lshl_b32 s36, s{sWV}, 6')
    e.i(f's_add_u32 s37, s36, {R8}')
    for k in range(4):
        e.i(f'v_add_u32 v{a9[k]}, {1024*k}, v11')
        e.i(f'v_add_u32 v{a9[k]}, s37, v{a9[k]}')
    e.i(f's_add_u32 s37, s37, {OFF_X + 480}')
    e.i(f'v_add_u32 v{b9}, s37, v60')
    e.lq = []
    for (t, tag) in read_list(0, 0, vAa, vBa): e.lds(t, tag)
    for rho in range(8):
        st = rho & 1
        if cfg.prio and rho % 2 == 0: e.i(f's_setprio {3 - rho // 2}')
        if rho < 7: nxt = read_list(rho + 1, st ^ 1, vAa, vBa)
        else: nxt = [(t, ('n',) + tag) for (t, tag) in read_list(0, 0, a9, b9)]
        mfmas(rho, st, nxt, rho == 0)
    ACC9 = 196
    for ee in range(8):
        for u in range(8 - ee):
            tau = ee + u
            e.wait_lds(('n', 'a', 0, 0, ee, 1)); e.wait_lds(('n', 'b', 0, 0, u))
            a = AB[0] + 4*ee; b = BB[0] + 4*u; acc = ACC9 + 4*tau
            c = '0' if ee == 0 else f'v[{acc}:{acc+3}]'
            e.mfma(f'v_mfma_f32_16x16x32_bf16 v[{acc}:{acc+3}], v[{a}:{a+3}], v[{b}:{b+3}], {c}', list(range(acc, acc+4)), [])
    for tau in range(8):
        e.lds(f'ds_read_b64 v[{96+2*tau}:{97+2*tau}], v{vXa} offset:{3584 - 512*tau}', ('xv', tau))
    e.i(f's_lshl_b32 s35, s{sCH}, 12')
    e.i(f's_add_u32 s35, s35, {WS_Y2}')
    def yout(x0, accs, sD, pk):
        e.valu(f'v_and_b32 v120, 0xffff0000, v{x0+1}', dst=[120])
        e.valu(f'v_lshlrev_b32 v121, 16, v{x0+1}', dst=[121])
        e.valu(f'v_and_b32 v122, 0xffff0000, v{x0}', dst=[122])
        e.valu(f'v_lshlrev_b32 v123, 16, v{x0}', dst=[123])
        for r in range(4):
            e.valu(f'v_fma_f32 v{120+r}, v{120+r}, s{sD}, v{accs[r]}', dst=[120+r], src=[accs[r]])
        e.valu(f'v_cvt_pk_bf16_f32 v{pk}, v120, v121', dst=[pk])
        e.valu(f'v_cvt_pk_bf16_f32 v{pk+1}, v122, v123', dst=[pk+1])
    for tau in range(8):
        e.wait_lds(('xv', tau))
        pk = 124 + 2*(tau & 1)
        yout(96 + 2*tau, [ACC+4*tau+r for r in range(4)], sDV, pk)
        e.i(f'buffer_store_dwordx2 v[{pk}:{pk+1}], v{vYo}, s[{sWS}:{sWS+3}], s35 offen offset:{512*tau} sc1')
    e.wait_lds_all()
    e.nop(8)
    for tau in range(8):
        e.lds(f'ds_write_b128 v13, v[{ACC9+4*tau}:{ACC9+4*tau+3}] offset:{1024*tau}', ('p9', tau))
    stamp('chan done')
    e.wait_lds_all()
    e.i('s_barrier')
    e.i(f's_lshl_b32 s36, s{sWV}, 10')
    e.i(f'v_add_u32 v54, s36, v15')
    e.i(f'v_add_u32 v55, {4*WREG}, v54')
    for k in range(8):
        a = 54 if k < 4 else 55
        e.lds(f'ds_read_b128 v[{64+4*k}:{67+4*k}], v{a} offset:{(k%4)*WREG}', ('f9', k))
    e.i(f's_lshl_b32 s36, s{sWV}, 9')
    e.i(f's_sub_u32 s36, {R8 + OFF_X + 4088}, s36')
    e.i(f'v_sub_u32 v54, s36, v{vYo}')
    e.lds(f'ds_read_b64 v[20:21], v54', ('x9',))
    e.i(f's_mul_i32 s35, s{sJ}, 9')
    e.i(f's_add_u32 s35, s35, 8')
    e.i(f's_lshl_b32 s35, s35, 12')
    e.i(f's_lshl_b32 s36, s{sWV}, 9')
    e.i(f's_add_u32 s35, s35, s36')
    e.i(f's_add_u32 s35, s35, {WS_Y2}')
    e.wait_lds_all()
    for k in range(1, 8):
        for r in range(4):
            e.i(f'v_add_f32 v{64+r}, v{64+r}, v{64+4*k+r}')
    yout(20, [64, 65, 66, 67], sDV9, 124)
    e.i(f'buffer_store_dwordx2 v[124:125], v{vYo}, s[{sWS}:{sWS+3}], s35 offen sc1')
    e.i('s_waitcnt vmcnt(0)')
    e.i('s_barrier')
    e.i(f's_cmp_eq_u32 s{sWV}, 0')
    e.i('s_cbranch_scc0 Lssm_nocf')
    e.i('v_lshlrev_b32 v12, 2, v1')
    e.i(f's_lshl_b32 s36, s{sJ}, 8')
    e.i(f's_add_u32 s36, s36, {WS_FLAG3}')
    e.i(f'buffer_store_dword v232, v12, s[{sWS}:{sWS+3}], s36 offen sc1')
    e.label('Lssm_nocf')
    stamp('conv done')
    if cfg.nored: e.i('s_branch Lssm_fin')
    gen_final_consts(e, 240)
    sT = 30; sMI = 31
    sDTk = [12, 13, 14]; sPBk = [16, 17, 18]; sOBk = [24, 25, 26]
    e.i(f's_lshr_b32 s{sT}, s{sJ}, 2')
    e.i(f's_and_b32 s{sMI}, s{sJ}, 3')
    def unitR(k):
        return dict(sWS=sWS, sQ=sQ, sB2=sB2, sOUT=sOUT, sT=sT, sMI=sMI, sDT=sDTk[k], sLDS=sBASE, tmp=(34, 35, 36, 37), ldflag='sc1', vA=240,
                    BR=128 + 8*k, QG=184 + 16*k, sPB=sPBk[k], sOB=sOBk[k], QR=96 + 8*k, YS=32 + 8*k, k=k)
    def for_units(fn, lbl):
        for k in range(3):
            if k == 2:
                e.i(f's_cmp_lt_u32 s{sWV}, 2')
                e.i(f's_cbranch_scc0 {lbl}')
            fn(k)
        e.label(lbl)
    def f_issue(k):
        e.i(f's_add_u32 s34, s{sWV}, {8*k}')
        e.i(f's_and_b32 s5, s34, 1')
        e.i(f's_lshr_b32 s34, s34, 1')
        e.i(f's_and_b32 s35, s{sT}, 7')
        e.i(f's_add_u32 s34, s34, s35')
        e.i(f's_sub_u32 s35, s34, 9')
        e.i(f's_min_u32 s34, s34, s35')
        e.i(f's_lshl_b32 s34, s34, 1')
        e.i(f's_add_u32 s{sDTk[k]}, s34, s5')
        gen_pre_a_issue(e, unitR(k), k == 0)
    for_units(f_issue, 'Lpre_a1')
    e.i('s_waitcnt vmcnt(0)')
    for_units(lambda k: gen_pre_a_comp(e, unitR(k), k == 0), 'Lpre_a2')
    if cfg.nocpoll: e.i('s_branch Lssm_cready')
    e.i(f's_cmp_eq_u32 s{sWV}, 0')
    e.i('s_cbranch_scc0 Lssm_cready')
    e.i('v_lshlrev_b32 v12, 8, v1')
    e.i(f's_mov_b32 s36, {WS_FLAG3}')
    e.label('Lssm_cpoll')
    e.i(f'buffer_load_dword v14, v12, s[{sWS}:{sWS+3}], s36 offen sc1')
    e.i('s_waitcnt vmcnt(0)')
    e.i(f'v_cmp_eq_u32 vcc, s{sNONCE}, v14')
    e.i('s_nop 1')
    e.i('s_cmp_eq_u64 vcc, -1')
    e.i('s_cbranch_scc1 Lssm_cready')
    e.i(f's_sleep {cfg.c2sleep}')
    e.i('s_branch Lssm_cpoll')
    e.label('Lssm_cready')
    e.i('s_barrier')
    stamp('conv flags')
    if cfg.nounits: e.i('s_branch Lssm_fin')
    for_units(lambda k: gen_pre_c_issue(e, unitR(k), k == 0), 'Lpre_c1')
    e.i('s_waitcnt vmcnt(0)')
    for_units(lambda k: gen_pre_c_lds(e, unitR(k), k == 0), 'Lpre_c2')
    e.i('s_waitcnt lgkmcnt(0)')
    for_units(lambda k: gen_pre_c_comp(e, unitR(k)), 'Lpre_c3')
    stamp('pre done')
    for k in range(3):
        if k == 2:
            e.i(f's_cmp_lt_u32 s{sWV}, 2')
            e.i('s_cbranch_scc0 Lssm_fin')
        e.i(f's_mul_i32 s6, s{sT}, 9')
        e.i(f's_lshr_b32 s5, s{sDTk[k]}, 1')
        e.i(f's_add_u32 s6, s6, s5')
        e.i(f's_mul_i32 s6, s6, {12*256}')
        e.i(f's_add_u32 s6, s6, {WS_FLAG}')
        e.i(f'v_min_u32 v12, {NCH-1}, v1')
        e.i(f'v_lshlrev_b32 v12, 8, v12')
        e.label(f'Lssm_fpoll{k}')
        e.i(f'buffer_load_dword v14, v12, s[{sWS}:{sWS+3}], s6 offen sc1')
        e.i('s_waitcnt vmcnt(0)')
        e.i(f'v_cmp_eq_u32 vcc, s{sNONCE}, v14')
        e.i('s_nop 1')
        e.i('s_cmp_eq_u64 vcc, -1')
        e.i(f's_cbranch_scc1 Lssm_fready{k}')
        e.i(f's_sleep {cfg.fsleep}')
        e.i(f's_branch Lssm_fpoll{k}')
        e.label(f'Lssm_fready{k}')
        if cfg.prof: e.i(f's_memtime s[{sPROF+2*(10+2*k)}:{sPROF+2*(10+2*k)+1}]')
        gen_final_post(e, unitR(k))
        if cfg.prof:
            e.i('s_waitcnt vmcnt(0)')
            e.i(f's_memtime s[{sPROF+2*(11+2*k)}:{sPROF+2*(11+2*k)+1}]')
    e.label('Lssm_fin')
    e.i('s_waitcnt vmcnt(0)')
    nprof[0] = 16
    if cfg.prof:
        e.i('s_memrealtime s[100:101]')
        e.i('s_waitcnt lgkmcnt(0)')
        e.i(f's_cmp_eq_u32 s{sWV}, 1')
        e.i('s_cbranch_scc0 Lssm_noprof')
        e.i(f's_lshl_b32 s34, s2, 7')
        e.i(f's_add_u32 s34, s34, {WS_PROF}')
        e.i(f'v_mov_b32 v14, 0')
        for k in range(nprof[0]):
            e.i(f'v_mov_b32 v13, s{sPROF+2*k}')
            e.i(f'buffer_store_dword v13, v14, s[{sWS}:{sWS+3}], s34 offen offset:{4*k}')
        e.i(f'v_mov_b32 v13, s98')
        e.i(f'buffer_store_dword v13, v14, s[{sWS}:{sWS+3}], s34 offen offset:{4*30}')
        e.i(f'v_mov_b32 v13, s100')
        e.i(f'buffer_store_dword v13, v14, s[{sWS}:{sWS+3}], s34 offen offset:{4*31}')
        e.i('s_waitcnt vmcnt(0)')
        e.label('Lssm_noprof')
    e.i('s_endpgm')
```

```python
import sys, os
from emit import Emit
from common import *
from ffn import gen_ffn
from ssm import gen_ssm


class Cfg:
    prof = False
    stflag = 'sc1'
    nostore = False
    prio = False
    looptest = False
    prefetch = False
    nocpoll = False
    nounits = False
    presleep = 0
    tlbwarm = 0
    c2sleep = 32
    unitprof = None
    csleep = 2
    nored = False
    nossm = False
    fsleep = 2
    fuse = True
    flaglag = 2
    prostamps = False
    nodma = False
    nogelu = False
    nobar = False
    dmaspread = False
    dmabeats = (1, 5, 9)
    stamps = (1, 2, 3, 6, 9, 12, 15, 18, 20, 22, 25, 28, 31)
    prestamps = ()

def kernel_header(e, name):
    e.raw('.p2align 8')
    e.raw(f'.globl {name}')
    e.raw(f'.type {name},@function')
    e.raw(f'{name}:')

def kernel_desc(name, vgpr=256, sgpr=102):
    return f'''.amdhsa_kernel {name}
  .amdhsa_next_free_vgpr {vgpr}
  .amdhsa_next_free_sgpr {sgpr}
  .amdhsa_accum_offset {((vgpr+3)//4)*4}
  .amdhsa_group_segment_fixed_size 0
  .amdhsa_kernarg_size 120
  .amdhsa_user_sgpr_count 2
  .amdhsa_user_sgpr_kernarg_segment_ptr 1
  .amdhsa_system_sgpr_workgroup_id_x 1
.end_amdhsa_kernel
'''

def main():
    cfg = Cfg()
    cfg.prof = '--prof' in sys.argv
    for a in sys.argv:
        if a.startswith('--st='): cfg.stflag = a[5:].replace('+', ' ')
    cfg.nostore = '--nostore' in sys.argv
    cfg.prio = '--prio' in sys.argv
    cfg.looptest = '--looptest' in sys.argv
    cfg.prefetch = '--prefetch' in sys.argv
    cfg.nored = '--nored' in sys.argv
    cfg.nocpoll = '--nocpoll' in sys.argv
    cfg.nounits = '--nounits' in sys.argv
    cfg.nossm = '--nossm' in sys.argv
    for a in sys.argv:
        if a.startswith('--flaglag='): cfg.flaglag = int(a[10:])
        if a.startswith('--fsleep='): cfg.fsleep = int(a[9:])
        if a.startswith('--tlbwarm='): cfg.tlbwarm = int(a[10:])
        if a.startswith('--c2sleep='): cfg.c2sleep = int(a[10:])
        if a.startswith('--unitprof='): cfg.unitprof = int(a[11:])
        if a.startswith('--csleep='): cfg.csleep = int(a[9:])
    cfg.prostamps = '--prostamps' in sys.argv
    cfg.nodma = '--nodma' in sys.argv
    cfg.nogelu = '--nogelu' in sys.argv
    cfg.nobar = '--nobar' in sys.argv
    cfg.dmaspread = '--dmaspread' in sys.argv
    for a in sys.argv:
        if a.startswith('--dmabeats='): cfg.dmabeats = tuple(int(x) for x in a[11:].split(','))
    for a in sys.argv:
        if a.startswith('--stamps='): cfg.stamps = tuple(int(x) for x in a[9:].split(',') if x)
        if a.startswith('--prestamps='): cfg.prestamps = tuple(int(x) for x in a[12:].split(',') if x)
    e = Emit()
    k1 = NAME + '_kernel'
    here = os.path.dirname(os.path.abspath(__file__))
    hdr = open(here + '/header.txt').read()
    out = [hdr.rstrip('\n')]
    out.append(f'; @launch grid=(256,1,1) block=(512,1,1) lds={LDS_BYTES}')
    out.append('.amdgcn_target "amdgcn-amd-amdhsa--gfx950"')
    out.append('.text')
    kernel_header(e, k1)
    e.i('s_cmp_ge_u32 s2, 256') ; e.i('s_cbranch_scc1 Lk1_exit')
    e.i('s_cmp_ge_u32 s2, 192') ; e.i('s_cbranch_scc1 Lk1_ssm')
    e.i('s_branch Lk1_ffn')
    e.label('Lk1_exit')
    e.i('s_endpgm')
    e.label('Lk1_ssm')
    es = Emit(); gen_ssm(es, cfg); e.raw(es.text())
    e.label('Lk1_ffn')
    ef = Emit(); gen_ffn(ef, cfg); e.raw(ef.text())
    out.append(e.text())
    out.append('.section .rodata,"a"\n.p2align 6')
    out.append(kernel_desc(k1))

    print('\n'.join(out))

if __name__ == '__main__':
    main()
```

```python
from common import *
from fin import *
import ffn_unit

def ring_plan():
    slot = {0: 2, 1: 3}
    issue = {s: [] for s in range(0, 36)}
    slot[2] = 2; issue[1].append(2)
    slot[3] = 4; slot[4] = 5
    slot[5] = 3; issue[2].append(5)
    free = []
    nxt = 6
    ex = []
    for s in range(3, 36):
        free.append(slot[s-1])
        if s == 3: free = [0, 1] + free
        if s in (15, 16):
            ex.append(free.pop()); assert not free
            continue
        if s == 21: free += ex
        while free and nxt < 36:
            slot[nxt] = free.pop(0); issue[s].append(nxt); nxt += 1
    assert nxt == 36, nxt
    return slot, issue, ex

P2 = [(0,0),(1,0),(0,1),(1,1)] + [(dp, kb) for dp in range(2, 9) for kb in range(2)]

def gen_ffn(e, cfg):
    slot, issue, ex = ring_plan()
    vLANE = 1; vA0 = 2; vA1 = 3
    vPAT1 = 4; vPAT2 = 5
    vW1 = 6; vW2 = 7; vBIAS = 8; vC0 = 9
    vST = 10; vA2 = 11; vA3 = 12
    tmp = [13, 14, 15, 0]
    AF = 16
    ACC = [32, 48]
    HOWN = 64
    XF = 112
    HPART = 112
    PK = 160
    ACCP = [168, 184]
    vX0 = 32; vX1 = 33
    sW1 = 8; sW2 = 12; sX = 16; sWS = 20; sB1 = 24
    sWV = 28; sMI = 29; sP = 30; sC = 31; sT = 32
    sW1B = 33; sXB = 34; sM0B = 35; sOFF = 36; sGC1 = 37; sSTO = 38; sROT = 39
    sC1 = 44
    sR2 = 50
    sD2 = 56
    sNONCE = 66; sFLB = 67; sDB = 68
    vNON = 200; vZERO = 201
    sPROF = 72
    nprof = [0]
    def stamp(name):
        if cfg.prof and nprof[0] < 13:
            k = nprof[0]; nprof[0] += 1
            e.i(f's_memtime s[{sPROF+2*k}:{sPROF+2*k+1}]')
    if cfg.prof: e.i('s_memrealtime s[98:99]')
    stamp('start')
    e.i('s_and_b32 s40, s2, 7')
    e.i('s_lshr_b32 s41, s2, 3')
    e.i('s_lshr_b32 s42, s40, 1')
    e.i('s_mul_i32 s42, s42, 3')
    e.i('s_lshr_b32 s43, s41, 3')
    e.i(f's_add_u32 s{sC}, s42, s43')
    e.i('s_and_b32 s42, s40, 1')
    e.i('s_lshl_b32 s42, s42, 3')
    e.i('s_and_b32 s43, s41, 7')
    e.i(f's_add_u32 s{sT}, s42, s43')
    e.i(f's_load_dwordx2 s[{sX}:{sX+1}], s[0:1], {KA["q"]}')
    e.i(f's_load_dwordx2 s[{sW1}:{sW1+1}], s[0:1], {KA["w1"]}')
    e.i(f's_load_dwordx2 s[{sB1}:{sB1+1}], s[0:1], {KA["b1"]}')
    e.i(f's_load_dwordx2 s[{sW2}:{sW2+1}], s[0:1], {KA["w2"]}')
    e.i(f's_load_dwordx2 s[{sWS}:{sWS+1}], s[0:1], {KA["ws"]}')
    e.i(f's_load_dwordx2 s[{sDB}:{sDB+1}], s[0:1], {KA["dbg"]}')
    e.i(f's_load_dwordx2 s[4:5], s[0:1], {KA["out"]}')
    e.i(f's_load_dwordx2 s[6:7], s[0:1], {KA["b2"]}')
    L = vLANE
    e.i(f'v_and_b32 v{L}, 63, v0')
    e.i('v_lshrrev_b32 v13, 6, v0')
    e.i('s_nop 0')
    e.i(f'v_readfirstlane_b32 s{sWV}, v13')
    for s_, nb in ((sW1, D*F*2), (sW2, F*D*2), (sX, S*D*2), (sWS, WS_TOTAL), (sB1, F*2), (sDB, 256)):
        e.i(f's_mov_b32 s{s_+2}, {nb}')
        e.i(f's_mov_b32 s{s_+3}, 0x00020000')
    e.i(f's_mov_b32 s{sGC1}, {hex(f2u(GC1))}')
    e.i(f'v_mov_b32 v{vC0}, {hex(f2u(GC0))}')
    e.i(f's_and_b32 s{sMI}, s{sWV}, 3')
    e.i(f's_lshr_b32 s{sP}, s{sWV}, 2')
    e.i(f'v_lshrrev_b32 v13, 3, v{L}')
    e.i(f'v_lshrrev_b32 v14, 4, v{L}')
    e.i(f'v_and_b32 v15, 7, v{L}')
    e.i(f'v_xor_b32 v16, v15, v14')
    e.i(f'v_mul_u32_u24 v17, 1152, v13')
    e.i(f'v_lshl_add_u32 v{vX0}, v16, 4, v17')
    e.i(f'v_xor_b32 v16, 4, v16')
    e.i(f'v_lshl_add_u32 v{vX1}, v16, 4, v17')
    e.i(f'v_add_u32 v{vX1}, {8*1152}, v{vX1}')
    e.i(f's_lshl_b32 s41, s{sT}, 7')
    e.i(f's_lshl_b32 s42, s{sWV}, 4')
    e.i(f's_add_u32 s41, s41, s42')
    e.i(f's_mul_i32 s{sXB}, s41, 1152')
    e.i(f's_lshl_b32 s{sM0B}, s{sWV}, 11')
    e.i(f'v_and_b32 v14, 1, v14')
    e.i(f'v_lshlrev_b32 v14, 2, v14')
    e.i(f'v_xor_b32 v15, v15, v14')
    e.i(f'v_lshlrev_b32 v15, 4, v15')
    e.i(f'v_mul_u32_u24 v14, 9216, v13')
    e.i(f'v_add_u32 v{vW1}, v14, v15')
    e.i(f'v_add_u32 v{vW2}, v17, v15')
    e.i(f's_and_b32 s43, s{sT}, 7')
    if cfg.rot == 6:
        e.i(f's_sub_u32 s42, s43, 6')
        e.i(f's_min_u32 s{sROT}, s43, s42')
    elif cfg.rot == 2:
        e.i(f's_and_b32 s42, s43, 1')
        e.i(f's_mul_i32 s{sROT}, s42, 3')
    elif cfg.rot == 3:
        e.i(f's_and_b32 s42, s43, 3')
        e.i(f's_lshl_b32 s42, s42, 1')
        e.i(f's_sub_u32 s41, s42, 6')
        e.i(f's_min_u32 s{sROT}, s42, s41')
    else:
        e.i(f's_mov_b32 s{sROT}, 0')
    e.i(f's_mul_i32 s40, s{sC}, {FC}')
    e.i(f's_lshl_b32 s41, s40, 1')
    e.i(f's_mul_i32 s42, s{sWV}, {24*9216}')
    e.i(f's_add_u32 s{sW1B}, s41, s42')
    for fp in range(6):
        e.i(f's_add_u32 s42, s{sROT}, {fp}')
        e.i(f's_sub_u32 s41, s42, 6')
        e.i(f's_min_u32 s42, s42, s41')
        e.i(f's_lshl_b32 s42, s42, 7')
        e.i(f's_add_u32 s{sC1+fp}, s{sW1B}, s42')
    e.i('s_waitcnt lgkmcnt(0)')
    if cfg.prostamps: stamp('kernarg')
    for s_ in (sW1, sW2, sX, sWS, sB1, sDB):
        e.i(f's_and_b32 s{s_+1}, s{s_+1}, 0xffff')
    def xdma(blk, base):
        for a, vx in ((0, vX0), (1, vX1)):
            e.i(f's_add_u32 m0, s{sM0B}, {base + a*1024}')
            e.i(f's_add_u32 s{sOFF}, s{sXB}, {blk*128}')
            e.vm(f'buffer_load_dwordx4 v{vx}, s[{sX}:{sX+3}], s{sOFF} offen lds', ('xd', blk, a))
    def dma_one(it, i):
        if cfg.nodma and it >= 6:
            e.vq.append(('dma', it, i)); e.vm_done.add(('dma', it, i)); e.vq.pop(); return
        sl = slot[it]
        e.i(f's_add_u32 m0, s{sM0C}, {sl*SLOT + i*1024}')
        if it < 18:
            fp, kb = it // 3, it % 3
            e.i(f's_add_u32 s{sOFF}, s{sC1+fp}, {(192*kb + 8*i)*9216}')
            e.vm(f'buffer_load_dwordx4 v{vW1}, s[{sW1}:{sW1+3}], s{sOFF} offen lds', ('dma', it, i))
        else:
            dp, kb = P2[it-18]
            e.i(f's_add_u32 s{sOFF}, s{sR2+3*kb+i}, s{sD2+dp}')
            e.vm(f'buffer_load_dwordx4 v{vW2}, s[{sW2}:{sW2+3}], s{sOFF} offen lds', ('dma', it, i))
    sM0C = 65
    e.i(f's_mul_i32 s{sM0C}, s{sWV}, 3072')
    def dma_item(it):
        for i in range(3): dma_one(it, i)
    if cfg.startprio: e.i('s_setprio 3')
    for b in range(3): xdma(b, b*16384)
    e.i(f'v_lshrrev_b32 v13, 5, v{L}')
    e.i(f's_lshl_b32 s42, s{sWV}, 1')
    e.i(f's_add_u32 s42, s42, s{sROT}')
    e.i(f'v_add_u32 v13, s42, v13')
    e.i(f'v_subrev_u32 v14, 6, v13')
    e.i(f'v_min_u32 v13, v13, v14')
    e.i(f'v_lshlrev_b32 v13, 7, v13')
    e.i(f'v_and_b32 v14, 31, v{L}')
    e.i(f'v_lshl_add_u32 v13, v14, 2, v13')
    e.i(f's_lshl_b32 s44, s40, 1') if False else None
    e.i(f's_lshl_b32 s41, s40, 1')
    e.i(f's_cmp_lt_u32 s{sWV}, 3')
    e.i(f's_cbranch_scc0 Lffn_nobias_ld')
    e.i(f'buffer_load_dword v34, v13, s[{sB1}:{sB1+3}], s41 offen')
    e.label('Lffn_nobias_ld')
    dma_item(0)
    if cfg.startprio: e.i('s_setprio 2')
    dma_item(1)
    if cfg.startprio: e.i('s_setprio 0')
    for b in range(3, 6): xdma(b, 4*SLOT + (b-3)*16384)
    if cfg.prostamps: stamp('issued')
    for i in range(3):
        e.i(f's_mul_i32 s41, s{sWV}, 24')
        e.i(f's_add_u32 s41, s41, {8*i}')
        e.i(f's_lshr_b32 s42, s41, 6')
        e.i(f's_and_b32 s41, s41, 63')
        e.i(f's_add_u32 s41, s41, s40')
        e.i(f's_add_u32 s42, s42, s{sROT}')
        for kb in range(2):
            e.i(f's_add_u32 s{sOFF}, s42, {3*kb}')
            e.i(f's_sub_u32 s{sSTO}, s{sOFF}, 6')
            e.i(f's_min_u32 s{sOFF}, s{sOFF}, s{sSTO}')
            e.i(f's_lshl_b32 s{sOFF}, s{sOFF}, 6')
            e.i(f's_add_u32 s{sOFF}, s{sOFF}, s41')
            e.i(f's_mul_i32 s{sR2+3*kb+i}, s{sOFF}, 1152')
    for dp in range(9):
        e.i(f's_add_u32 s42, s43, {dp}')
        e.i(f's_sub_u32 s41, s42, 9')
        e.i(f's_min_u32 s42, s42, s41')
        e.i(f's_lshl_b32 s{sD2+dp}, s42, 7')
    e.i(f's_lshl_b32 s42, s{sT}, 2')
    e.i(f's_add_u32 s42, s42, s{sMI}')
    e.i(f's_mul_i32 s42, s42, 18')
    e.i(f's_add_u32 s42, s42, s{sP}')
    e.i(f's_mul_i32 s42, s42, {NCH}')
    e.i(f's_add_u32 s42, s42, s{sC}')
    e.i(f's_lshl_b32 s{sSTO}, s42, 11')
    e.i(f's_add_u32 s{sSTO}, s{sSTO}, {WS_PART}')
    e.i(f's_mul_i32 s42, s{sT}, {9*12}')
    e.i(f's_add_u32 s42, s42, s{sC}')
    e.i(f's_lshl_b32 s42, s42, 8')
    e.i(f's_add_u32 s42, s42, {WS_FLAG}')
    e.i(f's_cmp_eq_u32 s{sWV}, 0')
    e.i(f's_cselect_b32 s{sFLB}, s42, 0x70000000')
    e.i(f'v_lshrrev_b32 v15, 5, v{L}')
    e.i(f's_lshl_b32 s42, s{sP}, 7')
    e.i(f's_add_u32 s42, s42, {LDS_BIAS}')
    e.i(f'v_lshl_add_u32 v{vBIAS}, v15, 4, s42')
    e.i(f'v_and_b32 v13, 15, v{L}')
    e.i(f'v_lshrrev_b32 v14, 2, v13')
    e.i(f'v_lshrrev_b32 v0, 3, v13')
    e.i(f'v_xor_b32 v0, s{sP}, v0')
    e.i(f'v_lshlrev_b32 v0, 6, v0')
    e.i(f'v_lshrrev_b32 v{vA0}, 4, v{L}')
    e.i(f'v_and_b32 v{vA0}, 1, v{vA0}')
    e.i(f'v_lshl_add_u32 v0, v{vA0}, 5, v0')
    e.i(f'v_and_b32 v{vA0}, 3, v13')
    e.i(f'v_lshl_add_u32 v0, v{vA0}, 3, v0')
    e.i(f'v_lshl_add_u32 v{vA0}, v15, 3, v14')
    e.i(f'v_lshl_add_u32 v{vPAT1}, v{vA0}, 7, v0')
    e.i(f'v_lshl_add_u32 v{vA0}, v15, 2, v14')
    e.i(f'v_lshl_add_u32 v{vPAT2}, v{vA0}, 7, v0')
    e.i(f'v_and_b32 v13, 31, v{L}')
    e.i(f'v_lshrrev_b32 v14, 1, v13')
    e.i(f'v_and_b32 v14, 7, v14')
    e.i(f'v_xor_b32 v14, v14, v15')
    e.i(f'v_lshlrev_b32 v14, 4, v14')
    e.i(f's_lshl_b32 s42, s{sMI}, 12')
    e.i(f'v_lshl_add_u32 v13, v13, 7, v14')
    e.i(f'v_add_u32 v{vST}, s42, v13')
    def xaddr(region):
        for tl in range(4):
            e.valu(f'v_xor_b32 v{tmp[tl]}, {32*tl}, v{vST}', dst=[tmp[tl]])
            if region:
                e.valu(f'v_add_u32 v{tmp[tl]}, {region}, v{tmp[tl]}', dst=[tmp[tl]])
    def xread(t):
        g = t // 12; tt = t % 12
        e.lds(f'ds_read_b128 v[{XF+4*t}:{XF+4*t+3}], v{tmp[tt & 3]} offset:{(tt >> 2)*16384}', ('x', t))
    if cfg.prostamps: stamp('setup done')
    if cfg.prostamps:
        e.wait_vm(('xd', 0, 0)); stamp('first landed')
    e.wait_vm(('xd', 2, 1))
    if cfg.prostamps: stamp('XA landed')
    e.i('s_barrier')
    stamp('Ba')
    xaddr(0)
    for t in range(12): xread(t)
    e.wait_vm(('dma', 0, 0))
    e.i(f's_cmp_lt_u32 s{sWV}, 3')
    e.i(f's_cbranch_scc0 Lffn_nobias_st')
    e.i('v_lshlrev_b32 v36, 16, v34')
    e.i('v_and_b32 v37, 0xffff0000, v34')
    e.i(f'v_lshlrev_b32 v35, 3, v{L}')
    e.i(f's_lshl_b32 s42, s{sWV}, 9')
    e.i(f's_add_u32 s42, s42, {LDS_BIAS}')
    e.i(f'v_add_u32 v35, s42, v35')
    e.i('ds_write_b64 v35, v[36:37]')
    e.label('Lffn_nobias_st')
    e.i('s_waitcnt lgkmcnt(0)')
    e.lq = []; e.lds_done.update(('x', t) for t in range(12))
    e.wait_vm(('dma', 1, 2))
    e.i('s_barrier')
    stamp('Bb')
    for b in range(6, 9): xdma(b, (b-6)*16384)

    beats = [(s, b) for s in range(36) for b in range(12)]
    PD = 3
    NOPREF = {2, 3}
    def addr_reg(s, partner=False):
        if s < 18: return (vA0, vA1)[s & 1]
        return ((vA2, vA3) if partner else (vA0, vA1))[s & 1]
    addr_set = set()
    def ensure_addr(s):
        if s in addr_set or s >= 36: return
        addr_set.add(s)
        base = slot[s]*SLOT
        e.valu(f'v_add_u32 v{addr_reg(s)}, {base}, v{vPAT1}', dst=[addr_reg(s)])
        if s >= 18:
            e.valu(f'v_add_u32 v{addr_reg(s, True)}, {base}, v{vPAT2}', dst=[addr_reg(s, True)])
    def p2_beat(b):
        return b >= 6, (b % 6) // 2, b % 2
    issued = set()
    def issue_reads(gb):
        if gb >= len(beats) or gb in issued: return
        issued.add(gb)
        s, b = beats[gb]
        fr = AF + 4*(gb % 4)
        if s < 18:
            a = addr_reg(s); o1 = b*2048; o2 = o1 + 512
        else:
            partner, u, tp = p2_beat(b)
            a = addr_reg(s, partner); o1 = u*8192 + tp*2048; o2 = o1 + 1024
        e.lds(f'ds_read_b64_tr_b16 v[{fr}:{fr+1}], v{a} offset:{o1}', ('af', gb, 0))
        e.lds(f'ds_read_b64_tr_b16 v[{fr+2}:{fr+3}], v{a} offset:{o2}', ('af', gb, 1))
    def bias_read(tile, j):
        acc = ACC[tile & 1]
        e.lds(f'ds_read_b128 v[{acc+4*j}:{acc+4*j+3}], v{vBIAS} offset:{256*tile + 32*j}', ('bias', tile, j))
    def gelu_ops(tile):
        acc = ACC[tile & 1]
        ops = []
        for pr in range(8):
            a = acc + 2*pr; b = a + 1
            t0, t1 = (tmp[0], tmp[1]) if pr % 2 == 0 else (tmp[2], tmp[3])
            h = HOWN + 8*tile + pr
            seq = [
                (f'v_mul_f32_e32 v{t0}, v{a}, v{a}', [t0], [a], False),
                (f'v_mul_f32_e32 v{t1}, v{b}, v{b}', [t1], [b], False),
                (f'v_fma_f32 v{t0}, v{t0}, s{sGC1}, v{vC0}', [t0], [t0], False),
                (f'v_fma_f32 v{t1}, v{t1}, s{sGC1}, v{vC0}', [t1], [t1], False),
                (f'v_mul_f32_e32 v{t0}, v{t0}, v{a}', [t0], [t0, a], False),
                (f'v_mul_f32_e32 v{t1}, v{t1}, v{b}', [t1], [t1, b], False),
                (f'v_exp_f32_e32 v{t0}, v{t0}', [t0], [t0], True),
                (f'v_exp_f32_e32 v{t1}, v{t1}', [t1], [t1], True),
                (f'v_add_f32_e32 v{t0}, 1.0, v{t0}', [t0], [t0], False),
                (f'v_add_f32_e32 v{t1}, 1.0, v{t1}', [t1], [t1], False),
                (f'v_rcp_f32_e32 v{t0}, v{t0}', [t0], [t0], True),
                (f'v_rcp_f32_e32 v{t1}, v{t1}', [t1], [t1], True),
                (f'v_mul_f32_e32 v{t0}, v{t0}, v{a}', [t0], [t0, a], False),
                (f'v_mul_f32_e32 v{t1}, v{t1}, v{b}', [t1], [t1, b], False),
                (f'v_cvt_pk_bf16_f32 v{h}, v{t0}, v{t1}', [h], [t0, t1], False),
            ]
            for (txt, d, s_, tr) in (seq if not cfg.nogelu else seq[-1:]):
                ops.append(lambda txt=txt, d=d, s_=s_, tr=tr: e.valu(txt, dst=d, src=s_, trans=tr))
            if pr % 2 == 1 and tile + 2 < 6:
                ops.append(lambda j=pr // 2: bias_read(tile + 2, j))
        return ops
    def store_ops(dp):
        acc = ACCP[dp & 1]
        ops = []
        for half in range(2):
            for k in range(4):
                r = acc + 8*half + 2*k
                d = PK + 4*half + k
                ops.append(lambda r=r, d=d: e.valu(f'v_cvt_pk_bf16_f32 v{d}, v{r}, v{r+1}', dst=[d], src=[r, r+1]))
            def st(half=half):
                if half == 0:
                    e.i(f's_mul_i32 s{sOFF}, s{sD2+dp}, {2*NCH*2048//128}')
                    e.i(f's_add_u32 s{sOFF}, s{sOFF}, s{sSTO}')
                else:
                    e.i(f's_mul_i32 s{sOFF}, s{sD2+dp}, {2*NCH*2048//128}')
                    e.i(f's_add_u32 s{sOFF}, s{sOFF}, s{sSTO}')
                if not cfg.nostore:
                    e.vm(f'buffer_store_dwordx4 v[{PK+4*half}:{PK+4*half+3}], v{vST}, s[{sWS}:{sWS+3}], s{sOFF} offen offset:{1024*half} {cfg.stflag}', ('st', dp, half))
            ops.append(st)
        return ops
    K = cfg.kffn if cfg.fuse else 0
    ufill, utail = ffn_unit.build(e, K, sWV, sC, sT, sWS, sX, sNONCE, vLANE) if K else ({}, [])
    flags_sent = set()
    st_waited = set()
    def send_flag(dp):
        if dp in flags_sent: return
        assert dp in st_waited, dp
        flags_sent.add(dp)
        e.i(f's_mul_i32 s{sOFF}, s{sD2+dp}, 24')
        e.i(f's_add_u32 s{sOFF}, s{sOFF}, s{sFLB}')
        e.vm(f'buffer_store_dword v{vNON}, v{vZERO}, s[{sWS}:{sWS+3}], s{sOFF} offen sc1', ('flag', dp))
    for j in range(4): bias_read(0, j)
    for j in range(4): bias_read(1, j)
    ensure_addr(0)
    e.nop(1)
    for gb in range(PD): issue_reads(gb)
    fill = []
    dma_list = []
    dp_done = {}
    for idx, (dp, kb) in enumerate(P2):
        if kb == 1: dp_done[18 + idx + 1] = dp
    flag_at = {}
    for st_s, dp_ in dp_done.items():
        fs = st_s + cfg.flaglag
        if fs > 35: fs = 35 if st_s + 2 <= 35 else None
        if fs is not None: flag_at.setdefault(fs, []).append(dp_)
    for gb, (s, b) in enumerate(beats):
        if b == 0:
            e.comment(f'---- stage {s} (slot {slot[s]}) ----')
            if s in cfg.stamps: stamp('stage')
            dma_list = [(it, i) for it in issue[s] for i in range(3)]
            if s in NOPREF:
                ensure_addr(s)
                for k in range(PD): issue_reads(gb + k)
            ensure_addr(s + 1)
            if s == 1:
                xaddr(4*SLOT)
                for t in range(12, 24): xread(t)
            if s == 2:
                xaddr(0)
                for t in range(24, 36): xread(t)
            if s < 18 and s % 3 == 0 and s >= 3:
                fill = gelu_ops(s // 3 - 1); nfill = len(fill); fill_span = (2, 34); fill_base = gb
            if s == 18:
                fill = gelu_ops(5); nfill = len(fill); fill_span = (2, 21); fill_base = gb
            if s in dp_done:
                assert not fill
                fill = store_ops(dp_done[s]); nfill = len(fill); fill_span = (3, 10); fill_base = gb
            if s == 16:
                e.valu(f'v_lshlrev_b32 v{vST}, 4, v{vLANE}', dst=[vST])
                e.i(f's_mul_i32 s42, s{sMI}, 6144')
                e.i(f's_mul_i32 s43, s{sP}, {(ex[1]-ex[0])*SLOT}')
                e.i(f's_add_u32 s41, s43, {ex[0]*SLOT}')
                e.i(f's_sub_u32 s43, {ex[1]*SLOT}, s43')
                e.i(f's_add_u32 s41, s41, s42')
                e.i(f's_add_u32 s43, s43, s42')
                e.valu(f'v_add_u32 v{vBIAS}, s41, v{vST}', dst=[vBIAS])
                e.valu(f'v_add_u32 v{vW1}, s43, v{vST}', dst=[vW1])
        if cfg.prio and b % 3 == 0:
            e.i(f's_setprio {3 - b // 3}')
        if cfg.looptest and b == 0 and s in (6, 9):
            if s == 6:
                e.i('s_mov_b32 s101, 0'); e.label('Lrep6')
            else:
                e.i('s_add_u32 s101, s101, 1'); e.i('s_cmp_lt_u32 s101, 2'); e.i('s_cbranch_scc1 Lrep6')
        e.wait_lds(('af', gb, 1))
        fr = AF + 4*(gb % 4)
        if s < 18:
            tile = s // 3; t = (s % 3)*12 + b
            if tile == 0: e.wait_lds(('x', t))
            acc = ACC[tile & 1]
            if t == 0:
                for j in range(4): e.wait_lds(('bias', tile, j))
            xb = XF + 4*t
            e.mfma(f'v_mfma_f32_32x32x16_bf16 v[{acc}:{acc+15}], v[{fr}:{fr+3}], v[{xb}:{xb+3}], v[{acc}:{acc+15}]',
                   list(range(acc, acc+16)), list(range(fr, fr+4)) + list(range(xb, xb+4)))
        else:
            dp, kb = P2[s-18]
            partner, u, tp = p2_beat(b)
            fp = 3*kb + u
            hb = (HPART if partner else HOWN) + 8*fp + 4*tp
            if partner and (s == 18 or s == 20):
                e.wait_lds(('exr', fp*2 + tp))
            acc = ACCP[dp & 1]
            c = '0' if (kb == 0 and b == 0) else f'v[{acc}:{acc+15}]'
            e.mfma(f'v_mfma_f32_32x32x16_bf16 v[{acc}:{acc+15}], v[{fr}:{fr+3}], v[{hb}:{hb+3}], {c}',
                   list(range(acc, acc+16)), list(range(fr, fr+4)) + list(range(hb, hb+4)))
        nb = gb + PD
        if nb < len(beats) and not (beats[nb][0] in NOPREF and beats[nb][0] != s):
            issue_reads(nb)
        if s == 1 and b == 3:
            e.wait_lds(('x', 23))
            e.i('s_barrier')
            dma_list += [(3, i) for i in range(3)] + [(4, i) for i in range(3)]
        if b == 0: ndma0 = len(dma_list); ndma_done = 0
        if s == 1 and b == 3: ndma0 = len(dma_list) ; ndma_done = 0; dma_b0 = 3
        elif b == 0: dma_b0 = 0
        if dma_list:
            if cfg.dmaspread:
                span = 10 - dma_b0
                tgt = ndma0 if b >= 10 else -(-ndma0 * (b - dma_b0) // span) if b > dma_b0 else 0
                if ndma0 <= 3:
                    pts = cfg.dmabeats
                    tgt = sum(1 for p_ in pts[:ndma0] if b >= p_)
                    if s < 3: tgt = ndma0 if b >= dma_b0 + 2 else min(ndma0, b - dma_b0 + 1)
                while ndma_done < tgt and dma_list:
                    dma_one(*dma_list.pop(0)); ndma_done += 1
            else:
                k = -(-len(dma_list) // max(1, 7 - b)) if b < 7 else len(dma_list)
                for _ in range(min(k, len(dma_list))):
                    dma_one(*dma_list.pop(0))
        if cfg.prefetch and s in (4, 5) and b == 8:
            k = s - 4
            e.i(f's_and_b32 s41, s{sT}, 7')
            e.i(f's_lshl_b32 s41, s41, 3')
            e.i(f's_add_u32 s41, s41, s{sWV}')
            e.i(f's_lshl_b32 s41, s41, 1')
            e.i(f's_add_u32 s41, s41, {k}')
            e.i(f's_lshl_b32 s41, s41, 12')
            e.i(f's_mul_i32 s42, s{sC}, {FC*1152}')
            e.i(f's_add_u32 s41, s41, s42')
            e.i(f's_min_u32 s41, s41, {F*D*2 - 4096}')
            e.valu(f'v_lshlrev_b32 v{vA3}, 6, v{vLANE}', dst=[vA3])
            e.vm(f'buffer_load_dword v{vA2}, v{vA3}, s[{sW2}:{sW2+3}], s41 offen', ('pf', k))
        if cfg.tlbwarm and s == cfg.tlbwarm and b == 8:
            e.valu(f'v_min_u32 v{vA3}, 9, v{vLANE}', dst=[vA3])
            e.valu(f'v_mul_u32_u24 v{vA3}, {2*NCH*2048}, v{vA3}', dst=[vA3])
            e.vm(f'buffer_load_dword v{vA2}, v{vA3}, s[{sWS}:{sWS+3}], s{sSTO} offen', ('tw', 0))
            e.valu(f'v_mov_b32 v{vA3}, 0', dst=[vA3])
            e.vm(f'buffer_load_dword v{vA2}, v{vA3}, s[{sWS}:{sWS+3}], s{sFLB} offen', ('tw', 1))
            e.valu(f'v_min_u32 v{vA3}, 6, v{vLANE}', dst=[vA3])
            e.valu(f'v_mul_u32_u24 v{vA3}, {64*1152}, v{vA3}', dst=[vA3])
            e.i(f's_mul_i32 s41, s{sC}, {FC*1152}')
            e.vm(f'buffer_load_dword v{vA2}, v{vA3}, s[{sW2}:{sW2+3}], s41 offen', ('tw', 2))
        if cfg.fuse and s == 17 and b == 1:
            e.valu(f'v_mov_b32 v{vZERO}, 0', dst=[vZERO])
            e.vm(f'buffer_load_dword v{vNON}, v{vZERO}, s[{sDB}:{sDB+3}], 0 offen offset:{DBG_NONCE} sc1', ('nonce',))
        if cfg.fuse and not cfg.nossm and s == 20 and b == 8:
            e.wait_vm(('nonce',))
            e.label('Lffn_npoll')
            e.i(f'v_readfirstlane_b32 s{sNONCE}, v{vNON}')
            e.i(f's_cmp_lg_u32 s{sNONCE}, 0')
            e.i('s_cbranch_scc1 Lffn_nok')
            e.i(f'buffer_load_dword v{vNON}, v{vZERO}, s[{sDB}:{sDB+3}], 0 offen offset:{DBG_NONCE} sc1')
            e.i('s_waitcnt vmcnt(0)')
            e.i('s_branch Lffn_npoll')
            e.label('Lffn_nok')
            e.valu(f'v_lshlrev_b32 v{vZERO}, 2, v{vLANE}', dst=[vZERO])
        if cfg.fuse and b == 1:
            for dp_ in flag_at.get(s, []): send_flag(dp_)
        if s == 16 and b % 2 == 0:
            k = b // 2
            r = HOWN + 4*k
            e.lds(f'ds_write_b128 v{vBIAS}, v[{r}:{r+3}] offset:{1024*k}', ('exw', k))
        if s == 17 and b < 6:
            r = HPART + 4*b
            e.lds(f'ds_read_b128 v[{r}:{r+3}], v{vW1} offset:{1024*b}', ('exr', b))
        if s == 19 and b in (0, 2, 4, 6):
            k = b // 2
            r = HOWN + 24 + 4*k
            e.lds(f'ds_write_b128 v{vBIAS}, v[{r}:{r+3}] offset:{1024*k}', ('exw', 6 + k))
        if s == 20 and b < 6:
            r = HPART + 24 + 4*b
            e.lds(f'ds_read_b128 v[{r}:{r+3}], v{vW1} offset:{1024*b}', ('exr', 6 + b))
        if s in ufill and ufill[s]:
            lst = ufill[s]
            if b == 0: ucount = len(lst)
            tgt = ucount if b >= 10 else (ucount * (b + 1)) // 11
            while ucount - len(lst) < tgt:
                lst.pop(0)()
        if fill:
            rel = gb - fill_base
            lo, hi = fill_span
            if rel >= lo:
                tgt = nfill if rel >= hi else (nfill * (rel - lo + 1)) // (hi - lo + 1)
                donec = nfill - len(fill)
                while donec < tgt:
                    fill.pop(0)(); donec += 1
        if s == 19 and b == 11:
            assert not fill
            for k in (4, 5):
                r = HOWN + 24 + 4*k
                e.lds(f'ds_write_b128 v{vBIAS}, v[{r}:{r+3}] offset:{1024*k}', ('exw', 6 + k))
        if s == 16 and b == 11:
            e.i(f's_lshl_b32 s42, s{sP}, 12')
            e.i(f's_xor_b32 s43, s42, 4096')
            e.valu(f'v_add_u32 v{vPAT1}, s42, v{vPAT2}', dst=[vPAT1])
            e.valu(f'v_add_u32 v{vPAT2}, s43, v{vPAT2}', dst=[vPAT2])
        if b == 11:
            assert not dma_list
            if s in cfg.prestamps: stamp('prewait')
            if s == 0:
                e.wait_vm(('xd', 5, 1))
            elif s == 1:
                e.wait_vm(('dma', 2, 2)); e.wait_vm(('xd', 8, 1))
            elif s + 2 < 36:
                e.wait_vm(('dma', s + 2, 2))
            if s in (16, 19):
                e.wait_lds(('exw', 5 if s == 16 else 11))
            if s == 17: e.wait_lds(('exr', 5))
            if s == 20: e.wait_lds(('exr', 11))
            if s == 2: e.wait_lds(('x', 35))
            if cfg.fuse:
                for dp_ in flag_at.get(s + 1, []):
                    if not cfg.nostore: e.wait_vm(('st', dp_, 1))
                    st_waited.add(dp_)
            if s in cfg.prestamps: stamp('postwait')
            if s < 35 and not (cfg.nobar and s >= 3):
                e.i('s_barrier')
    stamp('mainloop end')
    for op in store_ops(8): op()
    if cfg.fuse and K == 0:
        e.wait_vm_all()
        e.i('s_barrier')
        for dp in range(9):
            st_waited.add(dp); send_flag(dp)
        e.wait_vm_all()
    elif cfg.fuse:
        e.i(f's_cmp_lt_u32 s{ffn_unit.U.sU}, {8*K}')
        e.i('s_cbranch_scc0 Lffn_nounit')
        for op in utail: op()
        e.label('Lffn_nounit')
        stamp('pre done')
        e.i('s_waitcnt vmcnt(0) lgkmcnt(0)')
        e.vq = []; e.lq = []
        e.i('s_barrier')
        for dp in range(9):
            st_waited.add(dp); send_flag(dp)
        ffn_unit.tail(e, K, sT, sWS, sNONCE, cfg, stamp, utail)
    else:
        e.wait_vm_all()
    stamp('end')
    if cfg.prof:
        e.i('s_memrealtime s[100:101]')
        e.i('s_waitcnt lgkmcnt(0)')
        e.i(f's_cmp_eq_u32 s{sWV}, 0')
        e.i('s_cbranch_scc0 Lffn_noprof')
        e.i(f's_lshl_b32 s42, s2, 7')
        e.i(f's_add_u32 s42, s42, {WS_PROF}')
        e.i(f'v_mov_b32 v14, 0')
        for k in range(nprof[0]):
            e.i(f'v_mov_b32 v13, s{sPROF+2*k}')
            e.i(f'buffer_store_dword v13, v14, s[{sWS}:{sWS+3}], s42 offen offset:{4*k}')
        e.i(f'v_mov_b32 v13, s98')
        e.i(f'buffer_store_dword v13, v14, s[{sWS}:{sWS+3}], s42 offen offset:{4*30}')
        e.i(f'v_mov_b32 v13, s100')
        e.i(f'buffer_store_dword v13, v14, s[{sWS}:{sWS+3}], s42 offen offset:{4*31}')
        e.i('s_waitcnt vmcnt(0)')
        e.label('Lffn_noprof')
    e.i('s_endpgm')
```

```python
from common import *

class U:
    sU = 40; sDT = 44; sPB = 45; sOB = 46; sMIu = 47; sLD = 48; sYO = 49
    sOUT = 8; sB2 = 24
    QG = 202; BR = 220; QR = 32; YS = 40; YR = 48; YU = 32; A = 240
    G = 228; OMG = 229; QO = 230; L16 = 231; YA = 232; TR = 233; LW = 234; T0 = 235; T1 = 236; T2 = 237; FL = 238
BIG = 0x70000000

def build(e, K, sWV, sC, sT, sWS, sX, sNONCE, vLANE):
    u = U
    def V(txt, dst=(), src=()):
        return lambda: e.valu(txt, dst=list(dst), src=list(src))
    def Sx(*txts):
        def f():
            for t in txts: e.i(t)
        return f
    def setup():
        ops = []
        ops += [Sx(f's_mov_b32 s{u.sOUT}, s4'), Sx(f's_and_b32 s{u.sOUT+1}, s5, 0xffff'), Sx(f's_mov_b32 s{u.sOUT+2}, {S*D*2}'), Sx(f's_mov_b32 s{u.sOUT+3}, 0x00020000')]
        ops += [Sx(f's_mov_b32 s{u.sB2}, s6'), Sx(f's_and_b32 s{u.sB2+1}, s7, 0xffff'), Sx(f's_mov_b32 s{u.sB2+2}, {D*2}'), Sx(f's_mov_b32 s{u.sB2+3}, 0x00020000')]
        ops += [Sx(f's_mul_i32 s{u.sU}, s{sWV}, 12'), Sx(f's_add_u32 s{u.sU}, s{u.sU}, s{sC}')]
        ops += [Sx(f's_lshr_b32 s41, s{u.sU}, 3'), Sx(f's_add_u32 s41, s41, {9-K}'), Sx(f's_and_b32 s42, s{sT}, 7'), Sx(f's_add_u32 s41, s41, s42'),
                Sx(f's_sub_u32 s42, s41, 9'), Sx(f's_min_u32 s41, s41, s42'), Sx(f's_sub_u32 s42, s41, 9'), Sx(f's_min_u32 s41, s41, s42'),
                Sx(f's_lshl_b32 s41, s41, 1'), Sx(f's_and_b32 s42, s{u.sU}, 1'), Sx(f's_add_u32 s{u.sDT}, s41, s42'),
                Sx(f's_lshr_b32 s{u.sMIu}, s{u.sU}, 1'), Sx(f's_and_b32 s{u.sMIu}, s{u.sMIu}, 3')]
        ops += [Sx(f's_lshl_b32 s41, s{sT}, 2'), Sx(f's_add_u32 s41, s41, s{u.sMIu}')]
        ops += [Sx(f's_mul_i32 s{u.sOB}, s41, {32*1152}'), Sx(f's_lshl_b32 s42, s{u.sDT}, 6'), Sx(f's_add_u32 s{u.sOB}, s{u.sOB}, s42')]
        ops += [Sx(f's_mul_i32 s{u.sPB}, s41, 18'), Sx(f's_add_u32 s{u.sPB}, s{u.sPB}, s{u.sDT}'), Sx(f's_mul_i32 s{u.sPB}, s{u.sPB}, {NCH*2048}'), Sx(f's_add_u32 s{u.sPB}, s{u.sPB}, {WS_PART}')]
        ops += [Sx(f's_lshl_b32 s{u.sYO}, s{u.sDT}, 17'), Sx(f's_lshl_b32 s43, s41, 6'), Sx(f's_add_u32 s{u.sYO}, s{u.sYO}, s43'), Sx(f's_add_u32 s{u.sYO}, s{u.sYO}, {WS_Y2}')]
        ops += [Sx(f's_lshl_b32 s43, s41, 7'), Sx(f's_add_u32 s43, s43, {WS_G}')]
        ops += [Sx(f's_cmp_lt_u32 s{u.sU}, {8*K}',
                   f's_cselect_b32 s{u.sOB}, s{u.sOB}, {BIG}', f's_cselect_b32 s{u.sYO}, s{u.sYO}, {BIG}', f's_cselect_b32 s43, s43, {BIG}',
                   f's_cselect_b32 s42, s42, {BIG}')]
        ops += [Sx(f's_lshl_b32 s{u.sLD}, s{sWV}, 11'), Sx(f's_add_u32 s{u.sLD}, s{u.sLD}, {LDS_BIAS}')]
        ops += [Sx(f's_mov_b32 s33, s43', f's_mov_b32 s34, s42')]
        return ops
    def loads():
        ops = []
        ops += [V(f'v_lshrrev_b32 v{u.T0}, 5, v{vLANE}', [u.T0]), V(f'v_and_b32 v{u.T1}, 31, v{vLANE}', [u.T1]),
                V(f'v_mul_u32_u24 v{u.QO}, 1152, v{u.T1}', [u.QO]), V(f'v_lshl_add_u32 v{u.QO}, v{u.T0}, 4, v{u.QO}', [u.QO]),
                V(f'v_lshlrev_b32 v{u.L16}, 4, v{vLANE}', [u.L16]),
                V(f'v_lshlrev_b32 v{u.T1}, 2, v{u.T1}', [u.T1]), V(f'v_lshlrev_b32 v{u.T2}, 3, v{u.T0}', [u.T2])]
        ops += [lambda: e.vm(f'buffer_load_dword v{u.G}, v{u.T1}, s[{sWS}:{sWS+3}], s33 offen sc1', ('u', 'g'))]
        for j in range(4):
            ops += [lambda j=j: e.vm(f'buffer_load_dwordx2 v[{u.BR+2*j}:{u.BR+2*j+1}], v{u.T2}, s[{u.sB2}:{u.sB2+3}], s34 offen offset:{16*j}', ('u', 'b', j))]
        for jj in range(2):
            ops += [lambda jj=jj: e.vm(f'buffer_load_dwordx4 v[{u.QR+4*jj}:{u.QR+4*jj+3}], v{u.QO}, s[{sX}:{sX+3}], s{u.sOB} offen offset:{32*jj}', ('u', 'q', jj))]
        return ops
    def cfload():
        ops = []
        ops += [Sx(f's_lshl_b32 s41, s{u.sDT}, 5'), Sx(f's_add_u32 s42, s41, 31'), Sx(f's_mul_i32 s41, s41, 7282'), Sx(f's_lshr_b32 s41, s41, 16'),
                Sx(f's_mul_i32 s42, s42, 7282'), Sx(f's_lshr_b32 s42, s42, 16'),
                V(f'v_add_u32 v{u.FL}, s41, v{vLANE}', [u.FL]), V(f'v_min_u32 v{u.FL}, s42, v{u.FL}', [u.FL]), V(f'v_lshlrev_b32 v{u.FL}, 8, v{u.FL}', [u.FL]),
                V(f'v_add_u32 v{u.FL}, {WS_FLAG3}, v{u.FL}', [u.FL]),
                lambda: e.vm(f'buffer_load_dword v{u.LW}, v{u.FL}, s[{sWS}:{sWS+3}], 0 offen sc1', ('u', 'cf'))]
        return ops
    def consts():
        ops = [V(f'v_and_b32 v{u.T1}, 31, v{vLANE}', [u.T1]), V(f'v_lshrrev_b32 v{u.T2}, 5, v{vLANE}', [u.T2]), V(f'v_lshlrev_b32 v{u.T2}, 2, v{u.T2}', [u.T2]),
               V(f'v_sub_u32 v{u.T1}, v{u.T1}, v{u.T2}', [u.T1]), V(f'v_mov_b32 v{u.YA}, 0x3f80', [u.YA]), V(f'v_mov_b32 v{u.TR}, 0x3f800000', [u.TR])]
        for m in range(2):
            for k in range(4):
                r = u.A + 4*m + k; j = 2*k
                t_lo = 16*m + 8*(j >> 2) + (j & 3)
                def grp(r=r, t_lo=t_lo):
                    e.valu(f'v_cmp_eq_u32 vcc, {t_lo}, v{u.T1}'); e.i('s_nop 1'); e.valu(f'v_cndmask_b32 v{r}, 0, v{u.YA}, vcc', dst=[r])
                    e.valu(f'v_cmp_eq_u32 vcc, {t_lo+1}, v{u.T1}'); e.i('s_nop 1'); e.valu(f'v_cndmask_b32 v{r}, v{r}, v{u.TR}, vcc', dst=[r])
                ops.append(grp)
        return ops
    def part_a():
        ops = []
        def chk():
            e.wait_vm(('u', 'cf'))
            e.label('Lffn_cpoll')
            e.i(f'v_cmp_eq_u32 vcc, s{sNONCE}, v{u.LW}')
            e.i('s_nop 1')
            e.i('s_cmp_eq_u64 vcc, -1')
            e.i('s_cbranch_scc1 Lffn_cready')
            e.i('s_sleep 8')
            e.i(f'buffer_load_dword v{u.LW}, v{u.FL}, s[{sWS}:{sWS+3}], 0 offen sc1')
            e.i('s_waitcnt vmcnt(0)')
            e.i('s_add_u32 s39, s39, 1'); e.i('s_cmp_lt_u32 s39, 0x40000'); e.i(f's_cbranch_scc1 Lffn_cpoll')
            e.label('Lffn_cready')
        ops.append(chk)
        ops += [V(f'v_lshrrev_b32 v{u.YA}, 2, v{vLANE}', [u.YA]), V(f'v_lshlrev_b32 v{u.YA}, 12, v{u.YA}', [u.YA]),
                V(f'v_and_b32 v{u.T1}, 3, v{vLANE}', [u.T1]), V(f'v_lshl_add_u32 v{u.YA}, v{u.T1}, 4, v{u.YA}', [u.YA]),
                lambda: e.vm(f'buffer_load_dwordx4 v[{u.YS}:{u.YS+3}], v{u.YA}, s[{sWS}:{sWS+3}], s{u.sYO} offen sc1', ('u', 'y', 0)),
                Sx(f's_add_u32 s41, s{u.sYO}, {16*4096}'),
                lambda: e.vm(f'buffer_load_dwordx4 v[{u.YS+4}:{u.YS+7}], v{u.YA}, s[{sWS}:{sWS+3}], s41 offen sc1', ('u', 'y', 1))]
        return ops
    def part_b():
        ops = []
        ops.append(lambda: e.wait_vm(('u', 'q', 1)))
        for jj in range(2):
            ops += [V(f'v_permlane32_swap_b32 v{u.QR+4*jj}, v{u.QR+4*jj+2}'), V(f'v_permlane32_swap_b32 v{u.QR+4*jj+1}, v{u.QR+4*jj+3}')]
        ops += [V(f'v_sub_f32 v{u.OMG}, 1.0, v{u.G}', [u.OMG])]
        for j in range(4):
            for k in range(2):
                q = u.QR + 2*j + k
                ops += [V(f'v_lshlrev_b32 v{u.QG+4*j+2*k}, 16, v{q}', [u.QG+4*j+2*k]), V(f'v_and_b32 v{u.QG+4*j+2*k+1}, 0xffff0000, v{q}', [u.QG+4*j+2*k+1])]
        for r in range(16):
            ops += [V(f'v_mul_f32 v{u.QG+r}, v{u.QG+r}, v{u.G}', [u.QG+r])]
        return ops
    def part_c():
        ops = [V(f'v_add_u32 v{u.LW}, s{u.sLD}, v{u.L16}', [u.LW]),
               V(f'v_and_b32 v{u.T1}, 15, v{vLANE}', [u.T1]), V(f'v_lshrrev_b32 v{u.TR}, 2, v{u.T1}', [u.TR]),
               V(f'v_lshrrev_b32 v{u.T2}, 5, v{vLANE}', [u.T2]), V(f'v_lshl_add_u32 v{u.TR}, v{u.T2}, 2, v{u.TR}', [u.TR]),
               V(f'v_lshlrev_b32 v{u.TR}, 6, v{u.TR}', [u.TR]), V(f'v_and_b32 v{u.T1}, 3, v{u.T1}', [u.T1]),
               V(f'v_lshl_add_u32 v{u.TR}, v{u.T1}, 3, v{u.TR}', [u.TR]), V(f'v_lshrrev_b32 v{u.T1}, 4, v{vLANE}', [u.T1]),
               V(f'v_and_b32 v{u.T1}, 1, v{u.T1}', [u.T1]), V(f'v_lshl_add_u32 v{u.TR}, v{u.T1}, 5, v{u.TR}', [u.TR]),
               V(f'v_add_u32 v{u.TR}, s{u.sLD}, v{u.TR}', [u.TR])]
        ops += [lambda: e.wait_vm(('u', 'y', 1)),
                lambda: e.lds(f'ds_write_b128 v{u.LW}, v[{u.YS}:{u.YS+3}]', ('u', 'yw', 0)),
                lambda: e.lds(f'ds_write_b128 v{u.LW}, v[{u.YS+4}:{u.YS+7}] offset:1024', ('u', 'yw', 1))]
        return ops
    def part_d():
        ops = [lambda: e.wait_lds(('u', 'yw', 1))]
        for j in range(4):
            ops += [lambda j=j: e.lds(f'ds_read_b64_tr_b16 v[{u.YR+2*j}:{u.YR+2*j+1}], v{u.TR} offset:{512*j}', ('u', 'yr', j))]
        return ops
    def part_e():
        ops = [lambda: e.wait_lds(('u', 'yr', 3))]
        for j in range(4):
            for k in range(2):
                y = u.YR + 2*j + k
                ops += [V(f'v_lshlrev_b32 v{u.YU+4*j+2*k}, 16, v{y}', [u.YU+4*j+2*k]), V(f'v_and_b32 v{u.YU+4*j+2*k+1}, 0xffff0000, v{y}', [u.YU+4*j+2*k+1])]
        for r in range(16):
            ops += [V(f'v_mul_f32 v{u.QG+r}, v{u.QG+r}, v{u.YU+r}', [u.QG+r])]
        return ops
    inloop = {27: setup(), 29: cfload(), 31: part_a(), 33: loads()}
    tail_ops = consts() + part_b() + part_c() + part_d() + part_e()
    return inloop, tail_ops

def tail(e, K, sT, sWS, sNONCE, cfg, stamp, tail_ops):
    u = U
    e.i(f's_cmp_lt_u32 s{u.sU}, {8*K}')
    e.i('s_cbranch_scc1 Lffn_unit')
    e.i('s_waitcnt vmcnt(0)')
    e.i('s_endpgm')
    e.label('Lffn_unit')
    e.i(f's_mul_i32 s53, s{sT}, 9')
    e.i(f's_lshr_b32 s41, s{u.sDT}, 1')
    e.i(f's_add_u32 s53, s53, s41')
    e.i(f's_mul_i32 s53, s53, {12*256}')
    e.i(f's_add_u32 s53, s53, {WS_FLAG}')
    e.i(f'v_min_u32 v12, {NCH-1}, v1')
    e.i(f'v_lshlrev_b32 v12, 8, v12')
    PRf = 64; ACf = 32; OPf = 48
    e.i(f'v_mfma_f32_32x32x16_bf16 v[{ACf}:{ACf+15}], v[{u.A}:{u.A+3}], v[{u.BR}:{u.BR+3}], 0')
    e.i(f'v_mfma_f32_32x32x16_bf16 v[{ACf}:{ACf+15}], v[{u.A+4}:{u.A+7}], v[{u.BR+4}:{u.BR+7}], v[{ACf}:{ACf+15}]')
    e.label('Lffn_fpoll')
    e.i(f'buffer_load_dword v14, v12, s[{sWS}:{sWS+3}], s53 offen sc1')
    e.i('s_waitcnt vmcnt(0)')
    e.i(f'v_cmp_eq_u32 vcc, s{sNONCE}, v14')
    e.i('s_nop 1')
    e.i('s_cmp_eq_u64 vcc, -1')
    e.i('s_cbranch_scc1 Lffn_fready')
    e.i(f's_sleep {cfg.fsleep}')
    e.i('s_add_u32 s39, s39, 1'); e.i('s_cmp_lt_u32 s39, 0x40000'); e.i(f's_cbranch_scc1 Lffn_fpoll')
    e.label('Lffn_fready')
    stamp('fready')
    for i in range(2*NCH):
        if i and i % 4 == 0:
            e.i(f's_add_u32 s{u.sPB}, s{u.sPB}, 4096')
        e.i(f'buffer_load_dwordx4 v[{PRf+4*i}:{PRf+4*i+3}], v{u.L16}, s[{sWS}:{sWS+3}], s{u.sPB} offen offset:{1024*(i%4)} sc1')
    for i in range(2*NCH):
        e.i(f's_waitcnt vmcnt({2*NCH - 1 - i})')
        a_ = u.A + 4*(i & 1)
        e.i(f'v_mfma_f32_32x32x16_bf16 v[{ACf}:{ACf+15}], v[{a_}:{a_+3}], v[{PRf+4*i}:{PRf+4*i+3}], v[{ACf}:{ACf+15}]')
    e.i('s_nop 7'); e.i('s_nop 3')
    for r in range(16):
        e.i(f'v_fma_f32 v{ACf+r}, v{ACf+r}, v{u.OMG}, v{u.QG+r}')
    for j in range(8):
        e.i(f'v_cvt_pk_bf16_f32 v{OPf+j}, v{ACf+2*j}, v{ACf+2*j+1}')
    e.i('s_nop 1')
    for jj in range(2):
        e.i(f'v_permlane32_swap_b32 v{OPf+4*jj}, v{OPf+4*jj+2}')
        e.i(f'v_permlane32_swap_b32 v{OPf+4*jj+1}, v{OPf+4*jj+3}')
    for jj in range(2):
        e.i(f'buffer_store_dwordx4 v[{OPf+4*jj}:{OPf+4*jj+3}], v{u.QO}, s[{u.sOUT}:{u.sOUT+3}], s{u.sOB} offen offset:{32*jj} {cfg.outflag}')
    e.i('s_waitcnt vmcnt(0)')
    e.vq = []
```

```python
from common import *

def gen_final_consts(e, base):
    e.i('v_and_b32 v10, 31, v1')
    e.i('v_lshrrev_b32 v11, 5, v1')
    e.i('v_lshlrev_b32 v11, 2, v11')
    e.i('v_sub_u32 v10, v10, v11')
    e.i('v_mov_b32 v13, 0x3f80')
    e.i('v_mov_b32 v15, 0x3f800000')
    for m in range(2):
        for k in range(4):
            r = base + 4*m + k
            j = 2*k
            t_lo = 16*m + 8*(j >> 2) + (j & 3)
            e.i(f'v_cmp_eq_u32 vcc, {t_lo}, v10')
            e.i('s_nop 1')
            e.i(f'v_cndmask_b32 v{r}, 0, v13, vcc')
            e.i(f'v_cmp_eq_u32 vcc, {t_lo+1}, v10')
            e.i('s_nop 1')
            e.i(f'v_cndmask_b32 v{r}, v{r}, v15, vcc')

def gen_pre_a_issue(e, R, first):
    sWS, sQ, sB2 = R['sWS'], R['sQ'], R['sB2']
    sT, sMI, sDT = R['sT'], R['sMI'], R['sDT']
    t0, t1, t2, t3 = R['tmp']
    ldf = R.get("ldflag", "")
    BR, QR, sPB, sOB = R['BR'], R['QR'], R['sPB'], R['sOB']
    L = 1
    e.i(f's_lshl_b32 s{t0}, s{sT}, 2')
    e.i(f's_add_u32 s{t0}, s{t0}, s{sMI}')
    if first:
        e.i(f'v_lshrrev_b32 v5, 5, v{L}')
        e.i(f'v_and_b32 v4, 31, v{L}')
        e.i(f'v_lshlrev_b32 v7, 2, v4')
        e.i(f's_lshl_b32 s{t1}, s{t0}, 7')
        e.i(f's_add_u32 s{t1}, s{t1}, {WS_G}')
        e.i(f'buffer_load_dword v152, v7, s[{sWS}:{sWS+3}], s{t1} offen {ldf}')
        e.i(f'v_mul_u32_u24 v6, 1152, v4')
        e.i(f'v_lshl_add_u32 v6, v5, 4, v6')
        e.i(f'v_lshlrev_b32 v7, 3, v5')
        e.i(f'v_lshlrev_b32 v2, 4, v{L}')
    e.i(f's_lshl_b32 s{t3}, s{sDT}, 6')
    for j in range(4):
        e.i(f'buffer_load_dwordx2 v[{BR+2*j}:{BR+2*j+1}], v7, s[{sB2}:{sB2+3}], s{t3} offen offset:{16*j}')
    e.i(f's_mul_i32 s{t2}, s{t0}, {32*1152}')
    e.i(f's_add_u32 s{sOB}, s{t2}, s{t3}')
    for jj in range(2):
        e.i(f'buffer_load_dwordx4 v[{QR+4*jj}:{QR+4*jj+3}], v6, s[{sQ}:{sQ+3}], s{sOB} offen offset:{32*jj}')
    e.i(f's_mul_i32 s{t1}, s{t0}, 18')
    e.i(f's_add_u32 s{t1}, s{t1}, s{sDT}')
    e.i(f's_mul_i32 s{t1}, s{t1}, {NCH*2048}')
    e.i(f's_add_u32 s{sPB}, s{t1}, {WS_PART}')

def gen_pre_a_comp(e, R, first):
    QR, QG = R['QR'], R['QG']
    for jj in range(2):
        e.i(f'v_permlane32_swap_b32 v{QR+4*jj}, v{QR+4*jj+2}')
        e.i(f'v_permlane32_swap_b32 v{QR+4*jj+1}, v{QR+4*jj+3}')
    if first: e.i(f'v_sub_f32 v24, 1.0, v152')
    for j in range(4):
        for k in range(2):
            q = QR + 2*j + k
            e.i(f'v_lshlrev_b32 v{QG+4*j+2*k}, 16, v{q}')
            e.i(f'v_and_b32 v{QG+4*j+2*k+1}, 0xffff0000, v{q}')
    for r in range(16):
        e.i(f'v_mul_f32 v{QG+r}, v{QG+r}, v152')

def gen_pre_c_issue(e, R, first):
    sWS = R['sWS']; sT, sMI, sDT = R['sT'], R['sMI'], R['sDT']
    t0, t1, t2, t3 = R['tmp']; ldf = R.get("ldflag", ""); YS = R['YS']
    L = 1
    if first:
        e.i(f'v_lshrrev_b32 v3, 2, v{L}')
        e.i(f'v_lshlrev_b32 v3, 12, v3')
        e.i(f'v_and_b32 v4, 3, v{L}')
        e.i(f'v_lshl_add_u32 v3, v4, 4, v3')
    e.i(f's_lshl_b32 s{t0}, s{sT}, 2')
    e.i(f's_add_u32 s{t0}, s{t0}, s{sMI}')
    e.i(f's_lshl_b32 s{t2}, s{sDT}, 17')
    e.i(f's_lshl_b32 s{t3}, s{t0}, 6')
    e.i(f's_add_u32 s{t2}, s{t2}, s{t3}')
    e.i(f's_add_u32 s{t2}, s{t2}, {WS_Y2}')
    e.i(f'buffer_load_dwordx4 v[{YS}:{YS+3}], v3, s[{sWS}:{sWS+3}], s{t2} offen {ldf}')
    e.i(f's_add_u32 s{t2}, s{t2}, {16*4096}')
    e.i(f'buffer_load_dwordx4 v[{YS+4}:{YS+7}], v3, s[{sWS}:{sWS+3}], s{t2} offen {ldf}')

def gen_pre_c_lds(e, R, first):
    sLDS = R['sLDS']; YS = R['YS']; k = R['k']
    L = 1
    if first:
        e.i(f'v_lshrrev_b32 v5, 5, v{L}')
        e.i(f'v_and_b32 v8, 15, v{L}')
        e.i(f'v_lshrrev_b32 v9, 2, v8')
        e.i(f'v_lshl_add_u32 v9, v5, 2, v9')
        e.i(f'v_lshlrev_b32 v9, 6, v9')
        e.i(f'v_and_b32 v8, 3, v8')
        e.i(f'v_lshl_add_u32 v9, v8, 3, v9')
        e.i(f'v_lshrrev_b32 v8, 4, v{L}')
        e.i(f'v_and_b32 v8, 1, v8')
        e.i(f'v_lshl_add_u32 v9, v8, 5, v9')
        e.i(f'v_add_u32 v9, s{sLDS}, v9')
        e.i(f'v_add_u32 v8, s{sLDS}, v2')
    e.i(f'ds_write_b128 v8, v[{YS}:{YS+3}] offset:{2048*k}')
    e.i(f'ds_write_b128 v8, v[{YS+4}:{YS+7}] offset:{2048*k+1024}')

def gen_pre_c_comp(e, R):
    k = R['k']; QG = R['QG']; YR = 72; YU = 80
    for j in range(4):
        e.i(f'ds_read_b64_tr_b16 v[{YR+2*j}:{YR+2*j+1}], v9 offset:{2048*k + 512*j}')
    e.i('s_waitcnt lgkmcnt(0)')
    for j in range(4):
        for kk in range(2):
            y = YR + 2*j + kk
            e.i(f'v_lshlrev_b32 v{YU+4*j+2*kk}, 16, v{y}')
            e.i(f'v_and_b32 v{YU+4*j+2*kk+1}, 0xffff0000, v{y}')
    for r in range(16):
        e.i(f'v_mul_f32 v{QG+r}, v{QG+r}, v{YU+r}')

def gen_final_post(e, R):
    sWS, sOUT = R['sWS'], R['sOUT']
    t0, t1, t2, t3 = R['tmp']
    vA = R['vA']; ldf = R.get("ldflag", "")
    st = R.get('stamp', lambda n: None)
    PR = 32; AC = 156; OP = 172
    BR = R['BR']; QG = R['QG']; sPB = R['sPB']; sOB = R['sOB']
    for i in range(2*NCH):
        if i and i % 4 == 0:
            e.i(f's_add_u32 s{sPB}, s{sPB}, 4096')
        e.i(f'buffer_load_dwordx4 v[{PR+4*i}:{PR+4*i+3}], v2, s[{sWS}:{sWS+3}], s{sPB} offen offset:{1024*(i%4)} {ldf}')
    e.i(f'v_mfma_f32_32x32x16_bf16 v[{AC}:{AC+15}], v[{vA}:{vA+3}], v[{BR}:{BR+3}], 0')
    e.i(f'v_mfma_f32_32x32x16_bf16 v[{AC}:{AC+15}], v[{vA+4}:{vA+7}], v[{BR+4}:{BR+7}], v[{AC}:{AC+15}]')
    st(0)
    for i in range(2*NCH):
        e.i(f's_waitcnt vmcnt({2*NCH - 1 - i})')
        if i == 0: st(1)
        a = vA + 4*(i & 1)
        e.i(f'v_mfma_f32_32x32x16_bf16 v[{AC}:{AC+15}], v[{a}:{a+3}], v[{PR+4*i}:{PR+4*i+3}], v[{AC}:{AC+15}]')
    st(2)
    e.i('s_nop 7'); e.i('s_nop 3')
    for r in range(16):
        e.i(f'v_fma_f32 v{AC+r}, v{AC+r}, v24, v{QG+r}')
    for j in range(8):
        e.i(f'v_cvt_pk_bf16_f32 v{OP+j}, v{AC+2*j}, v{AC+2*j+1}')
    e.i('s_nop 1')
    for jj in range(2):
        e.i(f'v_permlane32_swap_b32 v{OP+4*jj}, v{OP+4*jj+2}')
        e.i(f'v_permlane32_swap_b32 v{OP+4*jj+1}, v{OP+4*jj+3}')
    st(4)
    for jj in range(2):
        e.i(f'buffer_store_dwordx4 v[{OP+4*jj}:{OP+4*jj+3}], v6, s[{sOUT}:{sOUT+3}], s{sOB} offen offset:{32*jj} {R.get("outflag", "")}')
```

```python
from common import *
from fin import *

WREG = 12928
OFF_O = 4160
OFF_X = 8320
R8 = 8*WREG
FB = 9*WREG

def gen_ssm(e, cfg):
    sQ = 8; sK = 12; sV = 16; sWS = 20; sSK = 24; sH = 40; sGW = 44; sDB = 48; sSD = 52; sB2 = 56; sOUT = 60
    sWV = 28; sJ = 29; sTILE = 30; sCH = 31; sBASE = 32
    sNONCE = 64; sN = 65; sPF = 4
    sPROF = 66
    nprof = [0]
    def stamp(name):
        if cfg.prof and nprof[0] < 16:
            k = nprof[0]; nprof[0] += 1
            e.i(f's_memtime s[{sPROF+2*k}:{sPROF+2*k+1}]')
    def lanes_lt(n, body):
        e.i(f'v_cmp_gt_u32 vcc, {n}, v1')
        e.i('s_and_saveexec_b64 s[38:39], vcc')
        body()
        e.i('s_mov_b64 exec, s[38:39]')
    def signal(off, lbl):
        e.i(f's_cmp_eq_u32 s{sWV}, 0')
        e.i(f's_cbranch_scc0 {lbl}')
        e.i('v_mov_b32 v2, 0')
        e.i('v_mov_b32 v3, 1')
        lanes_lt(1, lambda: e.i(f'buffer_atomic_add v3, v2, s[{sDB}:{sDB+3}], 0 offen offset:{off} sc1'))
        e.label(lbl)
    def wait_count(off, lbl):
        e.i(f's_cmp_eq_u32 s{sWV}, 0')
        e.i(f's_cbranch_scc0 {lbl}_bar')
        e.i('v_mov_b32 v12, 0')
        e.label(f'{lbl}_poll')
        e.i(f'buffer_load_dword v14, v12, s[{sDB}:{sDB+3}], 0 offen offset:{off} sc1')
        e.i('s_waitcnt vmcnt(0)')
        e.i('v_readfirstlane_b32 s37, v14')
        e.i('s_cmp_ge_u32 s37, 64')
        e.i(f's_cbranch_scc1 {lbl}_bar')
        e.i(f's_sleep {cfg.csleep}')
        e.i(f's_branch {lbl}_poll')
        e.label(f'{lbl}_bar')
        e.i('s_barrier')
    if cfg.nossm: e.i('s_endpgm')
    if cfg.prof: e.i('s_memrealtime s[98:99]')
    stamp('start')
    e.i(f's_sub_u32 s{sJ}, s2, 192')
    srds = ((sH, 'ssm_k', D*S*2), (sK, 'k', S*D*2), (sV, 'v', S*D*2), (sSK, 'shift_k', D*8), (sQ, 'q', S*D*2), (sWS, 'ws', WS_TOTAL),
            (sGW, 'gate_w', D*2), (sDB, 'dbg', 256), (sSD, 'ssm_D', D*2), (sB2, 'b2', D*2), (sOUT, 'out', S*D*2))
    for s_, nm, nb in srds:
        e.i(f's_load_dwordx2 s[{s_}:{s_+1}], s[0:1], {KA[nm]}')
    e.i(f's_memrealtime s[34:35]')
    e.i(f'v_and_b32 v1, 63, v0')
    e.i('v_lshrrev_b32 v2, 6, v0')
    e.i('s_nop 0')
    e.i(f'v_readfirstlane_b32 s{sWV}, v2')
    for s_, nm, nb in srds:
        e.i(f's_mov_b32 s{s_+2}, {nb}')
        e.i(f's_mov_b32 s{s_+3}, 0x00020000')
    e.i(f's_mul_i32 s{sCH}, s{sJ}, 9')
    e.i(f's_add_u32 s33, s{sCH}, 8')
    e.i(f's_add_u32 s{sCH}, s{sCH}, s{sWV}')
    e.i('s_waitcnt lgkmcnt(0)')
    for s_, nm, nb in srds:
        e.i(f's_and_b32 s{s_+1}, s{s_+1}, 0xffff')
    e.i(f's_or_b32 s34, s34, 1')
    e.i(f's_add_u32 s36, s{sJ}, s{sWV}')
    e.i(f's_cmp_eq_u32 s36, 0')
    e.i('s_cbranch_scc0 Lssm_nononce')
    e.i('v_mov_b32 v2, s34')
    e.i('v_mov_b32 v3, 0')
    e.i(f'buffer_store_dword v2, v3, s[{sDB}:{sDB+3}], 0 offen offset:{DBG_NONCE} sc1')
    e.label('Lssm_nononce')
    HR = 184; H9 = 220; vD = 216; vD9 = 217
    e.i(f's_lshl_b32 s35, s{sCH}, 12')
    e.i(f'v_lshlrev_b32 v12, 4, v1')
    for i in range(4):
        e.i(f'buffer_load_dwordx4 v[{HR+8*i}:{HR+8*i+3}], v12, s[{sH}:{sH+3}], s35 offen offset:{1024*i}')
        e.i(f'buffer_load_dword v{HR+8*i+4}, v12, s[{sH}:{sH+3}], s35 offen offset:{1024*i+16}')
    e.i(f's_lshl_b32 s35, s33, 12')
    e.i(f's_lshl_b32 s36, s{sWV}, 9')
    e.i(f's_add_u32 s35, s35, s36')
    e.i(f'buffer_load_dwordx4 v[{H9}:{H9+3}], v12, s[{sH}:{sH+3}], s35 offen')
    e.i(f'buffer_load_dword v{H9+4}, v12, s[{sH}:{sH+3}], s35 offen offset:16')
    e.i(f'v_mov_b32 v13, 0')
    e.i(f's_lshl_b32 s37, s{sCH}, 1')
    e.i(f's_and_b32 s37, s37, 0xfffffffc')
    e.i(f'buffer_load_dword v{vD}, v13, s[{sSD}:{sSD+3}], s37 offen')
    e.i(f's_lshl_b32 s37, s33, 1')
    e.i(f's_and_b32 s37, s37, 0xfffffffc')
    e.i(f'buffer_load_dword v{vD9}, v13, s[{sSD}:{sSD+3}], s37 offen')
    e.i(f's_lshl_b32 s{sTILE}, s{sJ}, 2')
    e.i(f's_add_u32 s{sTILE}, s{sTILE}, s{sWV}')
    e.i(f's_cmp_lt_u32 s{sWV}, 4')
    e.i('s_cbranch_scc1 Lssm_prep')
    e.i(f's_add_u32 s{sTILE}, s{sJ}, 256')
    e.i(f's_cmp_eq_u32 s{sWV}, 4')
    e.i('s_cbranch_scc0 Lssm_noprep')
    e.i(f's_cmp_lt_u32 s{sJ}, 32')
    e.i('s_cbranch_scc1 Lssm_prep')
    e.label('Lssm_noprep')
    e.i(f's_mov_b32 s{sPF}, -1')
    e.i('s_waitcnt vmcnt(0)')
    e.i('s_branch Lssm_hb')
    e.label('Lssm_prep')
    e.i(f's_mul_hi_u32 s36, s{sTILE}, {(1 << 32)//9 + 1}')
    e.i(f's_mul_i32 s37, s36, 9')
    e.i(f's_sub_u32 s37, s{sTILE}, s37')
    e.i(f's_lshl_b32 s{sPF}, s37, 5')
    e.i(f's_add_u32 s{sPF}, s{sPF}, s36')
    e.i(f's_lshl_b32 s{sPF}, s{sPF}, 8')
    e.i(f's_add_u32 s{sPF}, s{sPF}, {WS_FLAG2}')
    e.i(f's_lshl_b32 s36, s36, 6')
    e.i(f's_lshl_b32 s37, s37, 6')
    e.i(f'v_and_b32 v2, 7, v1')
    e.i(f'v_lshrrev_b32 v3, 3, v1')
    e.i(f'v_lshl_add_u32 v4, v3, 3, s36')
    e.i(f'v_lshl_add_u32 v5, v2, 3, s37')
    e.i(f'v_mul_u32_u24 v6, 1152, v4')
    e.i(f'v_lshl_add_u32 v6, v5, 1, v6')
    e.i(f'v_subrev_u32 v7, 3456, v6')
    e.i(f'v_cmp_eq_u32 vcc, 0, v4')
    e.i(f'v_mov_b32 v8, 0x80000000')
    e.i('s_nop 0')
    e.i(f'v_cndmask_b32 v7, v7, v8, vcc')
    e.i(f'v_lshlrev_b32 v8, 3, v5')
    KR = 16; VR = 60; WR = 92
    e.i('s_mov_b32 s35, 4608')
    for i in range(3):
        e.i(f'buffer_load_dwordx4 v[{KR+4*i}:{KR+4*i+3}], v7, s[{sK}:{sK+3}], 0 offen offset:{1152*i}')
    for i in range(8):
        so = '0' if i < 4 else 's35'
        e.i(f'buffer_load_dwordx4 v[{KR+12+4*i}:{KR+12+4*i+3}], v6, s[{sK}:{sK+3}], {so} offen offset:{1152*(i%4)}')
    for i in range(4):
        e.i(f'buffer_load_dwordx4 v[{WR+4*i}:{WR+4*i+3}], v8, s[{sSK}:{sSK+3}], 0 offen offset:{16*i}')
    for i in range(8):
        so = '0' if i < 4 else 's35'
        e.i(f'buffer_load_dwordx4 v[{VR+4*i}:{VR+4*i+3}], v6, s[{sV}:{sV+3}], {so} offen offset:{1152*(i%4)}')
    e.i(f'v_lshlrev_b32 v9, 12, v5')
    e.i(f'v_lshlrev_b32 v10, 1, v4')
    e.i(f'v_sub_u32 v9, v9, v10')
    e.i(f'v_add_u32 v9, {4080}, v9')
    e.i(f's_mov_b32 s35, {WS_XR}')
    KU = 108; VU = 130; WU = 146; AC = 154; PKD = 170
    e.i('s_waitcnt vmcnt(0)')
    for q in range(4):
        for r in range(11):
            e.i(f'v_lshlrev_b32 v{KU+2*r}, 16, v{KR+4*r+q}')
            e.i(f'v_and_b32 v{KU+2*r+1}, 0xffff0000, v{KR+4*r+q}')
        for c in range(2):
            w = WR + 2*(2*q + c)
            e.i(f'v_lshlrev_b32 v{WU+4*c}, 16, v{w}')
            e.i(f'v_and_b32 v{WU+4*c+1}, 0xffff0000, v{w}')
            e.i(f'v_lshlrev_b32 v{WU+4*c+2}, 16, v{w+1}')
            e.i(f'v_and_b32 v{WU+4*c+3}, 0xffff0000, v{w+1}')
        for r in range(8):
            e.i(f'v_lshlrev_b32 v{VU+2*r}, 16, v{VR+4*r+q}')
            e.i(f'v_and_b32 v{VU+2*r+1}, 0xffff0000, v{VR+4*r+q}')
        for r in range(8):
            for c in range(2):
                e.i(f'v_mul_f32 v{AC+2*r+c}, v{KU+2*(r+0)+c}, v{WU+4*c+3}')
        for j in (2, 1, 0):
            for r in range(8):
                for c in range(2):
                    e.i(f'v_fmac_f32 v{AC+2*r+c}, v{KU+2*(r+3-j)+c}, v{WU+4*c+j}')
        for r in range(8):
            for c in range(2):
                e.i(f'v_mul_f32 v{AC+2*r+c}, v{AC+2*r+c}, v{VU+2*r+c}')
        for c in range(2):
            for k in range(4):
                e.i(f'v_cvt_pk_bf16_f32 v{PKD+4*c+k}, v{AC+2*(7-2*k)+c}, v{AC+2*(6-2*k)+c}')
        for c in range(2):
            e.i(f'buffer_store_dwordx4 v[{PKD+4*c}:{PKD+4*c+3}], v9, s[{sWS}:{sWS+3}], s35 offen sc1')
            e.i(f'v_add_u32 v9, 4096, v9')
        e.i('s_nop 1')
    e.label('Lssm_hb')
    stamp('prep issued')
    e.i(f's_mul_i32 s{sBASE}, s{sWV}, {WREG}')
    e.i(f'v_mov_b32 v52, 0'); e.i('v_mov_b32 v53, 0'); e.i('v_mov_b32 v54, 0'); e.i('v_mov_b32 v55, 0')
    e.i(f'v_lshl_add_u32 v13, v1, 4, s{sBASE}')
    e.i(f'v_lshlrev_b32 v15, 4, v1')
    lanes_lt(32, lambda: e.i(f'ds_write_b128 v13, v[52:55] offset:{OFF_X + 4096}'))
    def pads():
        e.i(f'ds_write_b128 v13, v[52:55]')
        e.i(f'ds_write_b128 v13, v[52:55] offset:{OFF_O}')
    lanes_lt(2, pads)
    e.i(f's_cmp_eq_u32 s{sWV}, 0')
    e.i('s_cbranch_scc0 Lssm_nopad9')
    e.i(f'v_add_u32 v14, {R8}, v15')
    lanes_lt(32, lambda: e.i(f'ds_write_b128 v14, v[52:55] offset:{OFF_X + 4096}'))
    def pads9():
        e.i(f'ds_write_b128 v14, v[52:55]')
        e.i(f'ds_write_b128 v14, v[52:55] offset:{OFF_O}')
    lanes_lt(2, pads9)
    e.label('Lssm_nopad9')
    e.i('s_waitcnt lgkmcnt(0)')
    for i in range(4):
        h = HR + 8*i
        e.i(f'ds_write_b128 v13, v[{h}:{h+3}] offset:{32 + 1024*i}')
        for k in range(4):
            e.i(f'v_alignbit_b32 v{56+k}, v{h+k+1}, v{h+k}, 16')
        e.i(f'ds_write_b128 v13, v[56:59] offset:{OFF_O + 32 + 1024*i}')
        e.i('s_nop 0')
    e.i(f'v_lshlrev_b32 v56, 16, v{HR}')
    lanes_lt(1, lambda: e.i(f'ds_write_b32 v13, v56 offset:{OFF_O + 28}'))
    e.i(f's_lshl_b32 s36, s{sWV}, 9')
    e.i(f's_add_u32 s36, s36, {R8}')
    e.i(f'v_add_u32 v14, s36, v15')
    for k in range(4):
        e.i(f'v_alignbit_b32 v{56+k}, v{H9+k+1}, v{H9+k}, 16')
    def w9():
        e.i(f'ds_write_b128 v14, v[{H9}:{H9+3}] offset:32')
        e.i(f'ds_write_b128 v14, v[56:59] offset:{OFF_O + 32}')
    lanes_lt(32, w9)
    e.i(f's_cmp_eq_u32 s{sWV}, 0')
    e.i('s_cbranch_scc0 Lssm_nosp9')
    e.i(f'v_lshlrev_b32 v56, 16, v{H9}')
    lanes_lt(1, lambda: e.i(f'ds_write_b32 v14, v56 offset:{OFF_O + 28}'))
    e.label('Lssm_nosp9')
    sDV = 33; sDV9 = 34
    e.i(f'v_readfirstlane_b32 s{sDV}, v{vD}')
    e.i(f'v_readfirstlane_b32 s{sDV9}, v{vD9}')
    e.i(f's_bitcmp1_b32 s{sCH}, 0')
    e.i(f's_cselect_b32 s37, 0, 16')
    e.i(f's_lshl_b32 s{sDV}, s{sDV}, s37')
    e.i(f's_and_b32 s{sDV}, s{sDV}, 0xffff0000')
    e.i(f's_bitcmp1_b32 s{sJ}, 0')
    e.i(f's_cselect_b32 s37, 0, 16')
    e.i(f's_lshl_b32 s{sDV9}, s{sDV9}, s37')
    e.i(f's_and_b32 s{sDV9}, s{sDV9}, 0xffff0000')
    stamp('h built')
    e.i('v_mov_b32 v12, 0')
    e.label('Lssm_npoll')
    e.i(f'buffer_load_dword v14, v12, s[{sDB}:{sDB+3}], 0 offen offset:{DBG_NONCE} sc1')
    e.i('s_waitcnt vmcnt(0) lgkmcnt(0)')
    e.i(f'v_readfirstlane_b32 s{sNONCE}, v14')
    e.i(f's_cmp_eq_u32 s{sNONCE}, 0')
    e.i('s_cbranch_scc1 Lssm_npoll')
    e.i(f'v_mov_b32 v232, s{sNONCE}')
    e.i(f's_cmp_lt_u32 s{sPF}, 0x7fffffff')
    e.i('s_cbranch_scc0 Lssm_notileflag')
    e.i('v_lshlrev_b32 v12, 2, v1')
    e.i(f'buffer_store_dword v232, v12, s[{sWS}:{sWS+3}], s{sPF} offen sc1')
    e.label('Lssm_notileflag')
    stamp('prep done')
    e.i(f's_cmp_lt_u32 s{sWV}, 4')
    e.i('s_cbranch_scc1 Lssm_gate_done')
    e.i(f's_lshl_b32 s36, s{sJ}, 5')
    e.i(f's_sub_u32 s37, s{sWV}, 4')
    e.i(f's_lshl_b32 s37, s37, 3')
    e.i(f's_add_u32 s36, s36, s37')
    e.i(f'v_and_b32 v2, 7, v1')
    e.i(f'v_lshrrev_b32 v3, 3, v1')
    e.i(f'v_add_u32 v4, s36, v3')
    e.i(f'v_mul_u32_u24 v6, 1152, v4')
    e.i(f'v_lshl_add_u32 v6, v2, 4, v6')
    e.i(f'v_lshlrev_b32 v7, 4, v2')
    QR = 16; GR = 60
    for i in range(9):
        e.i(f'buffer_load_dwordx4 v[{QR+4*i}:{QR+4*i+3}], v6, s[{sQ}:{sQ+3}], 0 offen offset:{128*i}')
    for i in range(9):
        e.i(f'buffer_load_dwordx4 v[{GR+4*i}:{GR+4*i+3}], v7, s[{sGW}:{sGW+3}], 0 offen offset:{128*i}')
    e.i('v_mov_b32 v8, 0')
    e.i('v_mov_b32 v9, 0')
    e.i('s_waitcnt vmcnt(0)')
    for i in range(36):
        e.i(f'v_lshlrev_b32 v10, 16, v{QR+i}')
        e.i(f'v_lshlrev_b32 v11, 16, v{GR+i}')
        e.i(f'v_and_b32 v12, 0xffff0000, v{QR+i}')
        e.i(f'v_and_b32 v14, 0xffff0000, v{GR+i}')
        e.i(f'v_fmac_f32 v8, v10, v11')
        e.i(f'v_fmac_f32 v9, v12, v14')
    e.i('v_add_f32 v8, v8, v9')
    for off in (0x041F, 0x081F, 0x101F):
        e.i(f'ds_swizzle_b32 v9, v8 offset:{hex(off)}')
        e.i('s_waitcnt lgkmcnt(0)')
        e.i('v_add_f32 v8, v8, v9')
    e.i(f'v_mul_f32 v8, {hex(f2u(-1.4426950408889634))}, v8')
    e.i('v_exp_f32 v8, v8')
    e.i('s_nop 0')
    e.i('v_add_f32 v8, 1.0, v8')
    e.i('v_rcp_f32 v8, v8')
    e.i('v_lshlrev_b32 v10, 2, v4')
    e.i(f's_mov_b32 s35, {WS_G}')
    e.i('v_cmp_eq_u32 vcc, 0, v2')
    e.i('s_and_saveexec_b64 s[38:39], vcc')
    e.i(f'buffer_store_dword v8, v10, s[{sWS}:{sWS+3}], s35 offen sc1')
    e.i('s_mov_b64 exec, s[38:39]')
    e.label('Lssm_gate_done')
    e.i(f's_cmp_eq_u32 s{sWV}, 0')
    e.i('s_cbranch_scc0 Lssm_w1_bar')
    e.i(f's_mul_i32 s36, s{sJ}, 9')
    e.i(f's_lshr_b32 s37, s36, 6')
    e.i(f's_add_u32 s36, s36, 8')
    e.i(f's_lshr_b32 s36, s36, 6')
    e.i('v_and_b32 v12, 31, v1')
    e.i('v_lshlrev_b32 v12, 8, v12')
    e.i(f's_lshl_b32 s37, s37, 13')
    e.i(f's_lshl_b32 s36, s36, 13')
    e.i('v_mov_b32 v14, s37')
    e.i('v_mov_b32 v16, s36')
    e.i('v_cmp_gt_u32 vcc, 32, v1')
    e.i('s_nop 1')
    e.i('v_cndmask_b32 v14, v16, v14, vcc')
    e.i('v_add_u32 v12, v12, v14')
    e.i(f's_mov_b32 s36, {WS_FLAG2}')
    e.label('Lssm_w1_poll')
    e.i(f'buffer_load_dword v14, v12, s[{sWS}:{sWS+3}], s36 offen sc1')
    e.i('s_waitcnt vmcnt(0)')
    e.i(f'v_cmp_eq_u32 vcc, s{sNONCE}, v14')
    e.i('s_nop 1')
    e.i('s_cmp_eq_u64 vcc, -1')
    e.i('s_cbranch_scc1 Lssm_w1_bar')
    e.i(f's_sleep {cfg.csleep}')
    e.i('s_branch Lssm_w1_poll')
    e.label('Lssm_w1_bar')
    e.i('s_barrier')
    stamp('sync done')
    XL = 16
    e.i(f's_lshl_b32 s35, s{sCH}, 12')
    e.i(f's_add_u32 s35, s35, {WS_XR}')
    e.i(f'v_lshlrev_b32 v12, 4, v1')
    for i in range(4):
        e.i(f'buffer_load_dwordx4 v[{XL+4*i}:{XL+4*i+3}], v12, s[{sWS}:{sWS+3}], s35 offen offset:{1024*i} sc1')
    e.i(f's_mul_i32 s36, s{sJ}, 9')
    e.i(f's_add_u32 s36, s36, 8')
    e.i(f's_lshl_b32 s36, s36, 12')
    e.i(f's_lshl_b32 s37, s{sWV}, 9')
    e.i(f's_add_u32 s36, s36, s37')
    e.i(f's_add_u32 s36, s36, {WS_XR}')
    e.i(f'buffer_load_dwordx4 v[{XL+16}:{XL+19}], v12, s[{sWS}:{sWS+3}], s36 offen sc1')
    vN = 2; vG = 3; vAa = [4, 5, 6, 7]; vBa = 8; vXa = 9; vYo = 10
    e.i(f'v_and_b32 v{vN}, 15, v1')
    e.i(f'v_lshrrev_b32 v{vG}, 4, v1')
    e.i(f'v_add_u32 v12, 1, v{vN}')
    e.i(f'v_lshrrev_b32 v12, 1, v12')
    e.i(f'v_lshlrev_b32 v12, 2, v12')
    e.i(f'v_lshl_add_u32 v12, v{vG}, 4, v12')
    e.i(f'v_and_b32 v14, 1, v{vN}')
    e.i(f'v_xor_b32 v14, 1, v14')
    e.i(f'v_mul_u32_u24 v14, {OFF_O}, v14')
    e.i(f'v_add_u32 v11, v12, v14')
    for k in range(4):
        e.i(f'v_add_u32 v{vAa[k]}, {1024*k}, v11')
        e.i(f'v_add_u32 v{vAa[k]}, s{sBASE}, v{vAa[k]}')
    e.i(f'v_lshlrev_b32 v12, 5, v{vN}')
    e.i(f'v_lshlrev_b32 v14, 4, v{vG}')
    e.i(f'v_sub_u32 v60, v14, v12')
    e.i(f's_add_u32 s37, s{sBASE}, {OFF_X + 480}')
    e.i(f'v_add_u32 v{vBa}, s37, v60')
    e.i(f'v_lshlrev_b32 v14, 3, v{vG}')
    e.i(f'v_add_u32 v{vYo}, v14, v12')
    e.i(f's_add_u32 s37, s{sBASE}, {OFF_X + 504}')
    e.i(f'v_sub_u32 v{vXa}, s37, v{vYo}')
    e.i('s_waitcnt vmcnt(0)')
    for i in range(4):
        e.i(f'ds_write_b128 v13, v[{XL+4*i}:{XL+4*i+3}] offset:{OFF_X + 1024*i}')
    e.i(f's_lshl_b32 s36, s{sWV}, 9')
    e.i(f's_add_u32 s36, s36, {R8 + OFF_X}')
    e.i(f'v_add_u32 v14, s36, v15')
    lanes_lt(32, lambda: e.i(f'ds_write_b128 v14, v[{XL+16}:{XL+19}]'))
    e.i('s_waitcnt lgkmcnt(0)')
    e.i('s_barrier')
    stamp('x loaded')
    ACC = 16; AB = [48+16, 96]; BB = [128, 160]
    AB = [64, 96]
    def read_list(rho, st, aregs, breg):
        out = []
        for k in range(8):
            a = aregs[k >> 1]; o = 16*rho + 128*(k & 1)
            r = AB[st] + 4*k; rb = BB[st] + 4*k
            kap = 8*k - rho
            out.append((f'ds_read_b128 v[{rb}:{rb+3}], v{breg} offset:{3584 - 64*kap}', ('b', rho, st, k)))
            out.append((f'ds_read2_b32 v[{r}:{r+1}], v{a} offset0:{o} offset1:{o+1}', ('a', rho, st, k, 0)))
            out.append((f'ds_read2_b32 v[{r+2}:{r+3}], v{a} offset0:{o+2} offset1:{o+3}', ('a', rho, st, k, 1)))
        return out
    def mfmas(rho, st, nxt, first, ACC=16):
        cnt = 0
        for ee in range(8):
            for u in range(8 - ee):
                tau = ee + u
                e.wait_lds(('a', rho, st, ee, 1)); e.wait_lds(('b', rho, st, u))
                a = AB[st] + 4*ee; b = BB[st] + 4*u; acc = ACC + 4*tau
                c = '0' if (first and ee == 0) else f'v[{acc}:{acc+3}]'
                e.mfma(f'v_mfma_f32_16x16x32_bf16 v[{acc}:{acc+3}], v[{a}:{a+3}], v[{b}:{b+3}], {c}',
                       list(range(acc, acc+4)), [])
                cnt += 1
                if nxt and cnt >= 6:
                    t, tag = nxt.pop(0); e.lds(t, tag)
        assert not nxt
    a9 = [48, 49, 50, 51]; b9 = 52
    e.i(f's_lshl_b32 s36, s{sWV}, 6')
    e.i(f's_add_u32 s37, s36, {R8}')
    for k in range(4):
        e.i(f'v_add_u32 v{a9[k]}, {1024*k}, v11')
        e.i(f'v_add_u32 v{a9[k]}, s37, v{a9[k]}')
    e.i(f's_add_u32 s37, s37, {OFF_X + 480}')
    e.i(f'v_add_u32 v{b9}, s37, v60')
    e.lq = []
    for (t, tag) in read_list(0, 0, vAa, vBa): e.lds(t, tag)
    for rho in range(8):
        st = rho & 1
        if cfg.prio and rho % 2 == 0: e.i(f's_setprio {3 - rho // 2}')
        if rho < 7: nxt = read_list(rho + 1, st ^ 1, vAa, vBa)
        else: nxt = [(t, ('n',) + tag) for (t, tag) in read_list(0, 0, a9, b9)]
        mfmas(rho, st, nxt, rho == 0)
    ACC9 = 196
    for ee in range(8):
        for u in range(8 - ee):
            tau = ee + u
            e.wait_lds(('n', 'a', 0, 0, ee, 1)); e.wait_lds(('n', 'b', 0, 0, u))
            a = AB[0] + 4*ee; b = BB[0] + 4*u; acc = ACC9 + 4*tau
            c = '0' if ee == 0 else f'v[{acc}:{acc+3}]'
            e.mfma(f'v_mfma_f32_16x16x32_bf16 v[{acc}:{acc+3}], v[{a}:{a+3}], v[{b}:{b+3}], {c}', list(range(acc, acc+4)), [])
    for tau in range(8):
        e.lds(f'ds_read_b64 v[{96+2*tau}:{97+2*tau}], v{vXa} offset:{3584 - 512*tau}', ('xv', tau))
    e.i(f's_lshl_b32 s35, s{sCH}, 12')
    e.i(f's_add_u32 s35, s35, {WS_Y2}')
    def yout(x0, accs, sD, pk):
        e.valu(f'v_and_b32 v120, 0xffff0000, v{x0+1}', dst=[120])
        e.valu(f'v_lshlrev_b32 v121, 16, v{x0+1}', dst=[121])
        e.valu(f'v_and_b32 v122, 0xffff0000, v{x0}', dst=[122])
        e.valu(f'v_lshlrev_b32 v123, 16, v{x0}', dst=[123])
        for r in range(4):
            e.valu(f'v_fma_f32 v{120+r}, v{120+r}, s{sD}, v{accs[r]}', dst=[120+r], src=[accs[r]])
        e.valu(f'v_cvt_pk_bf16_f32 v{pk}, v120, v121', dst=[pk])
        e.valu(f'v_cvt_pk_bf16_f32 v{pk+1}, v122, v123', dst=[pk+1])
    for tau in range(8):
        e.wait_lds(('xv', tau))
        pk = 124 + 2*(tau & 1)
        yout(96 + 2*tau, [ACC+4*tau+r for r in range(4)], sDV, pk)
        e.i(f'buffer_store_dwordx2 v[{pk}:{pk+1}], v{vYo}, s[{sWS}:{sWS+3}], s35 offen offset:{512*tau} sc1')
    e.wait_lds_all()
    e.nop(8)
    for tau in range(8):
        e.lds(f'ds_write_b128 v13, v[{ACC9+4*tau}:{ACC9+4*tau+3}] offset:{1024*tau}', ('p9', tau))
    stamp('chan done')
    e.wait_lds_all()
    e.i('s_barrier')
    e.i(f's_lshl_b32 s36, s{sWV}, 10')
    e.i(f'v_add_u32 v54, s36, v15')
    e.i(f'v_add_u32 v55, {4*WREG}, v54')
    for k in range(8):
        a = 54 if k < 4 else 55
        e.lds(f'ds_read_b128 v[{64+4*k}:{67+4*k}], v{a} offset:{(k%4)*WREG}', ('f9', k))
    e.i(f's_lshl_b32 s36, s{sWV}, 9')
    e.i(f's_sub_u32 s36, {R8 + OFF_X + 4088}, s36')
    e.i(f'v_sub_u32 v54, s36, v{vYo}')
    e.lds(f'ds_read_b64 v[20:21], v54', ('x9',))
    e.i(f's_mul_i32 s35, s{sJ}, 9')
    e.i(f's_add_u32 s35, s35, 8')
    e.i(f's_lshl_b32 s35, s35, 12')
    e.i(f's_lshl_b32 s36, s{sWV}, 9')
    e.i(f's_add_u32 s35, s35, s36')
    e.i(f's_add_u32 s35, s35, {WS_Y2}')
    e.wait_lds_all()
    for k in range(1, 8):
        for r in range(4):
            e.i(f'v_add_f32 v{64+r}, v{64+r}, v{64+4*k+r}')
    yout(20, [64, 65, 66, 67], sDV9, 124)
    e.i(f'buffer_store_dwordx2 v[124:125], v{vYo}, s[{sWS}:{sWS+3}], s35 offen sc1')
    e.i('s_waitcnt vmcnt(0)')
    e.i('s_barrier')
    e.i(f's_cmp_eq_u32 s{sWV}, 0')
    e.i('s_cbranch_scc0 Lssm_nocf')
    e.i('v_lshlrev_b32 v12, 2, v1')
    e.i(f's_lshl_b32 s36, s{sJ}, 8')
    e.i(f's_add_u32 s36, s36, {WS_FLAG3}')
    e.i(f'buffer_store_dword v232, v12, s[{sWS}:{sWS+3}], s36 offen sc1')
    e.label('Lssm_nocf')
    stamp('conv done')
    if cfg.nored: e.i('s_branch Lssm_fin')
    gen_final_consts(e, 240)
    sT = 30; sMI = 31
    sDTk = [12, 13, 14]; sPBk = [16, 17, 18]; sOBk = [24, 25, 26]
    e.i(f's_lshr_b32 s{sT}, s{sJ}, 2')
    e.i(f's_and_b32 s{sMI}, s{sJ}, 3')
    def unitR(k):
        return dict(sWS=sWS, sQ=sQ, sB2=sB2, sOUT=sOUT, sT=sT, sMI=sMI, sDT=sDTk[k], sLDS=sBASE, tmp=(34, 35, 36, 37), ldflag='sc1', vA=240,
                    BR=128 + 8*k, QG=184 + 16*k, sPB=sPBk[k], sOB=sOBk[k], QR=96 + 8*k, YS=32 + 8*k, k=k)
    NU = 2*(9 - cfg.kffn)
    KMAX = -(-NU // 8)
    def for_units(fn, lbl):
        for k in range(KMAX):
            if NU - 8*k < 8:
                e.i(f's_cmp_lt_u32 s{sWV}, {NU - 8*k}')
                e.i(f's_cbranch_scc0 {lbl}')
            fn(k)
        e.label(lbl)
    def f_issue(k):
        e.i(f's_add_u32 s34, s{sWV}, {8*k}')
        e.i(f's_and_b32 s5, s34, 1')
        e.i(f's_lshr_b32 s34, s34, 1')
        e.i(f's_and_b32 s35, s{sT}, 7')
        e.i(f's_add_u32 s34, s34, s35')
        e.i(f's_sub_u32 s35, s34, 9')
        e.i(f's_min_u32 s34, s34, s35')
        e.i(f's_lshl_b32 s34, s34, 1')
        e.i(f's_add_u32 s{sDTk[k]}, s34, s5')
        gen_pre_a_issue(e, unitR(k), k == 0)
    for_units(f_issue, 'Lpre_a1')
    e.i('s_waitcnt vmcnt(0)')
    for_units(lambda k: gen_pre_a_comp(e, unitR(k), k == 0), 'Lpre_a2')
    if cfg.nocpoll: e.i('s_branch Lssm_cready')
    e.i(f's_cmp_eq_u32 s{sWV}, 0')
    e.i('s_cbranch_scc0 Lssm_cready')
    e.i('v_lshlrev_b32 v12, 8, v1')
    e.i(f's_mov_b32 s36, {WS_FLAG3}')
    e.label('Lssm_cpoll')
    e.i(f'buffer_load_dword v14, v12, s[{sWS}:{sWS+3}], s36 offen sc1')
    e.i('s_waitcnt vmcnt(0)')
    e.i(f'v_cmp_eq_u32 vcc, s{sNONCE}, v14')
    e.i('s_nop 1')
    e.i('s_cmp_eq_u64 vcc, -1')
    e.i('s_cbranch_scc1 Lssm_cready')
    e.i(f's_sleep {cfg.c2sleep}')
    e.i('s_branch Lssm_cpoll')
    e.label('Lssm_cready')
    e.i('s_barrier')
    stamp('conv flags')
    if cfg.nounits: e.i('s_branch Lssm_fin')
    for_units(lambda k: gen_pre_c_issue(e, unitR(k), k == 0), 'Lpre_c1')
    e.i('s_waitcnt vmcnt(0)')
    for_units(lambda k: gen_pre_c_lds(e, unitR(k), k == 0), 'Lpre_c2')
    e.i('s_waitcnt lgkmcnt(0)')
    for_units(lambda k: gen_pre_c_comp(e, unitR(k)), 'Lpre_c3')
    stamp('pre done')
    for k in range(KMAX):
        if NU - 8*k < 8:
            e.i(f's_cmp_lt_u32 s{sWV}, {NU - 8*k}')
            e.i('s_cbranch_scc0 Lssm_fin')
        e.i(f's_mul_i32 s6, s{sT}, 9')
        e.i(f's_lshr_b32 s5, s{sDTk[k]}, 1')
        e.i(f's_add_u32 s6, s6, s5')
        e.i(f's_mul_i32 s6, s6, {12*256}')
        e.i(f's_add_u32 s6, s6, {WS_FLAG}')
        e.i(f'v_min_u32 v12, {NCH-1}, v1')
        e.i(f'v_lshlrev_b32 v12, 8, v12')
        e.label(f'Lssm_fpoll{k}')
        e.i(f'buffer_load_dword v14, v12, s[{sWS}:{sWS+3}], s6 offen sc1')
        e.i('s_waitcnt vmcnt(0)')
        e.i(f'v_cmp_eq_u32 vcc, s{sNONCE}, v14')
        e.i('s_nop 1')
        e.i('s_cmp_eq_u64 vcc, -1')
        e.i(f's_cbranch_scc1 Lssm_fready{k}')
        e.i(f's_sleep {cfg.fsleep}')
        e.i(f's_branch Lssm_fpoll{k}')
        e.label(f'Lssm_fready{k}')
        if cfg.prof: e.i(f's_memtime s[{sPROF+2*(10+2*k)}:{sPROF+2*(10+2*k)+1}]')
        gen_final_post(e, unitR(k))
        if cfg.prof:
            e.i('s_waitcnt vmcnt(0)')
            e.i(f's_memtime s[{sPROF+2*(11+2*k)}:{sPROF+2*(11+2*k)+1}]')
    e.label('Lssm_fin')
    e.i('s_waitcnt vmcnt(0)')
    nprof[0] = 16
    if cfg.prof:
        e.i('s_memrealtime s[100:101]')
        e.i('s_waitcnt lgkmcnt(0)')
        e.i(f's_cmp_eq_u32 s{sWV}, 1')
        e.i('s_cbranch_scc0 Lssm_noprof')
        e.i(f's_lshl_b32 s34, s2, 7')
        e.i(f's_add_u32 s34, s34, {WS_PROF}')
        e.i(f'v_mov_b32 v14, 0')
        for k in range(nprof[0]):
            e.i(f'v_mov_b32 v13, s{sPROF+2*k}')
            e.i(f'buffer_store_dword v13, v14, s[{sWS}:{sWS+3}], s34 offen offset:{4*k}')
        e.i(f'v_mov_b32 v13, s98')
        e.i(f'buffer_store_dword v13, v14, s[{sWS}:{sWS+3}], s34 offen offset:{4*30}')
        e.i(f'v_mov_b32 v13, s100')
        e.i(f'buffer_store_dword v13, v14, s[{sWS}:{sWS+3}], s34 offen offset:{4*31}')
        e.i('s_waitcnt vmcnt(0)')
        e.label('Lssm_noprof')
    e.i('s_endpgm')
```

```python
import sys, os
from emit import Emit
from common import *
from ffn import gen_ffn
from ssm import gen_ssm


class Cfg:
    prof = False
    stflag = 'sc1'
    nostore = False
    prio = False
    looptest = False
    prefetch = False
    kffn = 0
    rot = 6
    startprio = False
    ffnfirst = False
    nocpoll = False
    nounits = False
    presleep = 0
    tlbwarm = 0
    c2sleep = 32
    unitprof = None
    csleep = 2
    nored = False
    nossm = False
    fsleep = 2
    fuse = True
    flaglag = 2
    prostamps = False
    nodma = False
    nogelu = False
    nobar = False
    dmaspread = False
    dmabeats = (1, 5, 9)
    stamps = (1, 2, 3, 6, 9, 12, 15, 18, 20, 22, 25, 28, 31)
    prestamps = ()

def kernel_header(e, name):
    e.raw('.p2align 8')
    e.raw(f'.globl {name}')
    e.raw(f'.type {name},@function')
    e.raw(f'{name}:')

def kernel_desc(name, vgpr=256, sgpr=102):
    return f'''.amdhsa_kernel {name}
  .amdhsa_next_free_vgpr {vgpr}
  .amdhsa_next_free_sgpr {sgpr}
  .amdhsa_accum_offset {((vgpr+3)//4)*4}
  .amdhsa_group_segment_fixed_size 0
  .amdhsa_kernarg_size 120
  .amdhsa_user_sgpr_count 2
  .amdhsa_user_sgpr_kernarg_segment_ptr 1
  .amdhsa_system_sgpr_workgroup_id_x 1
.end_amdhsa_kernel
'''

def main():
    cfg = Cfg()
    cfg.prof = '--prof' in sys.argv
    for a in sys.argv:
        if a.startswith('--st='): cfg.stflag = a[5:].replace('+', ' ')
    cfg.nostore = '--nostore' in sys.argv
    cfg.prio = '--prio' in sys.argv
    cfg.looptest = '--looptest' in sys.argv
    cfg.prefetch = '--prefetch' in sys.argv
    cfg.nored = '--nored' in sys.argv
    cfg.startprio = '--startprio' in sys.argv
    cfg.ffnfirst = '--ffnfirst' in sys.argv
    for a in sys.argv:
        if a.startswith('--rot='): cfg.rot = int(a[6:])
        if a.startswith('--kffn='): cfg.kffn = int(a[7:])
    cfg.nocpoll = '--nocpoll' in sys.argv
    cfg.nounits = '--nounits' in sys.argv
    cfg.nossm = '--nossm' in sys.argv
    for a in sys.argv:
        if a.startswith('--flaglag='): cfg.flaglag = int(a[10:])
        if a.startswith('--fsleep='): cfg.fsleep = int(a[9:])
        if a.startswith('--tlbwarm='): cfg.tlbwarm = int(a[10:])
        if a.startswith('--c2sleep='): cfg.c2sleep = int(a[10:])
        if a.startswith('--unitprof='): cfg.unitprof = int(a[11:])
        if a.startswith('--csleep='): cfg.csleep = int(a[9:])
    cfg.prostamps = '--prostamps' in sys.argv
    cfg.nodma = '--nodma' in sys.argv
    cfg.nogelu = '--nogelu' in sys.argv
    cfg.nobar = '--nobar' in sys.argv
    cfg.dmaspread = '--dmaspread' in sys.argv
    for a in sys.argv:
        if a.startswith('--dmabeats='): cfg.dmabeats = tuple(int(x) for x in a[11:].split(','))
    for a in sys.argv:
        if a.startswith('--stamps='): cfg.stamps = tuple(int(x) for x in a[9:].split(',') if x)
        if a.startswith('--prestamps='): cfg.prestamps = tuple(int(x) for x in a[12:].split(',') if x)
    e = Emit()
    k1 = NAME + '_kernel'
    here = os.path.dirname(os.path.abspath(__file__))
    hdr = open(here + '/header.txt').read()
    out = [hdr.rstrip('\n')]
    out.append(f'; @launch grid=(256,1,1) block=(512,1,1) lds={LDS_BYTES}')
    out.append('.amdgcn_target "amdgcn-amd-amdhsa--gfx950"')
    out.append('.text')
    kernel_header(e, k1)
    if not cfg.ffnfirst:
        e.i('s_cmp_ge_u32 s2, 256') ; e.i('s_cbranch_scc1 Lk1_exit')
        e.i('s_cmp_ge_u32 s2, 192') ; e.i('s_cbranch_scc1 Lk1_ssm')
        e.i('s_branch Lk1_ffn')
        e.label('Lk1_exit')
        e.i('s_endpgm')
        e.label('Lk1_ssm')
        es = Emit(); gen_ssm(es, cfg); e.raw(es.text())
        e.label('Lk1_ffn')
        ef = Emit(); gen_ffn(ef, cfg); e.raw(ef.text())
    else:
        e.i('s_cmp_ge_u32 s2, 192') ; e.i('s_cbranch_scc0 Lk1_ffn')
        e.i('s_cmp_ge_u32 s2, 256') ; e.i('s_cbranch_scc1 Lk1_exit')
        e.i('s_branch Lk1_ssm')
        e.label('Lk1_exit')
        e.i('s_endpgm')
        e.label('Lk1_ffn')
        ef = Emit(); gen_ffn(ef, cfg); e.raw(ef.text())
        e.label('Lk1_ssm')
        es = Emit(); gen_ssm(es, cfg); e.raw(es.text())
    out.append(e.text())
    out.append('.section .rodata,"a"\n.p2align 6')
    out.append(kernel_desc(k1))

    print('\n'.join(out))

if __name__ == '__main__':
    main()
```

```python
from common import *
from fin import *
import ffn_unit

def ring_plan():
    slot = {0: 2, 1: 3}
    issue = {s: [] for s in range(0, 36)}
    slot[2] = 2; issue[1].append(2)
    slot[3] = 4; slot[4] = 5
    slot[5] = 3; issue[2].append(5)
    free = []
    nxt = 6
    ex = []
    for s in range(3, 36):
        free.append(slot[s-1])
        if s == 3: free = [0, 1] + free
        if s in (15, 16):
            ex.append(free.pop()); assert not free
            continue
        if s == 21: free += ex
        while free and nxt < 36:
            slot[nxt] = free.pop(0); issue[s].append(nxt); nxt += 1
    assert nxt == 36, nxt
    return slot, issue, ex

P2 = [(0,0),(1,0),(0,1),(1,1)] + [(dp, kb) for dp in range(2, 9) for kb in range(2)]

def gen_ffn(e, cfg):
    slot, issue, ex = ring_plan()
    vLANE = 1; vA0 = 2; vA1 = 3
    vPAT1 = 4; vPAT2 = 5
    vW1 = 6; vW2 = 7; vBIAS = 8; vC0 = 9
    vST = 10; vA2 = 11; vA3 = 12
    tmp = [13, 14, 15, 0]
    AF = 16
    ACC = [32, 48]
    HOWN = 64
    XF = 112
    HPART = 112
    PK = 160
    ACCP = [168, 184]
    vX0 = 32; vX1 = 33
    sW1 = 8; sW2 = 12; sX = 16; sWS = 20; sB1 = 24
    sWV = 28; sMI = 29; sP = 30; sC = 31; sT = 32
    sW1B = 33; sXB = 34; sM0B = 35; sOFF = 36; sGC1 = 37; sSTO = 38; sROT = 39
    sC1 = 44
    sR2 = 50
    sD2 = 56
    sNONCE = 66; sFLB = 67; sDB = 68
    vNON = 200; vZERO = 201
    sPROF = 72
    nprof = [0]
    def stamp(name):
        if cfg.prof and nprof[0] < 13:
            k = nprof[0]; nprof[0] += 1
            e.i(f's_memtime s[{sPROF+2*k}:{sPROF+2*k+1}]')
    if cfg.prof: e.i('s_memrealtime s[98:99]')
    stamp('start')
    e.i('s_and_b32 s40, s2, 7')
    e.i('s_lshr_b32 s41, s2, 3')
    e.i('s_lshr_b32 s42, s40, 1')
    e.i('s_mul_i32 s42, s42, 3')
    e.i('s_lshr_b32 s43, s41, 3')
    e.i(f's_add_u32 s{sC}, s42, s43')
    e.i('s_and_b32 s42, s40, 1')
    e.i('s_lshl_b32 s42, s42, 3')
    e.i('s_and_b32 s43, s41, 7')
    e.i(f's_add_u32 s{sT}, s42, s43')
    e.i(f's_load_dwordx2 s[{sX}:{sX+1}], s[0:1], {KA["q"]}')
    e.i(f's_load_dwordx2 s[{sW1}:{sW1+1}], s[0:1], {KA["w1"]}')
    e.i(f's_load_dwordx2 s[{sB1}:{sB1+1}], s[0:1], {KA["b1"]}')
    e.i(f's_load_dwordx2 s[{sW2}:{sW2+1}], s[0:1], {KA["w2"]}')
    e.i(f's_load_dwordx2 s[{sWS}:{sWS+1}], s[0:1], {KA["ws"]}')
    e.i(f's_load_dwordx2 s[{sDB}:{sDB+1}], s[0:1], {KA["dbg"]}')
    e.i(f's_load_dwordx2 s[4:5], s[0:1], {KA["out"]}')
    e.i(f's_load_dwordx2 s[6:7], s[0:1], {KA["b2"]}')
    L = vLANE
    e.i(f'v_and_b32 v{L}, 63, v0')
    e.i('v_lshrrev_b32 v13, 6, v0')
    e.i('s_nop 0')
    e.i(f'v_readfirstlane_b32 s{sWV}, v13')
    for s_, nb in ((sW1, D*F*2), (sW2, F*D*2), (sX, S*D*2), (sWS, WS_TOTAL), (sB1, F*2), (sDB, 256)):
        e.i(f's_mov_b32 s{s_+2}, {nb}')
        e.i(f's_mov_b32 s{s_+3}, 0x00020000')
    e.i(f's_mov_b32 s{sGC1}, {hex(f2u(GC1))}')
    e.i(f'v_mov_b32 v{vC0}, {hex(f2u(GC0))}')
    e.i(f's_and_b32 s{sMI}, s{sWV}, 3')
    e.i(f's_lshr_b32 s{sP}, s{sWV}, 2')
    e.i(f'v_lshrrev_b32 v13, 3, v{L}')
    e.i(f'v_lshrrev_b32 v14, 4, v{L}')
    e.i(f'v_and_b32 v15, 7, v{L}')
    e.i(f'v_xor_b32 v16, v15, v14')
    e.i(f'v_mul_u32_u24 v17, 1152, v13')
    e.i(f'v_lshl_add_u32 v{vX0}, v16, 4, v17')
    e.i(f'v_xor_b32 v16, 4, v16')
    e.i(f'v_lshl_add_u32 v{vX1}, v16, 4, v17')
    e.i(f'v_add_u32 v{vX1}, {8*1152}, v{vX1}')
    e.i(f's_lshl_b32 s41, s{sT}, 7')
    e.i(f's_lshl_b32 s42, s{sWV}, 4')
    e.i(f's_add_u32 s41, s41, s42')
    e.i(f's_mul_i32 s{sXB}, s41, 1152')
    e.i(f's_lshl_b32 s{sM0B}, s{sWV}, 11')
    e.i(f'v_and_b32 v14, 1, v14')
    e.i(f'v_lshlrev_b32 v14, 2, v14')
    e.i(f'v_xor_b32 v15, v15, v14')
    e.i(f'v_lshlrev_b32 v15, 4, v15')
    e.i(f'v_mul_u32_u24 v14, 9216, v13')
    e.i(f'v_add_u32 v{vW1}, v14, v15')
    e.i(f'v_add_u32 v{vW2}, v17, v15')
    e.i(f's_and_b32 s43, s{sT}, 7')
    if cfg.rot == 6:
        e.i(f's_sub_u32 s42, s43, 6')
        e.i(f's_min_u32 s{sROT}, s43, s42')
    elif cfg.rot == 2:
        e.i(f's_and_b32 s42, s43, 1')
        e.i(f's_mul_i32 s{sROT}, s42, 3')
    elif cfg.rot == 3:
        e.i(f's_and_b32 s42, s43, 3')
        e.i(f's_lshl_b32 s42, s42, 1')
        e.i(f's_sub_u32 s41, s42, 6')
        e.i(f's_min_u32 s{sROT}, s42, s41')
    else:
        e.i(f's_mov_b32 s{sROT}, 0')
    e.i(f's_mul_i32 s40, s{sC}, {FC}')
    e.i(f's_lshl_b32 s41, s40, 1')
    e.i(f's_mul_i32 s42, s{sWV}, {24*9216}')
    e.i(f's_add_u32 s{sW1B}, s41, s42')
    for fp in range(6):
        e.i(f's_add_u32 s42, s{sROT}, {fp}')
        e.i(f's_sub_u32 s41, s42, 6')
        e.i(f's_min_u32 s42, s42, s41')
        e.i(f's_lshl_b32 s42, s42, 7')
        e.i(f's_add_u32 s{sC1+fp}, s{sW1B}, s42')
    e.i('s_waitcnt lgkmcnt(0)')
    if cfg.prostamps: stamp('kernarg')
    for s_ in (sW1, sW2, sX, sWS, sB1, sDB):
        e.i(f's_and_b32 s{s_+1}, s{s_+1}, 0xffff')
    def xdma(blk, base):
        for a, vx in ((0, vX0), (1, vX1)):
            e.i(f's_add_u32 m0, s{sM0B}, {base + a*1024}')
            e.i(f's_add_u32 s{sOFF}, s{sXB}, {blk*128}')
            e.vm(f'buffer_load_dwordx4 v{vx}, s[{sX}:{sX+3}], s{sOFF} offen lds', ('xd', blk, a))
    def dma_one(it, i):
        if cfg.nodma and it >= 6:
            e.vq.append(('dma', it, i)); e.vm_done.add(('dma', it, i)); e.vq.pop(); return
        sl = slot[it]
        e.i(f's_add_u32 m0, s{sM0C}, {sl*SLOT + i*1024}')
        if it < 18:
            fp, kb = it // 3, it % 3
            e.i(f's_add_u32 s{sOFF}, s{sC1+fp}, {(192*kb + 8*i)*9216}')
            e.vm(f'buffer_load_dwordx4 v{vW1}, s[{sW1}:{sW1+3}], s{sOFF} offen lds', ('dma', it, i))
        else:
            dp, kb = P2[it-18]
            e.i(f's_add_u32 s{sOFF}, s{sR2+3*kb+i}, s{sD2+dp}')
            e.vm(f'buffer_load_dwordx4 v{vW2}, s[{sW2}:{sW2+3}], s{sOFF} offen lds', ('dma', it, i))
    sM0C = 65
    e.i(f's_mul_i32 s{sM0C}, s{sWV}, 3072')
    def dma_item(it):
        for i in range(3): dma_one(it, i)
    if cfg.startprio: e.i('s_setprio 3')
    for b in range(3): xdma(b, b*16384)
    e.i(f'v_lshrrev_b32 v13, 5, v{L}')
    e.i(f's_lshl_b32 s42, s{sWV}, 1')
    e.i(f's_add_u32 s42, s42, s{sROT}')
    e.i(f'v_add_u32 v13, s42, v13')
    e.i(f'v_subrev_u32 v14, 6, v13')
    e.i(f'v_min_u32 v13, v13, v14')
    e.i(f'v_lshlrev_b32 v13, 7, v13')
    e.i(f'v_and_b32 v14, 31, v{L}')
    e.i(f'v_lshl_add_u32 v13, v14, 2, v13')
    e.i(f's_lshl_b32 s44, s40, 1') if False else None
    e.i(f's_lshl_b32 s41, s40, 1')
    e.i(f's_cmp_lt_u32 s{sWV}, 3')
    e.i(f's_cbranch_scc0 Lffn_nobias_ld')
    e.i(f'buffer_load_dword v34, v13, s[{sB1}:{sB1+3}], s41 offen')
    e.label('Lffn_nobias_ld')
    if cfg.startbar >= 1: e.i('s_barrier')
    dma_item(0)
    if cfg.startprio: e.i('s_setprio 2')
    if cfg.startbar >= 2: e.i('s_barrier')
    dma_item(1)
    if cfg.startbar >= 3: e.i('s_barrier')
    if cfg.startprio: e.i('s_setprio 0')
    for b in range(3, 6): xdma(b, 4*SLOT + (b-3)*16384)
    if cfg.touch:
        e.i(f'v_mul_u32_u24 v38, 1152, v{L}')
        e.i(f'v_mul_u32_u24 v39, 9216, v{L}')
        e.i(f's_cmp_ge_u32 s{sWV}, 3')
        e.i(f's_cselect_b32 s41, 1, 0')
        e.i(f's_mul_i32 s42, s41, 3')
        e.i(f's_sub_u32 s42, s{sWV}, s42')
        e.i(f's_lshl_b32 s42, s42, 7')
        e.i(f's_mul_i32 s41, s41, {64*1152}')
        e.i(f's_add_u32 s41, s41, s42')
        e.i(f's_lshl_b32 s42, s{sT}, 7')
        e.i(f's_mul_i32 s42, s42, 1152')
        e.i(f's_add_u32 s41, s41, s42')
        e.i(f's_add_u32 s41, s41, 768')
        e.i(f's_cmp_lt_u32 s{sWV}, 6')
        e.i(f's_cselect_b32 s41, s41, 0x70000000')
        e.vm(f'buffer_load_dword v104, v38, s[{sX}:{sX+3}], s41 offen', ('touch', 0))
        e.i(f's_mul_i32 s42, s{sWV}, {24*9216}')
        e.i(f's_sub_u32 s41, s{sC1}, s42')
        e.i(f's_sub_u32 s42, s{sC1+1}, s42')
        e.i(f's_add_u32 s41, s41, {192*2*9216}')
        e.i(f's_mul_i32 s38, s{sWV}, {64*9216}')
        e.i(f's_add_u32 s41, s41, s38')
        e.i(f's_sub_u32 s38, s38, {3*64*9216}')
        e.i(f's_add_u32 s38, s38, s42')
        e.i(f's_cmp_lt_u32 s{sWV}, 3')
        e.i(f's_cselect_b32 s41, s41, s38')
        e.vm(f'buffer_load_dword v105, v39, s[{sW1}:{sW1+3}], s41 offen', ('touch', 1))
        e.i(f's_add_u32 s42, s42, {5*64*9216}')
        e.i(f's_cmp_eq_u32 s{sWV}, 0')
        e.i(f's_cselect_b32 s42, s42, 0x70000000')
        e.vm(f'buffer_load_dword v106, v39, s[{sW1}:{sW1+3}], s42 offen', ('touch', 2))
    if cfg.prostamps: stamp('issued')
    for i in range(3):
        e.i(f's_mul_i32 s41, s{sWV}, 24')
        e.i(f's_add_u32 s41, s41, {8*i}')
        e.i(f's_lshr_b32 s42, s41, 6')
        e.i(f's_and_b32 s41, s41, 63')
        e.i(f's_add_u32 s41, s41, s40')
        e.i(f's_add_u32 s42, s42, s{sROT}')
        for kb in range(2):
            e.i(f's_add_u32 s{sOFF}, s42, {3*kb}')
            e.i(f's_sub_u32 s{sSTO}, s{sOFF}, 6')
            e.i(f's_min_u32 s{sOFF}, s{sOFF}, s{sSTO}')
            e.i(f's_lshl_b32 s{sOFF}, s{sOFF}, 6')
            e.i(f's_add_u32 s{sOFF}, s{sOFF}, s41')
            e.i(f's_mul_i32 s{sR2+3*kb+i}, s{sOFF}, 1152')
    for dp in range(9):
        e.i(f's_add_u32 s42, s43, {dp}')
        e.i(f's_sub_u32 s41, s42, 9')
        e.i(f's_min_u32 s42, s42, s41')
        e.i(f's_lshl_b32 s{sD2+dp}, s42, 7')
    e.i(f's_lshl_b32 s42, s{sT}, 2')
    e.i(f's_add_u32 s42, s42, s{sMI}')
    e.i(f's_mul_i32 s42, s42, 18')
    e.i(f's_add_u32 s42, s42, s{sP}')
    e.i(f's_mul_i32 s42, s42, {NCH}')
    e.i(f's_add_u32 s42, s42, s{sC}')
    e.i(f's_lshl_b32 s{sSTO}, s42, 11')
    e.i(f's_add_u32 s{sSTO}, s{sSTO}, {WS_PART}')
    e.i(f's_mul_i32 s42, s{sT}, {9*12}')
    e.i(f's_add_u32 s42, s42, s{sC}')
    e.i(f's_lshl_b32 s42, s42, 8')
    e.i(f's_add_u32 s42, s42, {WS_FLAG}')
    e.i(f's_cmp_eq_u32 s{sWV}, 0')
    e.i(f's_cselect_b32 s{sFLB}, s42, 0x70000000')
    e.i(f'v_lshrrev_b32 v15, 5, v{L}')
    e.i(f's_lshl_b32 s42, s{sP}, 7')
    e.i(f's_add_u32 s42, s42, {LDS_BIAS}')
    e.i(f'v_lshl_add_u32 v{vBIAS}, v15, 4, s42')
    e.i(f'v_and_b32 v13, 15, v{L}')
    e.i(f'v_lshrrev_b32 v14, 2, v13')
    e.i(f'v_lshrrev_b32 v0, 3, v13')
    e.i(f'v_xor_b32 v0, s{sP}, v0')
    e.i(f'v_lshlrev_b32 v0, 6, v0')
    e.i(f'v_lshrrev_b32 v{vA0}, 4, v{L}')
    e.i(f'v_and_b32 v{vA0}, 1, v{vA0}')
    e.i(f'v_lshl_add_u32 v0, v{vA0}, 5, v0')
    e.i(f'v_and_b32 v{vA0}, 3, v13')
    e.i(f'v_lshl_add_u32 v0, v{vA0}, 3, v0')
    e.i(f'v_lshl_add_u32 v{vA0}, v15, 3, v14')
    e.i(f'v_lshl_add_u32 v{vPAT1}, v{vA0}, 7, v0')
    e.i(f'v_lshl_add_u32 v{vA0}, v15, 2, v14')
    e.i(f'v_lshl_add_u32 v{vPAT2}, v{vA0}, 7, v0')
    e.i(f'v_and_b32 v13, 31, v{L}')
    e.i(f'v_lshrrev_b32 v14, 1, v13')
    e.i(f'v_and_b32 v14, 7, v14')
    e.i(f'v_xor_b32 v14, v14, v15')
    e.i(f'v_lshlrev_b32 v14, 4, v14')
    e.i(f's_lshl_b32 s42, s{sMI}, 12')
    e.i(f'v_lshl_add_u32 v13, v13, 7, v14')
    e.i(f'v_add_u32 v{vST}, s42, v13')
    def xaddr(region):
        for tl in range(4):
            e.valu(f'v_xor_b32 v{tmp[tl]}, {32*tl}, v{vST}', dst=[tmp[tl]])
            if region:
                e.valu(f'v_add_u32 v{tmp[tl]}, {region}, v{tmp[tl]}', dst=[tmp[tl]])
    def xread(t):
        g = t // 12; tt = t % 12
        e.lds(f'ds_read_b128 v[{XF+4*t}:{XF+4*t+3}], v{tmp[tt & 3]} offset:{(tt >> 2)*16384}', ('x', t))
    if cfg.prostamps: stamp('setup done')
    if cfg.prostamps:
        e.wait_vm(('xd', 0, 0)); stamp('first landed')
    e.wait_vm(('xd', 2, 1))
    if cfg.prostamps: stamp('XA landed')
    e.i('s_barrier')
    stamp('Ba')
    xaddr(0)
    for t in range(12): xread(t)
    if cfg.earlyxc:
        e.i('s_waitcnt lgkmcnt(0)')
        e.i('s_barrier')
        for b in range(6, 9): xdma(b, (b-6)*16384)
    e.wait_vm(('dma', 0, 0))
    e.i(f's_cmp_lt_u32 s{sWV}, 3')
    e.i(f's_cbranch_scc0 Lffn_nobias_st')
    e.i('v_lshlrev_b32 v36, 16, v34')
    e.i('v_and_b32 v37, 0xffff0000, v34')
    e.i(f'v_lshlrev_b32 v35, 3, v{L}')
    e.i(f's_lshl_b32 s42, s{sWV}, 9')
    e.i(f's_add_u32 s42, s42, {LDS_BIAS}')
    e.i(f'v_add_u32 v35, s42, v35')
    e.i('ds_write_b64 v35, v[36:37]')
    e.label('Lffn_nobias_st')
    e.i('s_waitcnt lgkmcnt(0)')
    e.lq = []; e.lds_done.update(('x', t) for t in range(12))
    e.wait_vm(('dma', 1, 2))
    e.i('s_barrier')
    stamp('Bb')
    if not cfg.earlyxc:
        for b in range(6, 9): xdma(b, (b-6)*16384)

    beats = [(s, b) for s in range(36) for b in range(12)]
    PD = cfg.pd
    def frag_reg(gb):
        s_ = beats[gb][0]
        if cfg.nb == 4: return AF + 4*(gb % 4)
        k = gb % cfg.nb
        if k < 4: return AF + 4*k
        return (104 + 4*(k - 4)) if s_ < 18 else (204 + 4*(k - 4))
    NOPREF = {2, 3}
    def addr_reg(s, partner=False):
        if s < 18: return (vA0, vA1)[s & 1]
        return ((vA2, vA3) if partner else (vA0, vA1))[s & 1]
    addr_set = set()
    def ensure_addr(s):
        if s in addr_set or s >= 36: return
        addr_set.add(s)
        base = slot[s]*SLOT
        e.valu(f'v_add_u32 v{addr_reg(s)}, {base}, v{vPAT1}', dst=[addr_reg(s)])
        if s >= 18:
            e.valu(f'v_add_u32 v{addr_reg(s, True)}, {base}, v{vPAT2}', dst=[addr_reg(s, True)])
    def p2_beat(b):
        return b >= 6, (b % 6) // 2, b % 2
    issued = set()
    def issue_reads(gb):
        if gb >= len(beats) or gb in issued: return
        issued.add(gb)
        s, b = beats[gb]
        fr = frag_reg(gb)
        if s < 18:
            a = addr_reg(s); o1 = b*2048; o2 = o1 + 512
        else:
            partner, u, tp = p2_beat(b)
            a = addr_reg(s, partner); o1 = u*8192 + tp*2048; o2 = o1 + 1024
        e.lds(f'ds_read_b64_tr_b16 v[{fr}:{fr+1}], v{a} offset:{o1}', ('af', gb, 0))
        e.lds(f'ds_read_b64_tr_b16 v[{fr+2}:{fr+3}], v{a} offset:{o2}', ('af', gb, 1))
    def bias_read(tile, j):
        acc = ACC[tile & 1]
        e.lds(f'ds_read_b128 v[{acc+4*j}:{acc+4*j+3}], v{vBIAS} offset:{256*tile + 32*j}', ('bias', tile, j))
    def gelu_ops(tile):
        acc = ACC[tile & 1]
        ops = []
        for pr in range(8):
            a = acc + 2*pr; b = a + 1
            t0, t1 = (tmp[0], tmp[1]) if pr % 2 == 0 else (tmp[2], tmp[3])
            h = HOWN + 8*tile + pr
            seq = [
                (f'v_mul_f32_e32 v{t0}, v{a}, v{a}', [t0], [a], False),
                (f'v_mul_f32_e32 v{t1}, v{b}, v{b}', [t1], [b], False),
                (f'v_fma_f32 v{t0}, v{t0}, s{sGC1}, v{vC0}', [t0], [t0], False),
                (f'v_fma_f32 v{t1}, v{t1}, s{sGC1}, v{vC0}', [t1], [t1], False),
                (f'v_mul_f32_e32 v{t0}, v{t0}, v{a}', [t0], [t0, a], False),
                (f'v_mul_f32_e32 v{t1}, v{t1}, v{b}', [t1], [t1, b], False),
                (f'v_exp_f32_e32 v{t0}, v{t0}', [t0], [t0], True),
                (f'v_exp_f32_e32 v{t1}, v{t1}', [t1], [t1], True),
                (f'v_add_f32_e32 v{t0}, 1.0, v{t0}', [t0], [t0], False),
                (f'v_add_f32_e32 v{t1}, 1.0, v{t1}', [t1], [t1], False),
                (f'v_rcp_f32_e32 v{t0}, v{t0}', [t0], [t0], True),
                (f'v_rcp_f32_e32 v{t1}, v{t1}', [t1], [t1], True),
                (f'v_mul_f32_e32 v{t0}, v{t0}, v{a}', [t0], [t0, a], False),
                (f'v_mul_f32_e32 v{t1}, v{t1}, v{b}', [t1], [t1, b], False),
                (f'v_cvt_pk_bf16_f32 v{h}, v{t0}, v{t1}', [h], [t0, t1], False),
            ]
            for (txt, d, s_, tr) in (seq if not cfg.nogelu else seq[-1:]):
                ops.append(lambda txt=txt, d=d, s_=s_, tr=tr: e.valu(txt, dst=d, src=s_, trans=tr))
            if pr % 2 == 1 and tile + 2 < 6:
                ops.append(lambda j=pr // 2: bias_read(tile + 2, j))
        return ops
    def store_ops(dp):
        acc = ACCP[dp & 1]
        ops = []
        for half in range(2):
            for k in range(4):
                r = acc + 8*half + 2*k
                d = PK + 4*half + k
                ops.append(lambda r=r, d=d: e.valu(f'v_cvt_pk_bf16_f32 v{d}, v{r}, v{r+1}', dst=[d], src=[r, r+1]))
            def st(half=half):
                if half == 0:
                    e.i(f's_mul_i32 s{sOFF}, s{sD2+dp}, {2*NCH*2048//128}')
                    e.i(f's_add_u32 s{sOFF}, s{sOFF}, s{sSTO}')
                else:
                    e.i(f's_mul_i32 s{sOFF}, s{sD2+dp}, {2*NCH*2048//128}')
                    e.i(f's_add_u32 s{sOFF}, s{sOFF}, s{sSTO}')
                if not cfg.nostore:
                    e.vm(f'buffer_store_dwordx4 v[{PK+4*half}:{PK+4*half+3}], v{vST}, s[{sWS}:{sWS+3}], s{sOFF} offen offset:{1024*half} {cfg.stflag}', ('st', dp, half))
            ops.append(st)
        return ops
    K = cfg.kffn if cfg.fuse else 0
    ufill, utail = ffn_unit.build(e, K, sWV, sC, sT, sWS, sX, sNONCE, vLANE) if K else ({}, [])
    flags_sent = set()
    st_waited = set()
    def send_flag(dp):
        if dp in flags_sent: return
        assert dp in st_waited, dp
        flags_sent.add(dp)
        e.i(f's_mul_i32 s{sOFF}, s{sD2+dp}, 24')
        e.i(f's_add_u32 s{sOFF}, s{sOFF}, s{sFLB}')
        e.vm(f'buffer_store_dword v{vNON}, v{vZERO}, s[{sWS}:{sWS+3}], s{sOFF} offen sc1', ('flag', dp))
    for j in range(4): bias_read(0, j)
    for j in range(4): bias_read(1, j)
    ensure_addr(0)
    e.nop(1)
    for gb in range(PD): issue_reads(gb)
    fill = []
    dma_list = []
    dp_done = {}
    for idx, (dp, kb) in enumerate(P2):
        if kb == 1: dp_done[18 + idx + 1] = dp
    flag_at = {}
    for st_s, dp_ in dp_done.items():
        fs = st_s + cfg.flaglag
        if fs > 35: fs = 35 if st_s + 2 <= 35 else None
        if fs is not None: flag_at.setdefault(fs, []).append(dp_)
    for gb, (s, b) in enumerate(beats):
        if b == 0:
            e.comment(f'---- stage {s} (slot {slot[s]}) ----')
            if s in cfg.stamps: stamp('stage')
            dma_list = [(it, i) for it in issue[s] for i in range(3)]
            if s in NOPREF:
                ensure_addr(s)
                for k in range(PD): issue_reads(gb + k)
            ensure_addr(s + 1)
            if s == 1:
                xaddr(4*SLOT)
                for t in range(12, 24): xread(t)
            if s == 2:
                xaddr(0)
                for t in range(24, 36): xread(t)
            if s < 18 and s % 3 == 0 and s >= 3:
                fill = gelu_ops(s // 3 - 1); nfill = len(fill); fill_span = (2, 34); fill_base = gb
            if s == 18:
                fill = gelu_ops(5); nfill = len(fill); fill_span = (2, 21); fill_base = gb
            if s in dp_done:
                assert not fill
                fill = store_ops(dp_done[s]); nfill = len(fill); fill_span = (3, 10); fill_base = gb
                if cfg.stspread and s >= 24 and s + 1 <= 35:
                    fill_span = (2, 21)
            if s == 16:
                e.valu(f'v_lshlrev_b32 v{vST}, 4, v{vLANE}', dst=[vST])
                e.i(f's_mul_i32 s42, s{sMI}, 6144')
                e.i(f's_mul_i32 s43, s{sP}, {(ex[1]-ex[0])*SLOT}')
                e.i(f's_add_u32 s41, s43, {ex[0]*SLOT}')
                e.i(f's_sub_u32 s43, {ex[1]*SLOT}, s43')
                e.i(f's_add_u32 s41, s41, s42')
                e.i(f's_add_u32 s43, s43, s42')
                e.valu(f'v_add_u32 v{vBIAS}, s41, v{vST}', dst=[vBIAS])
                e.valu(f'v_add_u32 v{vW1}, s43, v{vST}', dst=[vW1])
        if cfg.prio and cfg.priomode == 4 and b % 3 == 0:
            e.i(f's_setprio {3 - b // 3}')
        if cfg.prio and cfg.priomode == 2 and b % 6 == 0:
            e.i(f's_setprio {1 - b // 6}')
        if cfg.prio and cfg.priomode == 3 and b % 4 == 0:
            e.i(f's_setprio {2 - b // 4}')
        if cfg.looptest and b == 0 and s in (6, 9):
            if s == 6:
                e.i('s_mov_b32 s101, 0'); e.label('Lrep6')
            else:
                e.i('s_add_u32 s101, s101, 1'); e.i('s_cmp_lt_u32 s101, 2'); e.i('s_cbranch_scc1 Lrep6')
        if cfg.wmerge and b % 2 == 0 and gb + 1 in issued and beats[gb + 1][0] == s:
            e.wait_lds(('af', gb + 1, 1))
        e.wait_lds(('af', gb, 1))
        fr = frag_reg(gb)
        if s < 18:
            tile = s // 3; t = (s % 3)*12 + b
            if tile == 0: e.wait_lds(('x', t))
            acc = ACC[tile & 1]
            if t == 0:
                for j in range(4): e.wait_lds(('bias', tile, j))
            xb = XF + 4*t
            e.mfma(f'v_mfma_f32_32x32x16_bf16 v[{acc}:{acc+15}], v[{fr}:{fr+3}], v[{xb}:{xb+3}], v[{acc}:{acc+15}]',
                   list(range(acc, acc+16)), list(range(fr, fr+4)) + list(range(xb, xb+4)))
        else:
            dp, kb = P2[s-18]
            partner, u, tp = p2_beat(b)
            fp = 3*kb + u
            hb = (HPART if partner else HOWN) + 8*fp + 4*tp
            if partner and (s == 18 or s == 20):
                e.wait_lds(('exr', fp*2 + tp))
            acc = ACCP[dp & 1]
            c = '0' if (kb == 0 and b == 0) else f'v[{acc}:{acc+15}]'
            e.mfma(f'v_mfma_f32_32x32x16_bf16 v[{acc}:{acc+15}], v[{fr}:{fr+3}], v[{hb}:{hb+3}], {c}',
                   list(range(acc, acc+16)), list(range(fr, fr+4)) + list(range(hb, hb+4)))
        nb = gb + PD
        if nb < len(beats) and not (beats[nb][0] in NOPREF and beats[nb][0] != s):
            issue_reads(nb)
        if s == 1 and b == 3:
            e.wait_lds(('x', 23))
            e.i('s_barrier')
            dma_list += [(3, i) for i in range(3)] + [(4, i) for i in range(3)]
        if b == 0: ndma0 = len(dma_list); ndma_done = 0
        if s == 1 and b == 3: ndma0 = len(dma_list) ; ndma_done = 0; dma_b0 = 3
        elif b == 0: dma_b0 = 0
        if dma_list:
            if cfg.dmaspread:
                span = 10 - dma_b0
                tgt = ndma0 if b >= 10 else -(-ndma0 * (b - dma_b0) // span) if b > dma_b0 else 0
                if ndma0 <= 3:
                    pts = cfg.dmabeats
                    tgt = sum(1 for p_ in pts[:ndma0] if b >= p_)
                    if s < 3: tgt = ndma0 if b >= dma_b0 + 2 else min(ndma0, b - dma_b0 + 1)
                while ndma_done < tgt and dma_list:
                    dma_one(*dma_list.pop(0)); ndma_done += 1
            else:
                k = -(-len(dma_list) // max(1, 7 - b)) if b < 7 else len(dma_list)
                for _ in range(min(k, len(dma_list))):
                    dma_one(*dma_list.pop(0))
        if cfg.prefetch and s in (4, 5) and b == 8:
            k = s - 4
            e.i(f's_and_b32 s41, s{sT}, 7')
            e.i(f's_lshl_b32 s41, s41, 3')
            e.i(f's_add_u32 s41, s41, s{sWV}')
            e.i(f's_lshl_b32 s41, s41, 1')
            e.i(f's_add_u32 s41, s41, {k}')
            e.i(f's_lshl_b32 s41, s41, 12')
            e.i(f's_mul_i32 s42, s{sC}, {FC*1152}')
            e.i(f's_add_u32 s41, s41, s42')
            e.i(f's_min_u32 s41, s41, {F*D*2 - 4096}')
            e.valu(f'v_lshlrev_b32 v{vA3}, 6, v{vLANE}', dst=[vA3])
            e.vm(f'buffer_load_dword v{vA2}, v{vA3}, s[{sW2}:{sW2+3}], s41 offen', ('pf', k))
        if cfg.tlbwarm and s == cfg.tlbwarm and b == 8:
            e.valu(f'v_min_u32 v{vA3}, 9, v{vLANE}', dst=[vA3])
            e.valu(f'v_mul_u32_u24 v{vA3}, {2*NCH*2048}, v{vA3}', dst=[vA3])
            e.vm(f'buffer_load_dword v{vA2}, v{vA3}, s[{sWS}:{sWS+3}], s{sSTO} offen', ('tw', 0))
            e.valu(f'v_mov_b32 v{vA3}, 0', dst=[vA3])
            e.vm(f'buffer_load_dword v{vA2}, v{vA3}, s[{sWS}:{sWS+3}], s{sFLB} offen', ('tw', 1))
            e.valu(f'v_min_u32 v{vA3}, 6, v{vLANE}', dst=[vA3])
            e.valu(f'v_mul_u32_u24 v{vA3}, {64*1152}, v{vA3}', dst=[vA3])
            e.i(f's_mul_i32 s41, s{sC}, {FC*1152}')
            e.vm(f'buffer_load_dword v{vA2}, v{vA3}, s[{sW2}:{sW2+3}], s41 offen', ('tw', 2))
        if cfg.fuse and s == 17 and b == 0:
            e.i('s_mov_b32 s39, 0')
        if cfg.fuse and s == 17 and b == 1:
            e.valu(f'v_mov_b32 v{vZERO}, 0', dst=[vZERO])
            e.vm(f'buffer_load_dword v{vNON}, v{vZERO}, s[{sDB}:{sDB+3}], 0 offen offset:{DBG_NONCE} sc1', ('nonce',))
        if cfg.fuse and not cfg.nossm and s == 20 and b == 8:
            e.wait_vm(('nonce',))
            e.label('Lffn_npoll')
            e.i(f'v_readfirstlane_b32 s{sNONCE}, v{vNON}')
            e.i(f's_cmp_lg_u32 s{sNONCE}, 0')
            e.i('s_cbranch_scc1 Lffn_nok')
            e.i(f'buffer_load_dword v{vNON}, v{vZERO}, s[{sDB}:{sDB+3}], 0 offen offset:{DBG_NONCE} sc1')
            e.i('s_waitcnt vmcnt(0)')
            e.i('s_add_u32 s39, s39, 1'); e.i('s_cmp_lt_u32 s39, 0x40000'); e.i('s_cbranch_scc1 Lffn_npoll')
            e.label('Lffn_nok')
            e.valu(f'v_lshlrev_b32 v{vZERO}, 2, v{vLANE}', dst=[vZERO])
        if cfg.fuse and b == 1:
            for dp_ in flag_at.get(s, []): send_flag(dp_)
        if s == 16 and b % 2 == 0:
            k = b // 2
            r = HOWN + 4*k
            e.lds(f'ds_write_b128 v{vBIAS}, v[{r}:{r+3}] offset:{1024*k}', ('exw', k))
        if s == 17 and b < 6:
            r = HPART + 4*b
            e.lds(f'ds_read_b128 v[{r}:{r+3}], v{vW1} offset:{1024*b}', ('exr', b))
        if s == 19 and b in (0, 2, 4, 6):
            k = b // 2
            r = HOWN + 24 + 4*k
            e.lds(f'ds_write_b128 v{vBIAS}, v[{r}:{r+3}] offset:{1024*k}', ('exw', 6 + k))
        if s == 20 and b < 6:
            r = HPART + 24 + 4*b
            e.lds(f'ds_read_b128 v[{r}:{r+3}], v{vW1} offset:{1024*b}', ('exr', 6 + b))
        if s in ufill and ufill[s]:
            lst = ufill[s]
            if b == 0: ucount = len(lst)
            tgt = ucount if b >= 10 else (ucount * (b + 1)) // 11
            while ucount - len(lst) < tgt:
                lst.pop(0)()
        if fill:
            rel = gb - fill_base
            lo, hi = fill_span
            if rel >= lo:
                tgt = nfill if rel >= hi else (nfill * (rel - lo + 1)) // (hi - lo + 1)
                donec = nfill - len(fill)
                while donec < tgt:
                    fill.pop(0)(); donec += 1
        if s == 19 and b == 11:
            assert not fill
            for k in (4, 5):
                r = HOWN + 24 + 4*k
                e.lds(f'ds_write_b128 v{vBIAS}, v[{r}:{r+3}] offset:{1024*k}', ('exw', 6 + k))
        if s == 16 and b == 11:
            e.i(f's_lshl_b32 s42, s{sP}, 12')
            e.i(f's_xor_b32 s43, s42, 4096')
            e.valu(f'v_add_u32 v{vPAT1}, s42, v{vPAT2}', dst=[vPAT1])
            e.valu(f'v_add_u32 v{vPAT2}, s43, v{vPAT2}', dst=[vPAT2])
        if b == 11:
            assert not dma_list
            if s in cfg.prestamps: stamp('prewait')
            if s == 0:
                e.wait_vm(('xd', 5, 1))
            elif s == 1:
                e.wait_vm(('dma', 2, 2)); e.wait_vm(('xd', 8, 1))
            elif s + 2 < 36:
                e.wait_vm(('dma', s + 2, 2))
            if s in (16, 19):
                e.wait_lds(('exw', 5 if s == 16 else 11))
            if s == 17: e.wait_lds(('exr', 5))
            if s == 20: e.wait_lds(('exr', 11))
            if s == 2: e.wait_lds(('x', 35))
            if cfg.fuse:
                for dp_ in flag_at.get(s + 1, []):
                    if not cfg.nostore: e.wait_vm(('st', dp_, 1))
                    st_waited.add(dp_)
            if s in cfg.prestamps: stamp('postwait')
            if s < 35 and not (cfg.nobar and s >= 3):
                e.i('s_barrier')
    stamp('mainloop end')
    for op in store_ops(8): op()
    if cfg.fuse and K == 0:
        e.wait_vm_all()
        e.i('s_barrier')
        for dp in range(9):
            st_waited.add(dp); send_flag(dp)
        e.wait_vm_all()
    elif cfg.fuse:
        e.i(f's_cmp_lt_u32 s{ffn_unit.U.sU}, {8*K}')
        e.i('s_cbranch_scc0 Lffn_nounit')
        for op in utail: op()
        e.label('Lffn_nounit')
        stamp('pre done')
        e.i('s_waitcnt vmcnt(0) lgkmcnt(0)')
        e.vq = []; e.lq = []
        e.i('s_barrier')
        for dp in range(9):
            st_waited.add(dp); send_flag(dp)
        ffn_unit.tail(e, K, sT, sWS, sNONCE, cfg, stamp, utail)
    else:
        e.wait_vm_all()
    stamp('end')
    if cfg.prof:
        e.i('s_memrealtime s[100:101]')
        e.i('s_waitcnt lgkmcnt(0)')
        e.i(f's_cmp_eq_u32 s{sWV}, 0')
        e.i('s_cbranch_scc0 Lffn_noprof')
        e.i(f's_lshl_b32 s42, s2, 7')
        e.i(f's_add_u32 s42, s42, {WS_PROF}')
        e.i(f'v_mov_b32 v14, 0')
        for k in range(nprof[0]):
            e.i(f'v_mov_b32 v13, s{sPROF+2*k}')
            e.i(f'buffer_store_dword v13, v14, s[{sWS}:{sWS+3}], s42 offen offset:{4*k}')
        e.i(f'v_mov_b32 v13, s98')
        e.i(f'buffer_store_dword v13, v14, s[{sWS}:{sWS+3}], s42 offen offset:{4*30}')
        e.i(f'v_mov_b32 v13, s100')
        e.i(f'buffer_store_dword v13, v14, s[{sWS}:{sWS+3}], s42 offen offset:{4*31}')
        e.i('s_waitcnt vmcnt(0)')
        e.label('Lffn_noprof')
    e.i('s_endpgm')
```

```python
from common import *
from fin import *

WREG = 12928
OFF_O = 4160
OFF_X = 8320
R8 = 8*WREG
FB = 9*WREG

def gen_ssm(e, cfg):
    sQ = 8; sK = 12; sV = 16; sWS = 20; sSK = 24; sH = 40; sGW = 44; sDB = 48; sSD = 52; sB2 = 56; sOUT = 60
    sWV = 28; sJ = 29; sTILE = 30; sCH = 31; sBASE = 32
    sNONCE = 64; sN = 65; sPF = 4
    sPROF = 66
    nprof = [0]
    def stamp(name):
        if cfg.prof and nprof[0] < 16:
            k = nprof[0]; nprof[0] += 1
            e.i(f's_memtime s[{sPROF+2*k}:{sPROF+2*k+1}]')
    def lanes_lt(n, body):
        e.i(f'v_cmp_gt_u32 vcc, {n}, v1')
        e.i('s_and_saveexec_b64 s[38:39], vcc')
        body()
        e.i('s_mov_b64 exec, s[38:39]')
    def signal(off, lbl):
        e.i(f's_cmp_eq_u32 s{sWV}, 0')
        e.i(f's_cbranch_scc0 {lbl}')
        e.i('v_mov_b32 v2, 0')
        e.i('v_mov_b32 v3, 1')
        lanes_lt(1, lambda: e.i(f'buffer_atomic_add v3, v2, s[{sDB}:{sDB+3}], 0 offen offset:{off} sc1'))
        e.label(lbl)
    def wait_count(off, lbl):
        e.i(f's_cmp_eq_u32 s{sWV}, 0')
        e.i(f's_cbranch_scc0 {lbl}_bar')
        e.i('v_mov_b32 v12, 0')
        e.label(f'{lbl}_poll')
        e.i(f'buffer_load_dword v14, v12, s[{sDB}:{sDB+3}], 0 offen offset:{off} sc1')
        e.i('s_waitcnt vmcnt(0)')
        e.i('v_readfirstlane_b32 s37, v14')
        e.i('s_cmp_ge_u32 s37, 64')
        e.i(f's_cbranch_scc1 {lbl}_bar')
        e.i(f's_sleep {cfg.csleep}')
        e.i('s_add_u32 s7, s7, 1'); e.i('s_cmp_lt_u32 s7, 0x40000'); e.i(f's_cbranch_scc1 {lbl}_poll')
        e.label(f'{lbl}_bar')
        e.i('s_barrier')
    if cfg.nossm: e.i('s_endpgm')
    if cfg.prof: e.i('s_memrealtime s[98:99]')
    stamp('start')
    e.i(f's_sub_u32 s{sJ}, s2, 192')
    e.i('s_mov_b32 s7, 0')
    srds = ((sH, 'ssm_k', D*S*2), (sK, 'k', S*D*2), (sV, 'v', S*D*2), (sSK, 'shift_k', D*8), (sQ, 'q', S*D*2), (sWS, 'ws', WS_TOTAL),
            (sGW, 'gate_w', D*2), (sDB, 'dbg', 256), (sSD, 'ssm_D', D*2), (sB2, 'b2', D*2), (sOUT, 'out', S*D*2))
    for s_, nm, nb in srds:
        e.i(f's_load_dwordx2 s[{s_}:{s_+1}], s[0:1], {KA[nm]}')
    e.i(f's_memrealtime s[34:35]')
    e.i(f'v_and_b32 v1, 63, v0')
    e.i('v_lshrrev_b32 v2, 6, v0')
    e.i('s_nop 0')
    e.i(f'v_readfirstlane_b32 s{sWV}, v2')
    for s_, nm, nb in srds:
        e.i(f's_mov_b32 s{s_+2}, {nb}')
        e.i(f's_mov_b32 s{s_+3}, 0x00020000')
    e.i(f's_mul_i32 s{sCH}, s{sJ}, 9')
    e.i(f's_add_u32 s33, s{sCH}, 8')
    e.i(f's_add_u32 s{sCH}, s{sCH}, s{sWV}')
    e.i('s_waitcnt lgkmcnt(0)')
    for s_, nm, nb in srds:
        e.i(f's_and_b32 s{s_+1}, s{s_+1}, 0xffff')
    e.i(f's_or_b32 s34, s34, 1')
    e.i(f's_add_u32 s36, s{sJ}, s{sWV}')
    e.i(f's_cmp_eq_u32 s36, 0')
    e.i('s_cbranch_scc0 Lssm_nononce')
    e.i('v_mov_b32 v2, s34')
    e.i('v_mov_b32 v3, 0')
    e.i(f'buffer_store_dword v2, v3, s[{sDB}:{sDB+3}], 0 offen offset:{DBG_NONCE} sc1')
    e.label('Lssm_nononce')
    HR = 184; H9 = 220; vD = 216; vD9 = 217
    def hloads():
        e.i(f's_mul_i32 s33, s{sJ}, 9')
        e.i(f's_add_u32 s33, s33, 8')
        e.i(f's_lshl_b32 s35, s{sCH}, 12')
        e.i(f'v_lshlrev_b32 v12, 4, v1')
        for i in range(4):
            e.i(f'buffer_load_dwordx4 v[{HR+8*i}:{HR+8*i+3}], v12, s[{sH}:{sH+3}], s35 offen offset:{1024*i}')
            e.i(f'buffer_load_dword v{HR+8*i+4}, v12, s[{sH}:{sH+3}], s35 offen offset:{1024*i+16}')
        e.i(f's_lshl_b32 s35, s33, 12')
        e.i(f's_lshl_b32 s36, s{sWV}, 9')
        e.i(f's_add_u32 s35, s35, s36')
        e.i(f'buffer_load_dwordx4 v[{H9}:{H9+3}], v12, s[{sH}:{sH+3}], s35 offen')
        e.i(f'buffer_load_dword v{H9+4}, v12, s[{sH}:{sH+3}], s35 offen offset:16')
        e.i(f'v_mov_b32 v13, 0')
        e.i(f's_lshl_b32 s37, s{sCH}, 1')
        e.i(f's_and_b32 s37, s37, 0xfffffffc')
        e.i(f'buffer_load_dword v{vD}, v13, s[{sSD}:{sSD+3}], s37 offen')
        e.i(f's_lshl_b32 s37, s33, 1')
        e.i(f's_and_b32 s37, s37, 0xfffffffc')
        e.i(f'buffer_load_dword v{vD9}, v13, s[{sSD}:{sSD+3}], s37 offen')
    if not cfg.hlast: hloads()
    def hbuild():
        e.i(f's_mul_i32 s{sBASE}, s{sWV}, {WREG}')
        e.i(f'v_mov_b32 v52, 0'); e.i('v_mov_b32 v53, 0'); e.i('v_mov_b32 v54, 0'); e.i('v_mov_b32 v55, 0')
        e.i(f'v_lshl_add_u32 v13, v1, 4, s{sBASE}')
        e.i(f'v_lshlrev_b32 v15, 4, v1')
        lanes_lt(32, lambda: e.i(f'ds_write_b128 v13, v[52:55] offset:{OFF_X + 4096}'))
        def pads():
            e.i(f'ds_write_b128 v13, v[52:55]')
            e.i(f'ds_write_b128 v13, v[52:55] offset:{OFF_O}')
        lanes_lt(2, pads)
        e.i(f's_cmp_eq_u32 s{sWV}, 0')
        e.i('s_cbranch_scc0 Lssm_nopad9')
        e.i(f'v_add_u32 v14, {R8}, v15')
        lanes_lt(32, lambda: e.i(f'ds_write_b128 v14, v[52:55] offset:{OFF_X + 4096}'))
        def pads9():
            e.i(f'ds_write_b128 v14, v[52:55]')
            e.i(f'ds_write_b128 v14, v[52:55] offset:{OFF_O}')
        lanes_lt(2, pads9)
        e.label('Lssm_nopad9')
        e.i('s_waitcnt lgkmcnt(0)')
        for i in range(4):
            h = HR + 8*i
            e.i(f'ds_write_b128 v13, v[{h}:{h+3}] offset:{32 + 1024*i}')
            for k in range(4):
                e.i(f'v_alignbit_b32 v{56+k}, v{h+k+1}, v{h+k}, 16')
            e.i(f'ds_write_b128 v13, v[56:59] offset:{OFF_O + 32 + 1024*i}')
            e.i('s_nop 0')
        e.i(f'v_lshlrev_b32 v56, 16, v{HR}')
        lanes_lt(1, lambda: e.i(f'ds_write_b32 v13, v56 offset:{OFF_O + 28}'))
        e.i(f's_lshl_b32 s36, s{sWV}, 9')
        e.i(f's_add_u32 s36, s36, {R8}')
        e.i(f'v_add_u32 v14, s36, v15')
        for k in range(4):
            e.i(f'v_alignbit_b32 v{56+k}, v{H9+k+1}, v{H9+k}, 16')
        def w9():
            e.i(f'ds_write_b128 v14, v[{H9}:{H9+3}] offset:32')
            e.i(f'ds_write_b128 v14, v[56:59] offset:{OFF_O + 32}')
        lanes_lt(32, w9)
        e.i(f's_cmp_eq_u32 s{sWV}, 0')
        e.i('s_cbranch_scc0 Lssm_nosp9')
        e.i(f'v_lshlrev_b32 v56, 16, v{H9}')
        lanes_lt(1, lambda: e.i(f'ds_write_b32 v14, v56 offset:{OFF_O + 28}'))
        e.label('Lssm_nosp9')
        sDV = 33; sDV9 = 34
        e.i(f'v_readfirstlane_b32 s{sDV}, v{vD}')
        e.i(f'v_readfirstlane_b32 s{sDV9}, v{vD9}')
        e.i(f's_bitcmp1_b32 s{sCH}, 0')
        e.i(f's_cselect_b32 s37, 0, 16')
        e.i(f's_lshl_b32 s{sDV}, s{sDV}, s37')
        e.i(f's_and_b32 s{sDV}, s{sDV}, 0xffff0000')
        e.i(f's_bitcmp1_b32 s{sJ}, 0')
        e.i(f's_cselect_b32 s37, 0, 16')
        e.i(f's_lshl_b32 s{sDV9}, s{sDV9}, s37')
        e.i(f's_and_b32 s{sDV9}, s{sDV9}, 0xffff0000')
    sDV = 33; sDV9 = 34
    if cfg.hfirst:
        e.i('s_waitcnt vmcnt(0)')
        hbuild()
    e.i(f's_lshl_b32 s{sTILE}, s{sJ}, 2')
    e.i(f's_add_u32 s{sTILE}, s{sTILE}, s{sWV}')
    e.i(f's_cmp_lt_u32 s{sWV}, 4')
    e.i('s_cbranch_scc1 Lssm_prep')
    e.i(f's_add_u32 s{sTILE}, s{sJ}, 256')
    e.i(f's_cmp_eq_u32 s{sWV}, 4')
    e.i('s_cbranch_scc0 Lssm_noprep')
    e.i(f's_cmp_lt_u32 s{sJ}, 32')
    e.i('s_cbranch_scc1 Lssm_prep')
    e.label('Lssm_noprep')
    e.i(f's_mov_b32 s{sPF}, -1')
    e.i('s_waitcnt vmcnt(0)')
    e.i('s_branch Lssm_hb')
    e.label('Lssm_prep')
    e.i(f's_mul_hi_u32 s36, s{sTILE}, {(1 << 32)//9 + 1}')
    e.i(f's_mul_i32 s37, s36, 9')
    e.i(f's_sub_u32 s37, s{sTILE}, s37')
    e.i(f's_lshl_b32 s{sPF}, s37, 5')
    e.i(f's_add_u32 s{sPF}, s{sPF}, s36')
    e.i(f's_lshl_b32 s{sPF}, s{sPF}, 8')
    e.i(f's_add_u32 s{sPF}, s{sPF}, {WS_FLAG2}')
    e.i(f's_lshl_b32 s36, s36, 6')
    e.i(f's_lshl_b32 s37, s37, 6')
    e.i(f'v_and_b32 v2, 7, v1')
    e.i(f'v_lshrrev_b32 v3, 3, v1')
    e.i(f'v_lshl_add_u32 v4, v3, 3, s36')
    e.i(f'v_lshl_add_u32 v5, v2, 3, s37')
    e.i(f'v_mul_u32_u24 v6, 1152, v4')
    e.i(f'v_lshl_add_u32 v6, v5, 1, v6')
    e.i(f'v_subrev_u32 v7, 3456, v6')
    e.i(f'v_cmp_eq_u32 vcc, 0, v4')
    e.i(f'v_mov_b32 v8, 0x80000000')
    e.i('s_nop 0')
    e.i(f'v_cndmask_b32 v7, v7, v8, vcc')
    e.i(f'v_lshlrev_b32 v8, 3, v5')
    KR = 16; VR = 60; WR = 92
    e.i('s_mov_b32 s35, 4608')
    for i in range(3):
        e.i(f'buffer_load_dwordx4 v[{KR+4*i}:{KR+4*i+3}], v7, s[{sK}:{sK+3}], 0 offen offset:{1152*i}')
    for i in range(8):
        so = '0' if i < 4 else 's35'
        e.i(f'buffer_load_dwordx4 v[{KR+12+4*i}:{KR+12+4*i+3}], v6, s[{sK}:{sK+3}], {so} offen offset:{1152*(i%4)}')
    for i in range(4):
        e.i(f'buffer_load_dwordx4 v[{WR+4*i}:{WR+4*i+3}], v8, s[{sSK}:{sSK+3}], 0 offen offset:{16*i}')
    for i in range(8):
        so = '0' if i < 4 else 's35'
        e.i(f'buffer_load_dwordx4 v[{VR+4*i}:{VR+4*i+3}], v6, s[{sV}:{sV+3}], {so} offen offset:{1152*(i%4)}')
    e.i(f'v_lshlrev_b32 v9, 12, v5')
    e.i(f'v_lshlrev_b32 v10, 1, v4')
    e.i(f'v_sub_u32 v9, v9, v10')
    e.i(f'v_add_u32 v9, {4080}, v9')
    e.i(f's_mov_b32 s35, {WS_XR}')
    KU = 108; VU = 130; WU = 146; AC = 154; PKD = 170
    e.i('s_waitcnt vmcnt(0)')
    for q in range(4):
        for r in range(11):
            e.i(f'v_lshlrev_b32 v{KU+2*r}, 16, v{KR+4*r+q}')
            e.i(f'v_and_b32 v{KU+2*r+1}, 0xffff0000, v{KR+4*r+q}')
        for c in range(2):
            w = WR + 2*(2*q + c)
            e.i(f'v_lshlrev_b32 v{WU+4*c}, 16, v{w}')
            e.i(f'v_and_b32 v{WU+4*c+1}, 0xffff0000, v{w}')
            e.i(f'v_lshlrev_b32 v{WU+4*c+2}, 16, v{w+1}')
            e.i(f'v_and_b32 v{WU+4*c+3}, 0xffff0000, v{w+1}')
        for r in range(8):
            e.i(f'v_lshlrev_b32 v{VU+2*r}, 16, v{VR+4*r+q}')
            e.i(f'v_and_b32 v{VU+2*r+1}, 0xffff0000, v{VR+4*r+q}')
        for r in range(8):
            for c in range(2):
                e.i(f'v_mul_f32 v{AC+2*r+c}, v{KU+2*(r+0)+c}, v{WU+4*c+3}')
        for j in (2, 1, 0):
            for r in range(8):
                for c in range(2):
                    e.i(f'v_fmac_f32 v{AC+2*r+c}, v{KU+2*(r+3-j)+c}, v{WU+4*c+j}')
        for r in range(8):
            for c in range(2):
                e.i(f'v_mul_f32 v{AC+2*r+c}, v{AC+2*r+c}, v{VU+2*r+c}')
        for c in range(2):
            for k in range(4):
                e.i(f'v_cvt_pk_bf16_f32 v{PKD+4*c+k}, v{AC+2*(7-2*k)+c}, v{AC+2*(6-2*k)+c}')
        for c in range(2):
            e.i(f'buffer_store_dwordx4 v[{PKD+4*c}:{PKD+4*c+3}], v9, s[{sWS}:{sWS+3}], s35 offen sc1')
            e.i(f'v_add_u32 v9, 4096, v9')
        e.i('s_nop 1')
    e.label('Lssm_hb')
    stamp('prep issued')
    if not cfg.hfirst and not cfg.hlast: hbuild()
    stamp('h built')
    e.i('v_mov_b32 v12, 0')
    e.label('Lssm_npoll')
    e.i(f'buffer_load_dword v14, v12, s[{sDB}:{sDB+3}], 0 offen offset:{DBG_NONCE} sc1')
    e.i('s_waitcnt vmcnt(0) lgkmcnt(0)')
    e.i(f'v_readfirstlane_b32 s{sNONCE}, v14')
    e.i(f's_cmp_lg_u32 s{sNONCE}, 0')
    e.i('s_cbranch_scc1 Lssm_nok')
    e.i('s_add_u32 s7, s7, 1'); e.i('s_cmp_lt_u32 s7, 0x40000'); e.i('s_cbranch_scc1 Lssm_npoll')
    e.label('Lssm_nok')
    e.i(f'v_mov_b32 v232, s{sNONCE}')
    e.i(f's_cmp_lt_u32 s{sPF}, 0x7fffffff')
    e.i('s_cbranch_scc0 Lssm_notileflag')
    e.i('v_lshlrev_b32 v12, 2, v1')
    e.i(f'buffer_store_dword v232, v12, s[{sWS}:{sWS+3}], s{sPF} offen sc1')
    e.label('Lssm_notileflag')
    stamp('prep done')
    if cfg.hlast:
        hloads()
        e.i('s_waitcnt vmcnt(0)')
        hbuild()
        e.i('s_waitcnt lgkmcnt(0)')
    e.i(f's_cmp_lt_u32 s{sWV}, 4')
    e.i('s_cbranch_scc1 Lssm_gate_done')
    e.i(f's_lshl_b32 s36, s{sJ}, 5')
    e.i(f's_sub_u32 s37, s{sWV}, 4')
    e.i(f's_lshl_b32 s37, s37, 3')
    e.i(f's_add_u32 s36, s36, s37')
    e.i(f'v_and_b32 v2, 7, v1')
    e.i(f'v_lshrrev_b32 v3, 3, v1')
    e.i(f'v_add_u32 v4, s36, v3')
    e.i(f'v_mul_u32_u24 v6, 1152, v4')
    e.i(f'v_lshl_add_u32 v6, v2, 4, v6')
    e.i(f'v_lshlrev_b32 v7, 4, v2')
    QR = 16; GR = 60
    for i in range(9):
        e.i(f'buffer_load_dwordx4 v[{QR+4*i}:{QR+4*i+3}], v6, s[{sQ}:{sQ+3}], 0 offen offset:{128*i}')
    for i in range(9):
        e.i(f'buffer_load_dwordx4 v[{GR+4*i}:{GR+4*i+3}], v7, s[{sGW}:{sGW+3}], 0 offen offset:{128*i}')
    e.i('v_mov_b32 v8, 0')
    e.i('v_mov_b32 v9, 0')
    e.i('s_waitcnt vmcnt(0)')
    for i in range(36):
        e.i(f'v_lshlrev_b32 v10, 16, v{QR+i}')
        e.i(f'v_lshlrev_b32 v11, 16, v{GR+i}')
        e.i(f'v_and_b32 v12, 0xffff0000, v{QR+i}')
        e.i(f'v_and_b32 v14, 0xffff0000, v{GR+i}')
        e.i(f'v_fmac_f32 v8, v10, v11')
        e.i(f'v_fmac_f32 v9, v12, v14')
    e.i('v_add_f32 v8, v8, v9')
    for off in (0x041F, 0x081F, 0x101F):
        e.i(f'ds_swizzle_b32 v9, v8 offset:{hex(off)}')
        e.i('s_waitcnt lgkmcnt(0)')
        e.i('v_add_f32 v8, v8, v9')
    e.i(f'v_mul_f32 v8, {hex(f2u(-1.4426950408889634))}, v8')
    e.i('v_exp_f32 v8, v8')
    e.i('s_nop 0')
    e.i('v_add_f32 v8, 1.0, v8')
    e.i('v_rcp_f32 v8, v8')
    e.i('v_lshlrev_b32 v10, 2, v4')
    e.i(f's_mov_b32 s35, {WS_G}')
    e.i('v_cmp_eq_u32 vcc, 0, v2')
    e.i('s_and_saveexec_b64 s[38:39], vcc')
    e.i(f'buffer_store_dword v8, v10, s[{sWS}:{sWS+3}], s35 offen sc1')
    e.i('s_mov_b64 exec, s[38:39]')
    e.label('Lssm_gate_done')
    e.i(f's_cmp_eq_u32 s{sWV}, 0')
    e.i('s_cbranch_scc0 Lssm_w1_bar')
    e.i(f's_mul_i32 s36, s{sJ}, 9')
    e.i(f's_lshr_b32 s37, s36, 6')
    e.i(f's_add_u32 s36, s36, 8')
    e.i(f's_lshr_b32 s36, s36, 6')
    e.i('v_and_b32 v12, 31, v1')
    e.i('v_lshlrev_b32 v12, 8, v12')
    e.i(f's_lshl_b32 s37, s37, 13')
    e.i(f's_lshl_b32 s36, s36, 13')
    e.i('v_mov_b32 v14, s37')
    e.i('v_mov_b32 v16, s36')
    e.i('v_cmp_gt_u32 vcc, 32, v1')
    e.i('s_nop 1')
    e.i('v_cndmask_b32 v14, v16, v14, vcc')
    e.i('v_add_u32 v12, v12, v14')
    e.i(f's_mov_b32 s36, {WS_FLAG2}')
    e.label('Lssm_w1_poll')
    e.i(f'buffer_load_dword v14, v12, s[{sWS}:{sWS+3}], s36 offen sc1')
    e.i('s_waitcnt vmcnt(0)')
    e.i(f'v_cmp_eq_u32 vcc, s{sNONCE}, v14')
    e.i('s_nop 1')
    e.i('s_cmp_eq_u64 vcc, -1')
    e.i('s_cbranch_scc1 Lssm_w1_bar')
    e.i(f's_sleep {cfg.csleep}')
    e.i('s_add_u32 s7, s7, 1'); e.i('s_cmp_lt_u32 s7, 0x40000'); e.i(f's_cbranch_scc1 Lssm_w1_poll')
    e.label('Lssm_w1_bar')
    e.i('s_barrier')
    stamp('sync done')
    XL = 16
    e.i(f's_lshl_b32 s35, s{sCH}, 12')
    e.i(f's_add_u32 s35, s35, {WS_XR}')
    e.i(f'v_lshlrev_b32 v12, 4, v1')
    for i in range(4):
        e.i(f'buffer_load_dwordx4 v[{XL+4*i}:{XL+4*i+3}], v12, s[{sWS}:{sWS+3}], s35 offen offset:{1024*i} sc1')
    e.i(f's_mul_i32 s36, s{sJ}, 9')
    e.i(f's_add_u32 s36, s36, 8')
    e.i(f's_lshl_b32 s36, s36, 12')
    e.i(f's_lshl_b32 s37, s{sWV}, 9')
    e.i(f's_add_u32 s36, s36, s37')
    e.i(f's_add_u32 s36, s36, {WS_XR}')
    e.i(f'buffer_load_dwordx4 v[{XL+16}:{XL+19}], v12, s[{sWS}:{sWS+3}], s36 offen sc1')
    vN = 2; vG = 3; vAa = [4, 5, 6, 7]; vBa = 8; vXa = 9; vYo = 10
    e.i(f'v_and_b32 v{vN}, 15, v1')
    e.i(f'v_lshrrev_b32 v{vG}, 4, v1')
    e.i(f'v_add_u32 v12, 1, v{vN}')
    e.i(f'v_lshrrev_b32 v12, 1, v12')
    e.i(f'v_lshlrev_b32 v12, 2, v12')
    e.i(f'v_lshl_add_u32 v12, v{vG}, 4, v12')
    e.i(f'v_and_b32 v14, 1, v{vN}')
    e.i(f'v_xor_b32 v14, 1, v14')
    e.i(f'v_mul_u32_u24 v14, {OFF_O}, v14')
    e.i(f'v_add_u32 v11, v12, v14')
    for k in range(4):
        e.i(f'v_add_u32 v{vAa[k]}, {1024*k}, v11')
        e.i(f'v_add_u32 v{vAa[k]}, s{sBASE}, v{vAa[k]}')
    e.i(f'v_lshlrev_b32 v12, 5, v{vN}')
    e.i(f'v_lshlrev_b32 v14, 4, v{vG}')
    e.i(f'v_sub_u32 v60, v14, v12')
    e.i(f's_add_u32 s37, s{sBASE}, {OFF_X + 480}')
    e.i(f'v_add_u32 v{vBa}, s37, v60')
    e.i(f'v_lshlrev_b32 v14, 3, v{vG}')
    e.i(f'v_add_u32 v{vYo}, v14, v12')
    e.i(f's_add_u32 s37, s{sBASE}, {OFF_X + 504}')
    e.i(f'v_sub_u32 v{vXa}, s37, v{vYo}')
    e.i('s_waitcnt vmcnt(0)')
    for i in range(4):
        e.i(f'ds_write_b128 v13, v[{XL+4*i}:{XL+4*i+3}] offset:{OFF_X + 1024*i}')
    e.i(f's_lshl_b32 s36, s{sWV}, 9')
    e.i(f's_add_u32 s36, s36, {R8 + OFF_X}')
    e.i(f'v_add_u32 v14, s36, v15')
    lanes_lt(32, lambda: e.i(f'ds_write_b128 v14, v[{XL+16}:{XL+19}]'))
    e.i('s_waitcnt lgkmcnt(0)')
    e.i('s_barrier')
    stamp('x loaded')
    ACC = 16; AB = [48+16, 96]; BB = [128, 160]
    AB = [64, 96]
    def read_list(rho, st, aregs, breg):
        out = []
        for k in range(8):
            a = aregs[k >> 1]; o = 16*rho + 128*(k & 1)
            r = AB[st] + 4*k; rb = BB[st] + 4*k
            kap = 8*k - rho
            out.append((f'ds_read_b128 v[{rb}:{rb+3}], v{breg} offset:{3584 - 64*kap}', ('b', rho, st, k)))
            out.append((f'ds_read2_b32 v[{r}:{r+1}], v{a} offset0:{o} offset1:{o+1}', ('a', rho, st, k, 0)))
            out.append((f'ds_read2_b32 v[{r+2}:{r+3}], v{a} offset0:{o+2} offset1:{o+3}', ('a', rho, st, k, 1)))
        return out
    def mfmas(rho, st, nxt, first, ACC=16):
        cnt = 0
        for ee in range(8):
            for u in range(8 - ee):
                tau = ee + u
                e.wait_lds(('a', rho, st, ee, 1)); e.wait_lds(('b', rho, st, u))
                a = AB[st] + 4*ee; b = BB[st] + 4*u; acc = ACC + 4*tau
                c = '0' if (first and ee == 0) else f'v[{acc}:{acc+3}]'
                e.mfma(f'v_mfma_f32_16x16x32_bf16 v[{acc}:{acc+3}], v[{a}:{a+3}], v[{b}:{b+3}], {c}',
                       list(range(acc, acc+4)), [])
                cnt += 1
                if nxt and cnt >= 6:
                    t, tag = nxt.pop(0); e.lds(t, tag)
        assert not nxt
    a9 = [48, 49, 50, 51]; b9 = 52
    e.i(f's_lshl_b32 s36, s{sWV}, 6')
    e.i(f's_add_u32 s37, s36, {R8}')
    for k in range(4):
        e.i(f'v_add_u32 v{a9[k]}, {1024*k}, v11')
        e.i(f'v_add_u32 v{a9[k]}, s37, v{a9[k]}')
    e.i(f's_add_u32 s37, s37, {OFF_X + 480}')
    e.i(f'v_add_u32 v{b9}, s37, v60')
    e.lq = []
    for (t, tag) in read_list(0, 0, vAa, vBa): e.lds(t, tag)
    for rho in range(8):
        st = rho & 1
        if cfg.prio and rho % 2 == 0: e.i(f's_setprio {3 - rho // 2}')
        if rho < 7: nxt = read_list(rho + 1, st ^ 1, vAa, vBa)
        else: nxt = [(t, ('n',) + tag) for (t, tag) in read_list(0, 0, a9, b9)]
        mfmas(rho, st, nxt, rho == 0)
    ACC9 = 196
    for ee in range(8):
        for u in range(8 - ee):
            tau = ee + u
            e.wait_lds(('n', 'a', 0, 0, ee, 1)); e.wait_lds(('n', 'b', 0, 0, u))
            a = AB[0] + 4*ee; b = BB[0] + 4*u; acc = ACC9 + 4*tau
            c = '0' if ee == 0 else f'v[{acc}:{acc+3}]'
            e.mfma(f'v_mfma_f32_16x16x32_bf16 v[{acc}:{acc+3}], v[{a}:{a+3}], v[{b}:{b+3}], {c}', list(range(acc, acc+4)), [])
    for tau in range(8):
        e.lds(f'ds_read_b64 v[{96+2*tau}:{97+2*tau}], v{vXa} offset:{3584 - 512*tau}', ('xv', tau))
    e.i(f's_lshl_b32 s35, s{sCH}, 12')
    e.i(f's_add_u32 s35, s35, {WS_Y2}')
    def yout(x0, accs, sD, pk):
        e.valu(f'v_and_b32 v120, 0xffff0000, v{x0+1}', dst=[120])
        e.valu(f'v_lshlrev_b32 v121, 16, v{x0+1}', dst=[121])
        e.valu(f'v_and_b32 v122, 0xffff0000, v{x0}', dst=[122])
        e.valu(f'v_lshlrev_b32 v123, 16, v{x0}', dst=[123])
        for r in range(4):
            e.valu(f'v_fma_f32 v{120+r}, v{120+r}, s{sD}, v{accs[r]}', dst=[120+r], src=[accs[r]])
        e.valu(f'v_cvt_pk_bf16_f32 v{pk}, v120, v121', dst=[pk])
        e.valu(f'v_cvt_pk_bf16_f32 v{pk+1}, v122, v123', dst=[pk+1])
    for tau in range(8):
        e.wait_lds(('xv', tau))
        pk = 124 + 2*(tau & 1)
        yout(96 + 2*tau, [ACC+4*tau+r for r in range(4)], sDV, pk)
        e.i(f'buffer_store_dwordx2 v[{pk}:{pk+1}], v{vYo}, s[{sWS}:{sWS+3}], s35 offen offset:{512*tau} sc1')
    e.wait_lds_all()
    e.nop(8)
    for tau in range(8):
        e.lds(f'ds_write_b128 v13, v[{ACC9+4*tau}:{ACC9+4*tau+3}] offset:{1024*tau}', ('p9', tau))
    stamp('chan done')
    e.wait_lds_all()
    e.i('s_barrier')
    e.i(f's_lshl_b32 s36, s{sWV}, 10')
    e.i(f'v_add_u32 v54, s36, v15')
    e.i(f'v_add_u32 v55, {4*WREG}, v54')
    for k in range(8):
        a = 54 if k < 4 else 55
        e.lds(f'ds_read_b128 v[{64+4*k}:{67+4*k}], v{a} offset:{(k%4)*WREG}', ('f9', k))
    e.i(f's_lshl_b32 s36, s{sWV}, 9')
    e.i(f's_sub_u32 s36, {R8 + OFF_X + 4088}, s36')
    e.i(f'v_sub_u32 v54, s36, v{vYo}')
    e.lds(f'ds_read_b64 v[20:21], v54', ('x9',))
    e.i(f's_mul_i32 s35, s{sJ}, 9')
    e.i(f's_add_u32 s35, s35, 8')
    e.i(f's_lshl_b32 s35, s35, 12')
    e.i(f's_lshl_b32 s36, s{sWV}, 9')
    e.i(f's_add_u32 s35, s35, s36')
    e.i(f's_add_u32 s35, s35, {WS_Y2}')
    e.wait_lds_all()
    for k in range(1, 8):
        for r in range(4):
            e.i(f'v_add_f32 v{64+r}, v{64+r}, v{64+4*k+r}')
    yout(20, [64, 65, 66, 67], sDV9, 124)
    e.i(f'buffer_store_dwordx2 v[124:125], v{vYo}, s[{sWS}:{sWS+3}], s35 offen sc1')
    e.i('s_waitcnt vmcnt(0)')
    e.i('s_barrier')
    e.i(f's_cmp_eq_u32 s{sWV}, 0')
    e.i('s_cbranch_scc0 Lssm_nocf')
    e.i('v_lshlrev_b32 v12, 2, v1')
    e.i(f's_lshl_b32 s36, s{sJ}, 8')
    e.i(f's_add_u32 s36, s36, {WS_FLAG3}')
    e.i(f'buffer_store_dword v232, v12, s[{sWS}:{sWS+3}], s36 offen sc1')
    e.label('Lssm_nocf')
    stamp('conv done')
    if cfg.nored: e.i('s_branch Lssm_fin')
    gen_final_consts(e, 240)
    sT = 30; sMI = 31
    sDTk = [12, 13, 14]; sPBk = [16, 17, 18]; sOBk = [24, 25, 26]
    e.i(f's_lshr_b32 s{sT}, s{sJ}, 2')
    e.i(f's_and_b32 s{sMI}, s{sJ}, 3')
    def unitR(k):
        return dict(sWS=sWS, sQ=sQ, sB2=sB2, sOUT=sOUT, sT=sT, sMI=sMI, sDT=sDTk[k], sLDS=sBASE, tmp=(34, 35, 36, 37), ldflag='sc1', vA=240,
                    BR=128 + 8*k, QG=184 + 16*k, sPB=sPBk[k], sOB=sOBk[k], QR=96 + 8*k, YS=32 + 8*k, k=k, outflag=cfg.outflag)
    NU = 2*(9 - cfg.kffn)
    KMAX = -(-NU // 8)
    def for_units(fn, lbl):
        for k in range(KMAX):
            if NU - 8*k < 8:
                e.i(f's_cmp_lt_u32 s{sWV}, {NU - 8*k}')
                e.i(f's_cbranch_scc0 {lbl}')
            fn(k)
        e.label(lbl)
    def f_issue(k):
        e.i(f's_add_u32 s34, s{sWV}, {8*k}')
        e.i(f's_and_b32 s5, s34, 1')
        e.i(f's_lshr_b32 s34, s34, 1')
        e.i(f's_and_b32 s35, s{sT}, 7')
        e.i(f's_add_u32 s34, s34, s35')
        e.i(f's_sub_u32 s35, s34, 9')
        e.i(f's_min_u32 s34, s34, s35')
        e.i(f's_lshl_b32 s34, s34, 1')
        e.i(f's_add_u32 s{sDTk[k]}, s34, s5')
        gen_pre_a_issue(e, unitR(k), k == 0)
    for_units(f_issue, 'Lpre_a1')
    e.i('s_waitcnt vmcnt(0)')
    for_units(lambda k: gen_pre_a_comp(e, unitR(k), k == 0), 'Lpre_a2')
    if cfg.nocpoll: e.i('s_branch Lssm_cready')
    e.i(f's_cmp_eq_u32 s{sWV}, 0')
    e.i('s_cbranch_scc0 Lssm_cready')
    e.i('v_lshlrev_b32 v12, 8, v1')
    e.i(f's_mov_b32 s36, {WS_FLAG3}')
    e.label('Lssm_cpoll')
    e.i(f'buffer_load_dword v14, v12, s[{sWS}:{sWS+3}], s36 offen sc1')
    e.i('s_waitcnt vmcnt(0)')
    e.i(f'v_cmp_eq_u32 vcc, s{sNONCE}, v14')
    e.i('s_nop 1')
    e.i('s_cmp_eq_u64 vcc, -1')
    e.i('s_cbranch_scc1 Lssm_cready')
    e.i(f's_sleep {cfg.c2sleep}')
    e.i('s_add_u32 s7, s7, 1'); e.i('s_cmp_lt_u32 s7, 0x40000'); e.i(f's_cbranch_scc1 Lssm_cpoll')
    e.label('Lssm_cready')
    e.i('s_barrier')
    stamp('conv flags')
    if cfg.nounits: e.i('s_branch Lssm_fin')
    for_units(lambda k: gen_pre_c_issue(e, unitR(k), k == 0), 'Lpre_c1')
    e.i('s_waitcnt vmcnt(0)')
    for_units(lambda k: gen_pre_c_lds(e, unitR(k), k == 0), 'Lpre_c2')
    e.i('s_waitcnt lgkmcnt(0)')
    for_units(lambda k: gen_pre_c_comp(e, unitR(k)), 'Lpre_c3')
    stamp('pre done')
    for k in range(KMAX):
        if NU - 8*k < 8:
            e.i(f's_cmp_lt_u32 s{sWV}, {NU - 8*k}')
            e.i('s_cbranch_scc0 Lssm_fin')
        e.i(f's_mul_i32 s6, s{sT}, 9')
        e.i(f's_lshr_b32 s5, s{sDTk[k]}, 1')
        e.i(f's_add_u32 s6, s6, s5')
        e.i(f's_mul_i32 s6, s6, {12*256}')
        e.i(f's_add_u32 s6, s6, {WS_FLAG}')
        e.i(f'v_min_u32 v12, {NCH-1}, v1')
        e.i(f'v_lshlrev_b32 v12, 8, v12')
        e.label(f'Lssm_fpoll{k}')
        e.i(f'buffer_load_dword v14, v12, s[{sWS}:{sWS+3}], s6 offen sc1')
        e.i('s_waitcnt vmcnt(0)')
        e.i(f'v_cmp_eq_u32 vcc, s{sNONCE}, v14')
        e.i('s_nop 1')
        e.i('s_cmp_eq_u64 vcc, -1')
        e.i(f's_cbranch_scc1 Lssm_fready{k}')
        e.i(f's_sleep {cfg.fsleep}')
        e.i('s_add_u32 s7, s7, 1'); e.i('s_cmp_lt_u32 s7, 0x40000'); e.i(f's_cbranch_scc1 Lssm_fpoll{k}')
        e.label(f'Lssm_fready{k}')
        if cfg.prof: e.i(f's_memtime s[{sPROF+2*(10+2*k)}:{sPROF+2*(10+2*k)+1}]')
        gen_final_post(e, unitR(k))
        if cfg.prof:
            e.i('s_waitcnt vmcnt(0)')
            e.i(f's_memtime s[{sPROF+2*(11+2*k)}:{sPROF+2*(11+2*k)+1}]')
    e.label('Lssm_fin')
    e.i('s_waitcnt vmcnt(0)')
    nprof[0] = 16
    if cfg.prof:
        e.i('s_memrealtime s[100:101]')
        e.i('s_waitcnt lgkmcnt(0)')
        e.i(f's_cmp_eq_u32 s{sWV}, 1')
        e.i('s_cbranch_scc0 Lssm_noprof')
        e.i(f's_lshl_b32 s34, s2, 7')
        e.i(f's_add_u32 s34, s34, {WS_PROF}')
        e.i(f'v_mov_b32 v14, 0')
        for k in range(nprof[0]):
            e.i(f'v_mov_b32 v13, s{sPROF+2*k}')
            e.i(f'buffer_store_dword v13, v14, s[{sWS}:{sWS+3}], s34 offen offset:{4*k}')
        e.i(f'v_mov_b32 v13, s98')
        e.i(f'buffer_store_dword v13, v14, s[{sWS}:{sWS+3}], s34 offen offset:{4*30}')
        e.i(f'v_mov_b32 v13, s100')
        e.i(f'buffer_store_dword v13, v14, s[{sWS}:{sWS+3}], s34 offen offset:{4*31}')
        e.i('s_waitcnt vmcnt(0)')
        e.label('Lssm_noprof')
    e.i('s_endpgm')
```

```python
import sys, os
from emit import Emit
from common import *
from ffn import gen_ffn
from ssm import gen_ssm


class Cfg:
    prof = False
    stflag = 'sc1'
    nostore = False
    prio = False
    looptest = False
    prefetch = False
    w2pf = False
    outflag = ''
    stspread = False
    pd = 3
    nb = 4
    wmerge = False
    priomode = 4
    startbar = 0
    hlast = False
    touch = False
    earlyxc = False
    hfirst = False
    kffn = 0
    rot = 6
    startprio = False
    ffnfirst = False
    nocpoll = False
    nounits = False
    presleep = 0
    tlbwarm = 0
    c2sleep = 32
    unitprof = None
    csleep = 2
    nored = False
    nossm = False
    fsleep = 2
    fuse = True
    flaglag = 2
    prostamps = False
    nodma = False
    nogelu = False
    nobar = False
    dmaspread = False
    dmabeats = (1, 5, 9)
    stamps = (1, 2, 3, 6, 9, 12, 15, 18, 20, 22, 25, 28, 31)
    prestamps = ()

def kernel_header(e, name):
    e.raw('.p2align 8')
    e.raw(f'.globl {name}')
    e.raw(f'.type {name},@function')
    e.raw(f'{name}:')

def kernel_desc(name, vgpr=256, sgpr=102):
    return f'''.amdhsa_kernel {name}
  .amdhsa_next_free_vgpr {vgpr}
  .amdhsa_next_free_sgpr {sgpr}
  .amdhsa_accum_offset {((vgpr+3)//4)*4}
  .amdhsa_group_segment_fixed_size 0
  .amdhsa_kernarg_size 120
  .amdhsa_user_sgpr_count 2
  .amdhsa_user_sgpr_kernarg_segment_ptr 1
  .amdhsa_system_sgpr_workgroup_id_x 1
.end_amdhsa_kernel
'''

def main():
    cfg = Cfg()
    cfg.prof = '--prof' in sys.argv
    for a in sys.argv:
        if a.startswith('--st='): cfg.stflag = a[5:].replace('+', ' ')
    cfg.nostore = '--nostore' in sys.argv
    cfg.prio = '--prio' in sys.argv
    cfg.looptest = '--looptest' in sys.argv
    cfg.prefetch = '--prefetch' in sys.argv
    cfg.nored = '--nored' in sys.argv
    cfg.w2pf = '--w2pf' in sys.argv
    cfg.stspread = '--stspread' in sys.argv
    cfg.wmerge = '--wmerge' in sys.argv
    cfg.hlast = '--hlast' in sys.argv
    cfg.touch = '--touch' in sys.argv
    cfg.earlyxc = '--earlyxc' in sys.argv
    cfg.hfirst = '--hfirst' in sys.argv
    cfg.startprio = '--startprio' in sys.argv
    cfg.ffnfirst = '--ffnfirst' in sys.argv
    for a in sys.argv:
        if a.startswith('--rot='): cfg.rot = int(a[6:])
        if a.startswith('--outflag='): cfg.outflag = a[10:].replace('+', ' ')
        if a.startswith('--pd='): cfg.pd = int(a[5:])
        if a.startswith('--nb='): cfg.nb = int(a[5:])
        if a.startswith('--priomode='): cfg.priomode = int(a[11:])
        if a.startswith('--startbar='): cfg.startbar = int(a[11:])
        if a.startswith('--kffn='): cfg.kffn = int(a[7:])
    cfg.nocpoll = '--nocpoll' in sys.argv
    cfg.nounits = '--nounits' in sys.argv
    cfg.nossm = '--nossm' in sys.argv
    for a in sys.argv:
        if a.startswith('--flaglag='): cfg.flaglag = int(a[10:])
        if a.startswith('--fsleep='): cfg.fsleep = int(a[9:])
        if a.startswith('--tlbwarm='): cfg.tlbwarm = int(a[10:])
        if a.startswith('--c2sleep='): cfg.c2sleep = int(a[10:])
        if a.startswith('--unitprof='): cfg.unitprof = int(a[11:])
        if a.startswith('--csleep='): cfg.csleep = int(a[9:])
    cfg.prostamps = '--prostamps' in sys.argv
    cfg.nodma = '--nodma' in sys.argv
    cfg.nogelu = '--nogelu' in sys.argv
    cfg.nobar = '--nobar' in sys.argv
    cfg.dmaspread = '--dmaspread' in sys.argv
    for a in sys.argv:
        if a.startswith('--dmabeats='): cfg.dmabeats = tuple(int(x) for x in a[11:].split(','))
    for a in sys.argv:
        if a.startswith('--stamps='): cfg.stamps = tuple(int(x) for x in a[9:].split(',') if x)
        if a.startswith('--prestamps='): cfg.prestamps = tuple(int(x) for x in a[12:].split(',') if x)
    e = Emit()
    k1 = NAME + '_kernel'
    here = os.path.dirname(os.path.abspath(__file__))
    hdr = open(here + '/header.txt').read()
    out = [hdr.rstrip('\n')]
    out.append(f'; @launch grid=(256,1,1) block=(512,1,1) lds={LDS_BYTES}')
    out.append('.amdgcn_target "amdgcn-amd-amdhsa--gfx950"')
    out.append('.text')
    kernel_header(e, k1)
    if not cfg.ffnfirst:
        e.i('s_cmp_ge_u32 s2, 256') ; e.i('s_cbranch_scc1 Lk1_exit')
        e.i('s_cmp_ge_u32 s2, 192') ; e.i('s_cbranch_scc1 Lk1_ssm')
        e.i('s_branch Lk1_ffn')
        e.label('Lk1_exit')
        e.i('s_endpgm')
        e.label('Lk1_ssm')
        es = Emit(); gen_ssm(es, cfg); e.raw(es.text())
        e.label('Lk1_ffn')
        ef = Emit(); gen_ffn(ef, cfg); e.raw(ef.text())
    else:
        e.i('s_cmp_ge_u32 s2, 192') ; e.i('s_cbranch_scc0 Lk1_ffn')
        e.i('s_cmp_ge_u32 s2, 256') ; e.i('s_cbranch_scc1 Lk1_exit')
        e.i('s_branch Lk1_ssm')
        e.label('Lk1_exit')
        e.i('s_endpgm')
        e.label('Lk1_ffn')
        ef = Emit(); gen_ffn(ef, cfg); e.raw(ef.text())
        e.label('Lk1_ssm')
        es = Emit(); gen_ssm(es, cfg); e.raw(es.text())
    out.append(e.text())
    out.append('.section .rodata,"a"\n.p2align 6')
    out.append(kernel_desc(k1))

    print('\n'.join(out))

if __name__ == '__main__':
    main()
```

```python
from common import *
from fin import *

WREG = 12928
OFF_O = 4160
OFF_X = 8320
R8 = 8*WREG
FB = 9*WREG

def gen_ssm(e, cfg):
    sQ = 8; sK = 12; sV = 16; sWS = 20; sSK = 24; sH = 40; sGW = 44; sDB = 48; sSD = 52; sB2 = 56; sOUT = 60
    sWV = 28; sJ = 29; sTILE = 30; sCH = 31; sBASE = 32
    sNONCE = 64; sN = 65; sPF = 4
    sPROF = 66
    nprof = [0]
    def stamp(name):
        if cfg.prof and nprof[0] < 16:
            k = nprof[0]; nprof[0] += 1
            e.i(f's_memtime s[{sPROF+2*k}:{sPROF+2*k+1}]')
    def lanes_lt(n, body):
        e.i(f'v_cmp_gt_u32 vcc, {n}, v1')
        e.i('s_and_saveexec_b64 s[38:39], vcc')
        body()
        e.i('s_mov_b64 exec, s[38:39]')
    def signal(off, lbl):
        e.i(f's_cmp_eq_u32 s{sWV}, 0')
        e.i(f's_cbranch_scc0 {lbl}')
        e.i('v_mov_b32 v2, 0')
        e.i('v_mov_b32 v3, 1')
        lanes_lt(1, lambda: e.i(f'buffer_atomic_add v3, v2, s[{sDB}:{sDB+3}], 0 offen offset:{off} sc1'))
        e.label(lbl)
    def wait_count(off, lbl):
        e.i(f's_cmp_eq_u32 s{sWV}, 0')
        e.i(f's_cbranch_scc0 {lbl}_bar')
        e.i('v_mov_b32 v12, 0')
        e.label(f'{lbl}_poll')
        e.i(f'buffer_load_dword v14, v12, s[{sDB}:{sDB+3}], 0 offen offset:{off} sc1')
        e.i('s_waitcnt vmcnt(0)')
        e.i('v_readfirstlane_b32 s37, v14')
        e.i('s_cmp_ge_u32 s37, 64')
        e.i(f's_cbranch_scc1 {lbl}_bar')
        e.i(f's_sleep {cfg.csleep}')
        e.i('s_add_u32 s7, s7, 1'); e.i('s_cmp_lt_u32 s7, 0x40000'); e.i(f's_cbranch_scc1 {lbl}_poll')
        e.label(f'{lbl}_bar')
        e.i('s_barrier')
    if cfg.nossm: e.i('s_endpgm')
    if cfg.prof: e.i('s_memrealtime s[98:99]')
    stamp('start')
    e.i(f's_sub_u32 s{sJ}, s2, 192')
    e.i('s_mov_b32 s7, 0')
    srds = ((sH, 'ssm_k', D*S*2), (sK, 'k', S*D*2), (sV, 'v', S*D*2), (sSK, 'shift_k', D*8), (sQ, 'q', S*D*2), (sWS, 'ws', WS_TOTAL),
            (sGW, 'gate_w', D*2), (sDB, 'dbg', 256), (sSD, 'ssm_D', D*2), (sB2, 'b2', D*2), (sOUT, 'out', S*D*2))
    for s_, nm, nb in srds:
        e.i(f's_load_dwordx2 s[{s_}:{s_+1}], s[0:1], {KA[nm]}')
    e.i(f's_memrealtime s[34:35]')
    e.i(f'v_and_b32 v1, 63, v0')
    e.i('v_lshrrev_b32 v2, 6, v0')
    e.i('s_nop 0')
    e.i(f'v_readfirstlane_b32 s{sWV}, v2')
    for s_, nm, nb in srds:
        e.i(f's_mov_b32 s{s_+2}, {nb}')
        e.i(f's_mov_b32 s{s_+3}, 0x00020000')
    e.i(f's_mul_i32 s{sCH}, s{sJ}, 9')
    e.i(f's_add_u32 s33, s{sCH}, 8')
    e.i(f's_add_u32 s{sCH}, s{sCH}, s{sWV}')
    e.i('s_waitcnt lgkmcnt(0)')
    for s_, nm, nb in srds:
        e.i(f's_and_b32 s{s_+1}, s{s_+1}, 0xffff')
    e.i(f's_or_b32 s34, s34, 1')
    e.i(f's_add_u32 s36, s{sJ}, s{sWV}')
    e.i(f's_cmp_eq_u32 s36, 0')
    e.i('s_cbranch_scc0 Lssm_nononce')
    e.i('v_mov_b32 v2, s34')
    e.i('v_mov_b32 v3, 0')
    e.i(f'buffer_store_dword v2, v3, s[{sDB}:{sDB+3}], 0 offen offset:{DBG_NONCE} sc1')
    e.label('Lssm_nononce')
    HR = 184; H9 = 220; vD = 216; vD9 = 217
    def hloads():
        e.i(f's_mul_i32 s33, s{sJ}, 9')
        e.i(f's_add_u32 s33, s33, 8')
        e.i(f's_lshl_b32 s35, s{sCH}, 12')
        e.i(f'v_lshlrev_b32 v12, 4, v1')
        for i in range(4):
            e.i(f'buffer_load_dwordx4 v[{HR+8*i}:{HR+8*i+3}], v12, s[{sH}:{sH+3}], s35 offen offset:{1024*i}')
            e.i(f'buffer_load_dword v{HR+8*i+4}, v12, s[{sH}:{sH+3}], s35 offen offset:{1024*i+16}')
        e.i(f's_lshl_b32 s35, s33, 12')
        e.i(f's_lshl_b32 s36, s{sWV}, 9')
        e.i(f's_add_u32 s35, s35, s36')
        e.i(f'buffer_load_dwordx4 v[{H9}:{H9+3}], v12, s[{sH}:{sH+3}], s35 offen')
        e.i(f'buffer_load_dword v{H9+4}, v12, s[{sH}:{sH+3}], s35 offen offset:16')
        e.i(f'v_mov_b32 v13, 0')
        e.i(f's_lshl_b32 s37, s{sCH}, 1')
        e.i(f's_and_b32 s37, s37, 0xfffffffc')
        e.i(f'buffer_load_dword v{vD}, v13, s[{sSD}:{sSD+3}], s37 offen')
        e.i(f's_lshl_b32 s37, s33, 1')
        e.i(f's_and_b32 s37, s37, 0xfffffffc')
        e.i(f'buffer_load_dword v{vD9}, v13, s[{sSD}:{sSD+3}], s37 offen')
    if not cfg.hlast: hloads()
    def hbuild():
        e.i(f's_mul_i32 s{sBASE}, s{sWV}, {WREG}')
        e.i(f'v_mov_b32 v52, 0'); e.i('v_mov_b32 v53, 0'); e.i('v_mov_b32 v54, 0'); e.i('v_mov_b32 v55, 0')
        e.i(f'v_lshl_add_u32 v13, v1, 4, s{sBASE}')
        e.i(f'v_lshlrev_b32 v15, 4, v1')
        lanes_lt(32, lambda: e.i(f'ds_write_b128 v13, v[52:55] offset:{OFF_X + 4096}'))
        def pads():
            e.i(f'ds_write_b128 v13, v[52:55]')
            e.i(f'ds_write_b128 v13, v[52:55] offset:{OFF_O}')
        lanes_lt(2, pads)
        e.i(f's_cmp_eq_u32 s{sWV}, 0')
        e.i('s_cbranch_scc0 Lssm_nopad9')
        e.i(f'v_add_u32 v14, {R8}, v15')
        lanes_lt(32, lambda: e.i(f'ds_write_b128 v14, v[52:55] offset:{OFF_X + 4096}'))
        def pads9():
            e.i(f'ds_write_b128 v14, v[52:55]')
            e.i(f'ds_write_b128 v14, v[52:55] offset:{OFF_O}')
        lanes_lt(2, pads9)
        e.label('Lssm_nopad9')
        e.i('s_waitcnt lgkmcnt(0)')
        for i in range(4):
            h = HR + 8*i
            e.i(f'ds_write_b128 v13, v[{h}:{h+3}] offset:{32 + 1024*i}')
            for k in range(4):
                e.i(f'v_alignbit_b32 v{56+k}, v{h+k+1}, v{h+k}, 16')
            e.i(f'ds_write_b128 v13, v[56:59] offset:{OFF_O + 32 + 1024*i}')
            e.i('s_nop 0')
        e.i(f'v_lshlrev_b32 v56, 16, v{HR}')
        lanes_lt(1, lambda: e.i(f'ds_write_b32 v13, v56 offset:{OFF_O + 28}'))
        e.i(f's_lshl_b32 s36, s{sWV}, 9')
        e.i(f's_add_u32 s36, s36, {R8}')
        e.i(f'v_add_u32 v14, s36, v15')
        for k in range(4):
            e.i(f'v_alignbit_b32 v{56+k}, v{H9+k+1}, v{H9+k}, 16')
        def w9():
            e.i(f'ds_write_b128 v14, v[{H9}:{H9+3}] offset:32')
            e.i(f'ds_write_b128 v14, v[56:59] offset:{OFF_O + 32}')
        lanes_lt(32, w9)
        e.i(f's_cmp_eq_u32 s{sWV}, 0')
        e.i('s_cbranch_scc0 Lssm_nosp9')
        e.i(f'v_lshlrev_b32 v56, 16, v{H9}')
        lanes_lt(1, lambda: e.i(f'ds_write_b32 v14, v56 offset:{OFF_O + 28}'))
        e.label('Lssm_nosp9')
        sDV = 33; sDV9 = 34
        e.i(f'v_readfirstlane_b32 s{sDV}, v{vD}')
        e.i(f'v_readfirstlane_b32 s{sDV9}, v{vD9}')
        e.i(f's_bitcmp1_b32 s{sCH}, 0')
        e.i(f's_cselect_b32 s37, 0, 16')
        e.i(f's_lshl_b32 s{sDV}, s{sDV}, s37')
        e.i(f's_and_b32 s{sDV}, s{sDV}, 0xffff0000')
        e.i(f's_bitcmp1_b32 s{sJ}, 0')
        e.i(f's_cselect_b32 s37, 0, 16')
        e.i(f's_lshl_b32 s{sDV9}, s{sDV9}, s37')
        e.i(f's_and_b32 s{sDV9}, s{sDV9}, 0xffff0000')
    sDV = 33; sDV9 = 34
    if cfg.hfirst:
        e.i('s_waitcnt vmcnt(0)')
        hbuild()
    e.i(f's_lshl_b32 s{sTILE}, s{sJ}, 2')
    e.i(f's_add_u32 s{sTILE}, s{sTILE}, s{sWV}')
    e.i(f's_cmp_lt_u32 s{sWV}, 4')
    e.i('s_cbranch_scc1 Lssm_prep')
    e.i(f's_add_u32 s{sTILE}, s{sJ}, 256')
    e.i(f's_cmp_eq_u32 s{sWV}, 4')
    e.i('s_cbranch_scc0 Lssm_noprep')
    e.i(f's_cmp_lt_u32 s{sJ}, 32')
    e.i('s_cbranch_scc1 Lssm_prep')
    e.label('Lssm_noprep')
    e.i(f's_mov_b32 s{sPF}, -1')
    e.i('s_waitcnt vmcnt(0)')
    e.i('s_branch Lssm_hb')
    e.label('Lssm_prep')
    e.i(f's_mul_hi_u32 s36, s{sTILE}, {(1 << 32)//9 + 1}')
    e.i(f's_mul_i32 s37, s36, 9')
    e.i(f's_sub_u32 s37, s{sTILE}, s37')
    e.i(f's_lshl_b32 s{sPF}, s37, 5')
    e.i(f's_add_u32 s{sPF}, s{sPF}, s36')
    e.i(f's_lshl_b32 s{sPF}, s{sPF}, 8')
    e.i(f's_add_u32 s{sPF}, s{sPF}, {WS_FLAG2}')
    e.i(f's_lshl_b32 s36, s36, 6')
    e.i(f's_lshl_b32 s37, s37, 6')
    e.i(f'v_and_b32 v2, 7, v1')
    e.i(f'v_lshrrev_b32 v3, 3, v1')
    e.i(f'v_lshl_add_u32 v4, v3, 3, s36')
    e.i(f'v_lshl_add_u32 v5, v2, 3, s37')
    e.i(f'v_mul_u32_u24 v6, 1152, v4')
    e.i(f'v_lshl_add_u32 v6, v5, 1, v6')
    e.i(f'v_subrev_u32 v7, 3456, v6')
    e.i(f'v_cmp_eq_u32 vcc, 0, v4')
    e.i(f'v_mov_b32 v8, 0x80000000')
    e.i('s_nop 0')
    e.i(f'v_cndmask_b32 v7, v7, v8, vcc')
    e.i(f'v_lshlrev_b32 v8, 3, v5')
    KR = 16; VR = 60; WR = 92
    e.i('s_mov_b32 s35, 4608')
    for i in range(3):
        e.i(f'buffer_load_dwordx4 v[{KR+4*i}:{KR+4*i+3}], v7, s[{sK}:{sK+3}], 0 offen offset:{1152*i}')
    for i in range(8):
        so = '0' if i < 4 else 's35'
        e.i(f'buffer_load_dwordx4 v[{KR+12+4*i}:{KR+12+4*i+3}], v6, s[{sK}:{sK+3}], {so} offen offset:{1152*(i%4)}')
    for i in range(4):
        e.i(f'buffer_load_dwordx4 v[{WR+4*i}:{WR+4*i+3}], v8, s[{sSK}:{sSK+3}], 0 offen offset:{16*i}')
    for i in range(8):
        so = '0' if i < 4 else 's35'
        e.i(f'buffer_load_dwordx4 v[{VR+4*i}:{VR+4*i+3}], v6, s[{sV}:{sV+3}], {so} offen offset:{1152*(i%4)}')
    e.i(f'v_lshlrev_b32 v9, 12, v5')
    e.i(f'v_lshlrev_b32 v10, 1, v4')
    e.i(f'v_sub_u32 v9, v9, v10')
    e.i(f'v_add_u32 v9, {4080}, v9')
    e.i(f's_mov_b32 s35, {WS_XR}')
    KU = 108; VU = 130; WU = 146; AC = 154; PKD = 170
    e.i('s_waitcnt vmcnt(0)')
    for q in range(4):
        for r in range(11):
            e.i(f'v_lshlrev_b32 v{KU+2*r}, 16, v{KR+4*r+q}')
            e.i(f'v_and_b32 v{KU+2*r+1}, 0xffff0000, v{KR+4*r+q}')
        for c in range(2):
            w = WR + 2*(2*q + c)
            e.i(f'v_lshlrev_b32 v{WU+4*c}, 16, v{w}')
            e.i(f'v_and_b32 v{WU+4*c+1}, 0xffff0000, v{w}')
            e.i(f'v_lshlrev_b32 v{WU+4*c+2}, 16, v{w+1}')
            e.i(f'v_and_b32 v{WU+4*c+3}, 0xffff0000, v{w+1}')
        for r in range(8):
            e.i(f'v_lshlrev_b32 v{VU+2*r}, 16, v{VR+4*r+q}')
            e.i(f'v_and_b32 v{VU+2*r+1}, 0xffff0000, v{VR+4*r+q}')
        for r in range(8):
            for c in range(2):
                e.i(f'v_mul_f32 v{AC+2*r+c}, v{KU+2*(r+0)+c}, v{WU+4*c+3}')
        for j in (2, 1, 0):
            for r in range(8):
                for c in range(2):
                    e.i(f'v_fmac_f32 v{AC+2*r+c}, v{KU+2*(r+3-j)+c}, v{WU+4*c+j}')
        for r in range(8):
            for c in range(2):
                e.i(f'v_mul_f32 v{AC+2*r+c}, v{AC+2*r+c}, v{VU+2*r+c}')
        for c in range(2):
            for k in range(4):
                e.i(f'v_cvt_pk_bf16_f32 v{PKD+4*c+k}, v{AC+2*(7-2*k)+c}, v{AC+2*(6-2*k)+c}')
        for c in range(2):
            e.i(f'buffer_store_dwordx4 v[{PKD+4*c}:{PKD+4*c+3}], v9, s[{sWS}:{sWS+3}], s35 offen sc1')
            e.i(f'v_add_u32 v9, 4096, v9')
        e.i('s_nop 1')
    e.label('Lssm_hb')
    stamp('prep issued')
    if not cfg.hfirst and not cfg.hlast: hbuild()
    stamp('h built')
    e.i('v_mov_b32 v12, 0')
    e.label('Lssm_npoll')
    e.i(f'buffer_load_dword v14, v12, s[{sDB}:{sDB+3}], 0 offen offset:{DBG_NONCE} sc1')
    e.i('s_waitcnt vmcnt(0) lgkmcnt(0)')
    e.i(f'v_readfirstlane_b32 s{sNONCE}, v14')
    e.i(f's_cmp_lg_u32 s{sNONCE}, 0')
    e.i('s_cbranch_scc1 Lssm_nok')
    e.i('s_add_u32 s7, s7, 1'); e.i('s_cmp_lt_u32 s7, 0x40000'); e.i('s_cbranch_scc1 Lssm_npoll')
    e.label('Lssm_nok')
    e.i(f'v_mov_b32 v232, s{sNONCE}')
    e.i(f's_cmp_lt_u32 s{sPF}, 0x7fffffff')
    e.i('s_cbranch_scc0 Lssm_notileflag')
    e.i('v_lshlrev_b32 v12, 2, v1')
    e.i(f'buffer_store_dword v232, v12, s[{sWS}:{sWS+3}], s{sPF} offen sc1')
    e.label('Lssm_notileflag')
    stamp('prep done')
    if cfg.hlast:
        hloads()
        e.i('s_waitcnt vmcnt(0)')
        hbuild()
        e.i('s_waitcnt lgkmcnt(0)')
    e.i(f's_cmp_lt_u32 s{sWV}, 4')
    e.i('s_cbranch_scc1 Lssm_gate_done')
    e.i(f's_lshl_b32 s36, s{sJ}, 5')
    e.i(f's_sub_u32 s37, s{sWV}, 4')
    e.i(f's_lshl_b32 s37, s37, 3')
    e.i(f's_add_u32 s36, s36, s37')
    e.i(f'v_and_b32 v2, 7, v1')
    e.i(f'v_lshrrev_b32 v3, 3, v1')
    e.i(f'v_add_u32 v4, s36, v3')
    e.i(f'v_mul_u32_u24 v6, 1152, v4')
    e.i(f'v_lshl_add_u32 v6, v2, 4, v6')
    e.i(f'v_lshlrev_b32 v7, 4, v2')
    QR = 16; GR = 60
    for i in range(9):
        e.i(f'buffer_load_dwordx4 v[{QR+4*i}:{QR+4*i+3}], v6, s[{sQ}:{sQ+3}], 0 offen offset:{128*i}')
    for i in range(9):
        e.i(f'buffer_load_dwordx4 v[{GR+4*i}:{GR+4*i+3}], v7, s[{sGW}:{sGW+3}], 0 offen offset:{128*i}')
    e.i('v_mov_b32 v8, 0')
    e.i('v_mov_b32 v9, 0')
    e.i('s_waitcnt vmcnt(0)')
    for i in range(36):
        e.i(f'v_lshlrev_b32 v10, 16, v{QR+i}')
        e.i(f'v_lshlrev_b32 v11, 16, v{GR+i}')
        e.i(f'v_and_b32 v12, 0xffff0000, v{QR+i}')
        e.i(f'v_and_b32 v14, 0xffff0000, v{GR+i}')
        e.i(f'v_fmac_f32 v8, v10, v11')
        e.i(f'v_fmac_f32 v9, v12, v14')
    e.i('v_add_f32 v8, v8, v9')
    for off in (0x041F, 0x081F, 0x101F):
        e.i(f'ds_swizzle_b32 v9, v8 offset:{hex(off)}')
        e.i('s_waitcnt lgkmcnt(0)')
        e.i('v_add_f32 v8, v8, v9')
    e.i(f'v_mul_f32 v8, {hex(f2u(-1.4426950408889634))}, v8')
    e.i('v_exp_f32 v8, v8')
    e.i('s_nop 0')
    e.i('v_add_f32 v8, 1.0, v8')
    e.i('v_rcp_f32 v8, v8')
    e.i('v_lshlrev_b32 v10, 2, v4')
    e.i(f's_mov_b32 s35, {WS_G}')
    e.i('v_cmp_eq_u32 vcc, 0, v2')
    e.i('s_and_saveexec_b64 s[38:39], vcc')
    e.i(f'buffer_store_dword v8, v10, s[{sWS}:{sWS+3}], s35 offen sc1')
    e.i('s_mov_b64 exec, s[38:39]')
    e.label('Lssm_gate_done')
    if cfg.w2pf:
        e.i(f's_cmp_lt_u32 s{sWV}, 5')
        e.i('s_cbranch_scc1 Lssm_nopf')
        e.i(f's_load_dwordx2 s[12:13], s[0:1], {KA["w2"]}')
        e.i(f's_mov_b32 s14, {F*D*2}'); e.i('s_mov_b32 s15, 0x00020000')
        e.i(f's_and_b32 s36, s{sJ}, 7'); e.i('s_lshr_b32 s36, s36, 1')
        e.i(f's_mul_i32 s36, s36, {1152*1152}')
        e.i(f's_lshr_b32 s37, s{sJ}, 3'); e.i(f's_mul_i32 s37, s37, {1296*128}')
        e.i('s_add_u32 s36, s36, s37')
        e.i(f's_sub_u32 s37, s{sWV}, 5'); e.i(f's_mul_i32 s37, s37, {448*128}')
        e.i('s_add_u32 s36, s36, s37')
        e.i('v_lshlrev_b32 v12, 7, v1')
        e.i('s_waitcnt lgkmcnt(0)')
        e.i('s_and_b32 s13, s13, 0xffff')
        for i in range(7):
            e.i(f'buffer_load_dword v{200+i}, v12, s[12:15], s36 offen')
            e.i(f's_add_u32 s36, s36, {64*128}')
        e.label('Lssm_nopf')
    e.i(f's_cmp_eq_u32 s{sWV}, 0')
    e.i('s_cbranch_scc0 Lssm_w1_bar')
    e.i(f's_mul_i32 s36, s{sJ}, 9')
    e.i(f's_lshr_b32 s37, s36, 6')
    e.i(f's_add_u32 s36, s36, 8')
    e.i(f's_lshr_b32 s36, s36, 6')
    e.i('v_and_b32 v12, 31, v1')
    e.i('v_lshlrev_b32 v12, 8, v12')
    e.i(f's_lshl_b32 s37, s37, 13')
    e.i(f's_lshl_b32 s36, s36, 13')
    e.i('v_mov_b32 v14, s37')
    e.i('v_mov_b32 v16, s36')
    e.i('v_cmp_gt_u32 vcc, 32, v1')
    e.i('s_nop 1')
    e.i('v_cndmask_b32 v14, v16, v14, vcc')
    e.i('v_add_u32 v12, v12, v14')
    e.i(f's_mov_b32 s36, {WS_FLAG2}')
    e.label('Lssm_w1_poll')
    e.i(f'buffer_load_dword v14, v12, s[{sWS}:{sWS+3}], s36 offen sc1')
    e.i('s_waitcnt vmcnt(0)')
    e.i(f'v_cmp_eq_u32 vcc, s{sNONCE}, v14')
    e.i('s_nop 1')
    e.i('s_cmp_eq_u64 vcc, -1')
    e.i('s_cbranch_scc1 Lssm_w1_bar')
    e.i(f's_sleep {cfg.csleep}')
    e.i('s_add_u32 s7, s7, 1'); e.i('s_cmp_lt_u32 s7, 0x40000'); e.i(f's_cbranch_scc1 Lssm_w1_poll')
    e.label('Lssm_w1_bar')
    e.i('s_barrier')
    stamp('sync done')
    XL = 16
    e.i(f's_lshl_b32 s35, s{sCH}, 12')
    e.i(f's_add_u32 s35, s35, {WS_XR}')
    e.i(f'v_lshlrev_b32 v12, 4, v1')
    for i in range(4):
        e.i(f'buffer_load_dwordx4 v[{XL+4*i}:{XL+4*i+3}], v12, s[{sWS}:{sWS+3}], s35 offen offset:{1024*i} sc1')
    e.i(f's_mul_i32 s36, s{sJ}, 9')
    e.i(f's_add_u32 s36, s36, 8')
    e.i(f's_lshl_b32 s36, s36, 12')
    e.i(f's_lshl_b32 s37, s{sWV}, 9')
    e.i(f's_add_u32 s36, s36, s37')
    e.i(f's_add_u32 s36, s36, {WS_XR}')
    e.i(f'buffer_load_dwordx4 v[{XL+16}:{XL+19}], v12, s[{sWS}:{sWS+3}], s36 offen sc1')
    vN = 2; vG = 3; vAa = [4, 5, 6, 7]; vBa = 8; vXa = 9; vYo = 10
    e.i(f'v_and_b32 v{vN}, 15, v1')
    e.i(f'v_lshrrev_b32 v{vG}, 4, v1')
    e.i(f'v_add_u32 v12, 1, v{vN}')
    e.i(f'v_lshrrev_b32 v12, 1, v12')
    e.i(f'v_lshlrev_b32 v12, 2, v12')
    e.i(f'v_lshl_add_u32 v12, v{vG}, 4, v12')
    e.i(f'v_and_b32 v14, 1, v{vN}')
    e.i(f'v_xor_b32 v14, 1, v14')
    e.i(f'v_mul_u32_u24 v14, {OFF_O}, v14')
    e.i(f'v_add_u32 v11, v12, v14')
    for k in range(4):
        e.i(f'v_add_u32 v{vAa[k]}, {1024*k}, v11')
        e.i(f'v_add_u32 v{vAa[k]}, s{sBASE}, v{vAa[k]}')
    e.i(f'v_lshlrev_b32 v12, 5, v{vN}')
    e.i(f'v_lshlrev_b32 v14, 4, v{vG}')
    e.i(f'v_sub_u32 v60, v14, v12')
    e.i(f's_add_u32 s37, s{sBASE}, {OFF_X + 480}')
    e.i(f'v_add_u32 v{vBa}, s37, v60')
    e.i(f'v_lshlrev_b32 v14, 3, v{vG}')
    e.i(f'v_add_u32 v{vYo}, v14, v12')
    e.i(f's_add_u32 s37, s{sBASE}, {OFF_X + 504}')
    e.i(f'v_sub_u32 v{vXa}, s37, v{vYo}')
    e.i('s_waitcnt vmcnt(0)')
    for i in range(4):
        e.i(f'ds_write_b128 v13, v[{XL+4*i}:{XL+4*i+3}] offset:{OFF_X + 1024*i}')
    e.i(f's_lshl_b32 s36, s{sWV}, 9')
    e.i(f's_add_u32 s36, s36, {R8 + OFF_X}')
    e.i(f'v_add_u32 v14, s36, v15')
    lanes_lt(32, lambda: e.i(f'ds_write_b128 v14, v[{XL+16}:{XL+19}]'))
    e.i('s_waitcnt lgkmcnt(0)')
    e.i('s_barrier')
    stamp('x loaded')
    ACC = 16; AB = [48+16, 96]; BB = [128, 160]
    AB = [64, 96]
    def read_list(rho, st, aregs, breg):
        out = []
        for k in range(8):
            a = aregs[k >> 1]; o = 16*rho + 128*(k & 1)
            r = AB[st] + 4*k; rb = BB[st] + 4*k
            kap = 8*k - rho
            out.append((f'ds_read_b128 v[{rb}:{rb+3}], v{breg} offset:{3584 - 64*kap}', ('b', rho, st, k)))
            out.append((f'ds_read2_b32 v[{r}:{r+1}], v{a} offset0:{o} offset1:{o+1}', ('a', rho, st, k, 0)))
            out.append((f'ds_read2_b32 v[{r+2}:{r+3}], v{a} offset0:{o+2} offset1:{o+3}', ('a', rho, st, k, 1)))
        return out
    def mfmas(rho, st, nxt, first, ACC=16):
        cnt = 0
        for ee in range(8):
            for u in range(8 - ee):
                tau = ee + u
                e.wait_lds(('a', rho, st, ee, 1)); e.wait_lds(('b', rho, st, u))
                a = AB[st] + 4*ee; b = BB[st] + 4*u; acc = ACC + 4*tau
                c = '0' if (first and ee == 0) else f'v[{acc}:{acc+3}]'
                e.mfma(f'v_mfma_f32_16x16x32_bf16 v[{acc}:{acc+3}], v[{a}:{a+3}], v[{b}:{b+3}], {c}',
                       list(range(acc, acc+4)), [])
                cnt += 1
                if nxt and cnt >= 6:
                    t, tag = nxt.pop(0); e.lds(t, tag)
        assert not nxt
    a9 = [48, 49, 50, 51]; b9 = 52
    e.i(f's_lshl_b32 s36, s{sWV}, 6')
    e.i(f's_add_u32 s37, s36, {R8}')
    for k in range(4):
        e.i(f'v_add_u32 v{a9[k]}, {1024*k}, v11')
        e.i(f'v_add_u32 v{a9[k]}, s37, v{a9[k]}')
    e.i(f's_add_u32 s37, s37, {OFF_X + 480}')
    e.i(f'v_add_u32 v{b9}, s37, v60')
    e.lq = []
    for (t, tag) in read_list(0, 0, vAa, vBa): e.lds(t, tag)
    for rho in range(8):
        st = rho & 1
        if cfg.prio and rho % 2 == 0: e.i(f's_setprio {3 - rho // 2}')
        if rho < 7: nxt = read_list(rho + 1, st ^ 1, vAa, vBa)
        else: nxt = [(t, ('n',) + tag) for (t, tag) in read_list(0, 0, a9, b9)]
        mfmas(rho, st, nxt, rho == 0)
    ACC9 = 196
    for ee in range(8):
        for u in range(8 - ee):
            tau = ee + u
            e.wait_lds(('n', 'a', 0, 0, ee, 1)); e.wait_lds(('n', 'b', 0, 0, u))
            a = AB[0] + 4*ee; b = BB[0] + 4*u; acc = ACC9 + 4*tau
            c = '0' if ee == 0 else f'v[{acc}:{acc+3}]'
            e.mfma(f'v_mfma_f32_16x16x32_bf16 v[{acc}:{acc+3}], v[{a}:{a+3}], v[{b}:{b+3}], {c}', list(range(acc, acc+4)), [])
    for tau in range(8):
        e.lds(f'ds_read_b64 v[{96+2*tau}:{97+2*tau}], v{vXa} offset:{3584 - 512*tau}', ('xv', tau))
    e.i(f's_lshl_b32 s35, s{sCH}, 12')
    e.i(f's_add_u32 s35, s35, {WS_Y2}')
    def yout(x0, accs, sD, pk):
        e.valu(f'v_and_b32 v120, 0xffff0000, v{x0+1}', dst=[120])
        e.valu(f'v_lshlrev_b32 v121, 16, v{x0+1}', dst=[121])
        e.valu(f'v_and_b32 v122, 0xffff0000, v{x0}', dst=[122])
        e.valu(f'v_lshlrev_b32 v123, 16, v{x0}', dst=[123])
        for r in range(4):
            e.valu(f'v_fma_f32 v{120+r}, v{120+r}, s{sD}, v{accs[r]}', dst=[120+r], src=[accs[r]])
        e.valu(f'v_cvt_pk_bf16_f32 v{pk}, v120, v121', dst=[pk])
        e.valu(f'v_cvt_pk_bf16_f32 v{pk+1}, v122, v123', dst=[pk+1])
    for tau in range(8):
        e.wait_lds(('xv', tau))
        pk = 124 + 2*(tau & 1)
        yout(96 + 2*tau, [ACC+4*tau+r for r in range(4)], sDV, pk)
        e.i(f'buffer_store_dwordx2 v[{pk}:{pk+1}], v{vYo}, s[{sWS}:{sWS+3}], s35 offen offset:{512*tau} sc1')
    e.wait_lds_all()
    e.nop(8)
    for tau in range(8):
        e.lds(f'ds_write_b128 v13, v[{ACC9+4*tau}:{ACC9+4*tau+3}] offset:{1024*tau}', ('p9', tau))
    stamp('chan done')
    e.wait_lds_all()
    e.i('s_barrier')
    e.i(f's_lshl_b32 s36, s{sWV}, 10')
    e.i(f'v_add_u32 v54, s36, v15')
    e.i(f'v_add_u32 v55, {4*WREG}, v54')
    for k in range(8):
        a = 54 if k < 4 else 55
        e.lds(f'ds_read_b128 v[{64+4*k}:{67+4*k}], v{a} offset:{(k%4)*WREG}', ('f9', k))
    e.i(f's_lshl_b32 s36, s{sWV}, 9')
    e.i(f's_sub_u32 s36, {R8 + OFF_X + 4088}, s36')
    e.i(f'v_sub_u32 v54, s36, v{vYo}')
    e.lds(f'ds_read_b64 v[20:21], v54', ('x9',))
    e.i(f's_mul_i32 s35, s{sJ}, 9')
    e.i(f's_add_u32 s35, s35, 8')
    e.i(f's_lshl_b32 s35, s35, 12')
    e.i(f's_lshl_b32 s36, s{sWV}, 9')
    e.i(f's_add_u32 s35, s35, s36')
    e.i(f's_add_u32 s35, s35, {WS_Y2}')
    e.wait_lds_all()
    for k in range(1, 8):
        for r in range(4):
            e.i(f'v_add_f32 v{64+r}, v{64+r}, v{64+4*k+r}')
    yout(20, [64, 65, 66, 67], sDV9, 124)
    e.i(f'buffer_store_dwordx2 v[124:125], v{vYo}, s[{sWS}:{sWS+3}], s35 offen sc1')
    e.i('s_waitcnt vmcnt(0)')
    e.i('s_barrier')
    e.i(f's_cmp_eq_u32 s{sWV}, 0')
    e.i('s_cbranch_scc0 Lssm_nocf')
    e.i('v_lshlrev_b32 v12, 2, v1')
    e.i(f's_lshl_b32 s36, s{sJ}, 8')
    e.i(f's_add_u32 s36, s36, {WS_FLAG3}')
    e.i(f'buffer_store_dword v232, v12, s[{sWS}:{sWS+3}], s36 offen sc1')
    e.label('Lssm_nocf')
    stamp('conv done')
    if cfg.nored: e.i('s_branch Lssm_fin')
    gen_final_consts(e, 240)
    sT = 30; sMI = 31
    sDTk = [12, 13, 14]; sPBk = [16, 17, 18]; sOBk = [24, 25, 26]
    e.i(f's_lshr_b32 s{sT}, s{sJ}, 2')
    e.i(f's_and_b32 s{sMI}, s{sJ}, 3')
    def unitR(k):
        return dict(sWS=sWS, sQ=sQ, sB2=sB2, sOUT=sOUT, sT=sT, sMI=sMI, sDT=sDTk[k], sLDS=sBASE, tmp=(34, 35, 36, 37), ldflag='sc1', vA=240,
                    BR=128 + 8*k, QG=184 + 16*k, sPB=sPBk[k], sOB=sOBk[k], QR=96 + 8*k, YS=32 + 8*k, k=k, outflag=cfg.outflag)
    NU = 2*(9 - cfg.kffn)
    KMAX = -(-NU // 8)
    def for_units(fn, lbl):
        for k in range(KMAX):
            if NU - 8*k < 8:
                e.i(f's_cmp_lt_u32 s{sWV}, {NU - 8*k}')
                e.i(f's_cbranch_scc0 {lbl}')
            fn(k)
        e.label(lbl)
    def f_issue(k):
        e.i(f's_add_u32 s34, s{sWV}, {8*k}')
        e.i(f's_and_b32 s5, s34, 1')
        e.i(f's_lshr_b32 s34, s34, 1')
        e.i(f's_and_b32 s35, s{sT}, 7')
        e.i(f's_add_u32 s34, s34, s35')
        e.i(f's_sub_u32 s35, s34, 9')
        e.i(f's_min_u32 s34, s34, s35')
        e.i(f's_lshl_b32 s34, s34, 1')
        e.i(f's_add_u32 s{sDTk[k]}, s34, s5')
        gen_pre_a_issue(e, unitR(k), k == 0)
    for_units(f_issue, 'Lpre_a1')
    e.i('s_waitcnt vmcnt(0)')
    for_units(lambda k: gen_pre_a_comp(e, unitR(k), k == 0), 'Lpre_a2')
    if cfg.nocpoll: e.i('s_branch Lssm_cready')
    e.i(f's_cmp_eq_u32 s{sWV}, 0')
    e.i('s_cbranch_scc0 Lssm_cready')
    e.i('v_lshlrev_b32 v12, 8, v1')
    e.i(f's_mov_b32 s36, {WS_FLAG3}')
    e.label('Lssm_cpoll')
    e.i(f'buffer_load_dword v14, v12, s[{sWS}:{sWS+3}], s36 offen sc1')
    e.i('s_waitcnt vmcnt(0)')
    e.i(f'v_cmp_eq_u32 vcc, s{sNONCE}, v14')
    e.i('s_nop 1')
    e.i('s_cmp_eq_u64 vcc, -1')
    e.i('s_cbranch_scc1 Lssm_cready')
    e.i(f's_sleep {cfg.c2sleep}')
    e.i('s_add_u32 s7, s7, 1'); e.i('s_cmp_lt_u32 s7, 0x40000'); e.i(f's_cbranch_scc1 Lssm_cpoll')
    e.label('Lssm_cready')
    e.i('s_barrier')
    stamp('conv flags')
    if cfg.nounits: e.i('s_branch Lssm_fin')
    for_units(lambda k: gen_pre_c_issue(e, unitR(k), k == 0), 'Lpre_c1')
    e.i('s_waitcnt vmcnt(0)')
    for_units(lambda k: gen_pre_c_lds(e, unitR(k), k == 0), 'Lpre_c2')
    e.i('s_waitcnt lgkmcnt(0)')
    for_units(lambda k: gen_pre_c_comp(e, unitR(k)), 'Lpre_c3')
    stamp('pre done')
    for k in range(KMAX):
        if NU - 8*k < 8:
            e.i(f's_cmp_lt_u32 s{sWV}, {NU - 8*k}')
            e.i('s_cbranch_scc0 Lssm_fin')
        e.i(f's_mul_i32 s6, s{sT}, 9')
        e.i(f's_lshr_b32 s5, s{sDTk[k]}, 1')
        e.i(f's_add_u32 s6, s6, s5')
        e.i(f's_mul_i32 s6, s6, {12*256}')
        e.i(f's_add_u32 s6, s6, {WS_FLAG}')
        e.i(f'v_min_u32 v12, {NCH-1}, v1')
        e.i(f'v_lshlrev_b32 v12, 8, v12')
        e.label(f'Lssm_fpoll{k}')
        e.i(f'buffer_load_dword v14, v12, s[{sWS}:{sWS+3}], s6 offen sc1')
        e.i('s_waitcnt vmcnt(0)')
        e.i(f'v_cmp_eq_u32 vcc, s{sNONCE}, v14')
        e.i('s_nop 1')
        e.i('s_cmp_eq_u64 vcc, -1')
        e.i(f's_cbranch_scc1 Lssm_fready{k}')
        e.i(f's_sleep {cfg.fsleep}')
        e.i('s_add_u32 s7, s7, 1'); e.i('s_cmp_lt_u32 s7, 0x40000'); e.i(f's_cbranch_scc1 Lssm_fpoll{k}')
        e.label(f'Lssm_fready{k}')
        if cfg.prof: e.i(f's_memtime s[{sPROF+2*(10+2*k)}:{sPROF+2*(10+2*k)+1}]')
        gen_final_post(e, unitR(k))
        if cfg.prof:
            e.i('s_waitcnt vmcnt(0)')
            e.i(f's_memtime s[{sPROF+2*(11+2*k)}:{sPROF+2*(11+2*k)+1}]')
    e.label('Lssm_fin')
    e.i('s_waitcnt vmcnt(0)')
    nprof[0] = 16
    if cfg.prof:
        e.i('s_memrealtime s[100:101]')
        e.i('s_waitcnt lgkmcnt(0)')
        e.i(f's_cmp_eq_u32 s{sWV}, 1')
        e.i('s_cbranch_scc0 Lssm_noprof')
        e.i(f's_lshl_b32 s34, s2, 7')
        e.i(f's_add_u32 s34, s34, {WS_PROF}')
        e.i(f'v_mov_b32 v14, 0')
        for k in range(nprof[0]):
            e.i(f'v_mov_b32 v13, s{sPROF+2*k}')
            e.i(f'buffer_store_dword v13, v14, s[{sWS}:{sWS+3}], s34 offen offset:{4*k}')
        e.i(f'v_mov_b32 v13, s98')
        e.i(f'buffer_store_dword v13, v14, s[{sWS}:{sWS+3}], s34 offen offset:{4*30}')
        e.i(f'v_mov_b32 v13, s100')
        e.i(f'buffer_store_dword v13, v14, s[{sWS}:{sWS+3}], s34 offen offset:{4*31}')
        e.i('s_waitcnt vmcnt(0)')
        e.label('Lssm_noprof')
    e.i('s_endpgm')
```

```python
from common import *
from fin import *
import ffn_unit

def ring_plan(maxper=3):
    slot = {0: 2, 1: 3}
    issue = {s: [] for s in range(0, 36)}
    slot[2] = 2; issue[1].append(2)
    slot[3] = 4; slot[4] = 5
    slot[5] = 3; issue[2].append(5)
    free = []
    nxt = 6
    ex = []
    for s in range(3, 36):
        free.append(slot[s-1])
        if s == 3: free = [0, 1] + free
        if s in (15, 16):
            ex.append(free.pop())
            assert not free
            continue
        if s == 21: free += ex
        while free and nxt < 36 and len(issue[s]) < maxper:
            slot[nxt] = free.pop(0); issue[s].append(nxt); nxt += 1
    assert nxt == 36, nxt
    return slot, issue, ex

P2 = [(0,0),(1,0),(0,1),(1,1)] + [(dp, kb) for dp in range(2, 9) for kb in range(2)]

def gen_ffn(e, cfg):
    slot, issue, ex = ring_plan(2 if cfg.dma2 else 3)
    vLANE = 1; vA0 = 2; vA1 = 3
    vPAT1 = 4; vPAT2 = 5
    vW1 = 6; vW2 = 7; vBIAS = 8; vC0 = 9
    vST = 10; vA2 = 11; vA3 = 12
    tmp = [13, 14, 15, 0]
    AF = 16
    ACC = [32, 48]
    HOWN = 64
    XF = 112
    HPART = 112
    PK = 160
    ACCP = [168, 184]
    vX0 = 32; vX1 = 33
    sW1 = 8; sW2 = 12; sX = 16; sWS = 20; sB1 = 24
    sWV = 28; sMI = 29; sP = 30; sC = 31; sT = 32
    sW1B = 33; sXB = 34; sM0B = 35; sOFF = 36; sGC1 = 37; sSTO = 38; sROT = 39
    sC1 = 44
    sR2 = 50
    sD2 = 56
    sNONCE = 66; sFLB = 67; sDB = 68
    vNON = 200; vZERO = 201
    sPROF = 72
    nprof = [0]
    def stamp(name):
        if cfg.prof and nprof[0] < 13:
            k = nprof[0]; nprof[0] += 1
            e.i(f's_memtime s[{sPROF+2*k}:{sPROF+2*k+1}]')
    if cfg.prof: e.i('s_memrealtime s[98:99]')
    stamp('start')
    e.i('s_and_b32 s40, s2, 7')
    e.i('s_lshr_b32 s41, s2, 3')
    e.i('s_lshr_b32 s42, s40, 1')
    e.i('s_mul_i32 s42, s42, 3')
    e.i('s_lshr_b32 s43, s41, 3')
    e.i(f's_add_u32 s{sC}, s42, s43')
    e.i('s_and_b32 s42, s40, 1')
    e.i('s_lshl_b32 s42, s42, 3')
    e.i('s_and_b32 s43, s41, 7')
    e.i(f's_add_u32 s{sT}, s42, s43')
    e.i(f's_load_dwordx2 s[{sX}:{sX+1}], s[0:1], {KA["q"]}')
    e.i(f's_load_dwordx2 s[{sW1}:{sW1+1}], s[0:1], {KA["w1"]}')
    e.i(f's_load_dwordx2 s[{sB1}:{sB1+1}], s[0:1], {KA["b1"]}')
    e.i(f's_load_dwordx2 s[{sW2}:{sW2+1}], s[0:1], {KA["w2"]}')
    e.i(f's_load_dwordx2 s[{sWS}:{sWS+1}], s[0:1], {KA["ws"]}')
    e.i(f's_load_dwordx2 s[{sDB}:{sDB+1}], s[0:1], {KA["dbg"]}')
    e.i(f's_load_dwordx2 s[4:5], s[0:1], {KA["out"]}')
    e.i(f's_load_dwordx2 s[6:7], s[0:1], {KA["b2"]}')
    L = vLANE
    e.i(f'v_and_b32 v{L}, 63, v0')
    e.i('v_lshrrev_b32 v13, 6, v0')
    e.i('s_nop 0')
    e.i(f'v_readfirstlane_b32 s{sWV}, v13')
    for s_, nb in ((sW1, D*F*2), (sW2, F*D*2), (sX, S*D*2), (sWS, WS_TOTAL), (sB1, F*2), (sDB, 256)):
        e.i(f's_mov_b32 s{s_+2}, {nb}')
        e.i(f's_mov_b32 s{s_+3}, 0x00020000')
    e.i(f's_mov_b32 s{sGC1}, {hex(f2u(GC1))}')
    e.i(f'v_mov_b32 v{vC0}, {hex(f2u(GC0))}')
    e.i(f's_and_b32 s{sMI}, s{sWV}, 3')
    e.i(f's_lshr_b32 s{sP}, s{sWV}, 2')
    e.i(f'v_lshrrev_b32 v13, 3, v{L}')
    e.i(f'v_lshrrev_b32 v14, 4, v{L}')
    e.i(f'v_and_b32 v15, 7, v{L}')
    e.i(f'v_xor_b32 v16, v15, v14')
    e.i(f'v_mul_u32_u24 v17, 1152, v13')
    e.i(f'v_lshl_add_u32 v{vX0}, v16, 4, v17')
    e.i(f'v_xor_b32 v16, 4, v16')
    e.i(f'v_lshl_add_u32 v{vX1}, v16, 4, v17')
    e.i(f'v_add_u32 v{vX1}, {8*1152}, v{vX1}')
    e.i(f's_lshl_b32 s41, s{sT}, 7')
    e.i(f's_lshl_b32 s42, s{sWV}, 4')
    e.i(f's_add_u32 s41, s41, s42')
    e.i(f's_mul_i32 s{sXB}, s41, 1152')
    e.i(f's_lshl_b32 s{sM0B}, s{sWV}, 11')
    e.i(f'v_and_b32 v14, 1, v14')
    e.i(f'v_lshlrev_b32 v14, 2, v14')
    e.i(f'v_xor_b32 v15, v15, v14')
    e.i(f'v_lshlrev_b32 v15, 4, v15')
    e.i(f'v_mul_u32_u24 v14, 9216, v13')
    e.i(f'v_add_u32 v{vW1}, v14, v15')
    e.i(f'v_add_u32 v{vW2}, v17, v15')
    e.i(f's_and_b32 s43, s{sT}, 7')
    if cfg.rot == 6:
        e.i(f's_sub_u32 s42, s43, 6')
        e.i(f's_min_u32 s{sROT}, s43, s42')
    elif cfg.rot == 2:
        e.i(f's_and_b32 s42, s43, 1')
        e.i(f's_mul_i32 s{sROT}, s42, 3')
    elif cfg.rot == 3:
        e.i(f's_and_b32 s42, s43, 3')
        e.i(f's_lshl_b32 s42, s42, 1')
        e.i(f's_sub_u32 s41, s42, 6')
        e.i(f's_min_u32 s{sROT}, s42, s41')
    else:
        e.i(f's_mov_b32 s{sROT}, 0')
    e.i(f's_mul_i32 s40, s{sC}, {FC}')
    e.i(f's_lshl_b32 s41, s40, 1')
    e.i(f's_mul_i32 s42, s{sWV}, {24*9216}')
    e.i(f's_add_u32 s{sW1B}, s41, s42')
    for fp in range(6):
        e.i(f's_add_u32 s42, s{sROT}, {fp}')
        e.i(f's_sub_u32 s41, s42, 6')
        e.i(f's_min_u32 s42, s42, s41')
        e.i(f's_lshl_b32 s42, s42, 7')
        e.i(f's_add_u32 s{sC1+fp}, s{sW1B}, s42')
    e.i('s_waitcnt lgkmcnt(0)')
    if cfg.prostamps: stamp('kernarg')
    for s_ in (sW1, sW2, sX, sWS, sB1, sDB):
        e.i(f's_and_b32 s{s_+1}, s{s_+1}, 0xffff')
    def xdma(blk, base):
        for a, vx in ((0, vX0), (1, vX1)):
            e.i(f's_add_u32 m0, s{sM0B}, {base + a*1024}')
            e.i(f's_add_u32 s{sOFF}, s{sXB}, {blk*128}')
            e.vm(f'buffer_load_dwordx4 v{vx}, s[{sX}:{sX+3}], s{sOFF} offen lds', ('xd', blk, a))
    def dma_one(it, i):
        if cfg.nodma and it >= 6:
            e.vq.append(('dma', it, i)); e.vm_done.add(('dma', it, i)); e.vq.pop(); return
        sl = slot[it]
        e.i(f's_add_u32 m0, s{sM0C}, {sl*SLOT + i*1024}')
        if it < 18:
            fp, kb = it // 3, it % 3
            e.i(f's_add_u32 s{sOFF}, s{sC1+fp}, {(192*kb + 8*i)*9216}')
            e.vm(f'buffer_load_dwordx4 v{vW1}, s[{sW1}:{sW1+3}], s{sOFF} offen lds', ('dma', it, i))
        else:
            dp, kb = P2[it-18]
            e.i(f's_add_u32 s{sOFF}, s{sR2+3*kb+i}, s{sD2+dp}')
            e.vm(f'buffer_load_dwordx4 v{vW2}, s[{sW2}:{sW2+3}], s{sOFF} offen lds', ('dma', it, i))
    sM0C = 65
    e.i(f's_mul_i32 s{sM0C}, s{sWV}, 3072')
    def dma_item(it):
        for i in range(3): dma_one(it, i)
    if cfg.startprio: e.i('s_setprio 3')
    for b in range(3): xdma(b, b*16384)
    e.i(f'v_lshrrev_b32 v13, 5, v{L}')
    e.i(f's_lshl_b32 s42, s{sWV}, 1')
    e.i(f's_add_u32 s42, s42, s{sROT}')
    e.i(f'v_add_u32 v13, s42, v13')
    e.i(f'v_subrev_u32 v14, 6, v13')
    e.i(f'v_min_u32 v13, v13, v14')
    e.i(f'v_lshlrev_b32 v13, 7, v13')
    e.i(f'v_and_b32 v14, 31, v{L}')
    e.i(f'v_lshl_add_u32 v13, v14, 2, v13')
    e.i(f's_lshl_b32 s44, s40, 1') if False else None
    e.i(f's_lshl_b32 s41, s40, 1')
    e.i(f's_cmp_lt_u32 s{sWV}, 3')
    e.i(f's_cbranch_scc0 Lffn_nobias_ld')
    e.i(f'buffer_load_dword v34, v13, s[{sB1}:{sB1+3}], s41 offen')
    e.label('Lffn_nobias_ld')
    if cfg.startbar >= 1: e.i('s_barrier')
    dma_item(0)
    if cfg.startprio: e.i('s_setprio 2')
    if cfg.startbar >= 2: e.i('s_barrier')
    dma_item(1)
    if cfg.startbar >= 3: e.i('s_barrier')
    if cfg.startprio: e.i('s_setprio 0')
    if not cfg.latexb:
        for b in range(3, 6): xdma(b, 4*SLOT + (b-3)*16384)
    if cfg.touch:
        e.i(f'v_mul_u32_u24 v38, 1152, v{L}')
        e.i(f'v_mul_u32_u24 v39, 9216, v{L}')
        e.i(f's_cmp_ge_u32 s{sWV}, 3')
        e.i(f's_cselect_b32 s41, 1, 0')
        e.i(f's_mul_i32 s42, s41, 3')
        e.i(f's_sub_u32 s42, s{sWV}, s42')
        e.i(f's_lshl_b32 s42, s42, 7')
        e.i(f's_mul_i32 s41, s41, {64*1152}')
        e.i(f's_add_u32 s41, s41, s42')
        e.i(f's_lshl_b32 s42, s{sT}, 7')
        e.i(f's_mul_i32 s42, s42, 1152')
        e.i(f's_add_u32 s41, s41, s42')
        e.i(f's_add_u32 s41, s41, 768')
        e.i(f's_cmp_lt_u32 s{sWV}, 6')
        e.i(f's_cselect_b32 s41, s41, 0x70000000')
        e.vm(f'buffer_load_dword v104, v38, s[{sX}:{sX+3}], s41 offen', ('touch', 0))
        e.i(f's_mul_i32 s42, s{sWV}, {24*9216}')
        e.i(f's_sub_u32 s41, s{sC1}, s42')
        e.i(f's_sub_u32 s42, s{sC1+1}, s42')
        e.i(f's_add_u32 s41, s41, {192*2*9216}')
        e.i(f's_mul_i32 s38, s{sWV}, {64*9216}')
        e.i(f's_add_u32 s41, s41, s38')
        e.i(f's_sub_u32 s38, s38, {3*64*9216}')
        e.i(f's_add_u32 s38, s38, s42')
        e.i(f's_cmp_lt_u32 s{sWV}, 3')
        e.i(f's_cselect_b32 s41, s41, s38')
        e.vm(f'buffer_load_dword v105, v39, s[{sW1}:{sW1+3}], s41 offen', ('touch', 1))
        e.i(f's_add_u32 s42, s42, {5*64*9216}')
        e.i(f's_cmp_eq_u32 s{sWV}, 0')
        e.i(f's_cselect_b32 s42, s42, 0x70000000')
        e.vm(f'buffer_load_dword v106, v39, s[{sW1}:{sW1+3}], s42 offen', ('touch', 2))
    if cfg.prostamps: stamp('issued')
    for i in range(3):
        e.i(f's_mul_i32 s41, s{sWV}, 24')
        e.i(f's_add_u32 s41, s41, {8*i}')
        e.i(f's_lshr_b32 s42, s41, 6')
        e.i(f's_and_b32 s41, s41, 63')
        e.i(f's_add_u32 s41, s41, s40')
        e.i(f's_add_u32 s42, s42, s{sROT}')
        for kb in range(2):
            e.i(f's_add_u32 s{sOFF}, s42, {3*kb}')
            e.i(f's_sub_u32 s{sSTO}, s{sOFF}, 6')
            e.i(f's_min_u32 s{sOFF}, s{sOFF}, s{sSTO}')
            e.i(f's_lshl_b32 s{sOFF}, s{sOFF}, 6')
            e.i(f's_add_u32 s{sOFF}, s{sOFF}, s41')
            e.i(f's_mul_i32 s{sR2+3*kb+i}, s{sOFF}, 1152')
    for dp in range(9):
        e.i(f's_add_u32 s42, s43, {dp}')
        e.i(f's_sub_u32 s41, s42, 9')
        e.i(f's_min_u32 s42, s42, s41')
        e.i(f's_lshl_b32 s{sD2+dp}, s42, 7')
    e.i(f's_lshl_b32 s42, s{sT}, 2')
    e.i(f's_add_u32 s42, s42, s{sMI}')
    e.i(f's_mul_i32 s42, s42, 18')
    e.i(f's_add_u32 s42, s42, s{sP}')
    e.i(f's_mul_i32 s42, s42, {NCH}')
    e.i(f's_add_u32 s42, s42, s{sC}')
    e.i(f's_lshl_b32 s{sSTO}, s42, 11')
    e.i(f's_add_u32 s{sSTO}, s{sSTO}, {WS_PART}')
    e.i(f's_mul_i32 s42, s{sT}, {9*12}')
    e.i(f's_add_u32 s42, s42, s{sC}')
    e.i(f's_lshl_b32 s42, s42, 8')
    e.i(f's_add_u32 s42, s42, {WS_FLAG}')
    e.i(f's_cmp_eq_u32 s{sWV}, 0')
    e.i(f's_cselect_b32 s{sFLB}, s42, 0x70000000')
    e.i(f'v_lshrrev_b32 v15, 5, v{L}')
    e.i(f's_lshl_b32 s42, s{sP}, 7')
    e.i(f's_add_u32 s42, s42, {LDS_BIAS}')
    e.i(f'v_lshl_add_u32 v{vBIAS}, v15, 4, s42')
    e.i(f'v_and_b32 v13, 15, v{L}')
    e.i(f'v_lshrrev_b32 v14, 2, v13')
    e.i(f'v_lshrrev_b32 v0, 3, v13')
    e.i(f'v_xor_b32 v0, s{sP}, v0')
    e.i(f'v_lshlrev_b32 v0, 6, v0')
    e.i(f'v_lshrrev_b32 v{vA0}, 4, v{L}')
    e.i(f'v_and_b32 v{vA0}, 1, v{vA0}')
    e.i(f'v_lshl_add_u32 v0, v{vA0}, 5, v0')
    e.i(f'v_and_b32 v{vA0}, 3, v13')
    e.i(f'v_lshl_add_u32 v0, v{vA0}, 3, v0')
    e.i(f'v_lshl_add_u32 v{vA0}, v15, 3, v14')
    e.i(f'v_lshl_add_u32 v{vPAT1}, v{vA0}, 7, v0')
    e.i(f'v_lshl_add_u32 v{vA0}, v15, 2, v14')
    e.i(f'v_lshl_add_u32 v{vPAT2}, v{vA0}, 7, v0')
    e.i(f'v_and_b32 v13, 31, v{L}')
    e.i(f'v_lshrrev_b32 v14, 1, v13')
    e.i(f'v_and_b32 v14, 7, v14')
    e.i(f'v_xor_b32 v14, v14, v15')
    e.i(f'v_lshlrev_b32 v14, 4, v14')
    e.i(f's_lshl_b32 s42, s{sMI}, 12')
    e.i(f'v_lshl_add_u32 v13, v13, 7, v14')
    e.i(f'v_add_u32 v{vST}, s42, v13')
    def xaddr(region):
        for tl in range(4):
            e.valu(f'v_xor_b32 v{tmp[tl]}, {32*tl}, v{vST}', dst=[tmp[tl]])
            if region:
                e.valu(f'v_add_u32 v{tmp[tl]}, {region}, v{tmp[tl]}', dst=[tmp[tl]])
    def xread(t):
        g = t // 12; tt = t % 12
        e.lds(f'ds_read_b128 v[{XF+4*t}:{XF+4*t+3}], v{tmp[tt & 3]} offset:{(tt >> 2)*16384}', ('x', t))
    if cfg.prostamps: stamp('setup done')
    if cfg.prostamps:
        e.wait_vm(('xd', 0, 0)); stamp('first landed')
    e.wait_vm(('xd', 2, 1))
    if cfg.prostamps: stamp('XA landed')
    e.i('s_barrier')
    stamp('Ba')
    xaddr(0)
    for t in range(12): xread(t)
    if cfg.latexb:
        for b in range(3, 6): xdma(b, 4*SLOT + (b-3)*16384)
    if cfg.earlyxc:
        e.i('s_waitcnt lgkmcnt(0)')
        e.i('s_barrier')
        for b in range(6, 9): xdma(b, (b-6)*16384)
    e.wait_vm(('dma', 0, 0))
    e.i(f's_cmp_lt_u32 s{sWV}, 3')
    e.i(f's_cbranch_scc0 Lffn_nobias_st')
    e.i('v_lshlrev_b32 v36, 16, v34')
    e.i('v_and_b32 v37, 0xffff0000, v34')
    e.i(f'v_lshlrev_b32 v35, 3, v{L}')
    e.i(f's_lshl_b32 s42, s{sWV}, 9')
    e.i(f's_add_u32 s42, s42, {LDS_BIAS}')
    e.i(f'v_add_u32 v35, s42, v35')
    e.i('ds_write_b64 v35, v[36:37]')
    e.label('Lffn_nobias_st')
    e.i('s_waitcnt lgkmcnt(0)')
    e.lq = []; e.lds_done.update(('x', t) for t in range(12))
    e.wait_vm(('dma', 1, 2))
    e.i('s_barrier')
    stamp('Bb')
    if not cfg.earlyxc:
        for b in range(6, 9): xdma(b, (b-6)*16384)

    beats = [(s, b) for s in range(36) for b in range(12)]
    PD = cfg.pd
    def frag_reg(gb):
        s_ = beats[gb][0]
        if cfg.nb == 4: return AF + 4*(gb % 4)
        k = gb % cfg.nb
        if k < 4: return AF + 4*k
        return (104 + 4*(k - 4)) if s_ < 18 else (204 + 4*(k - 4))
    NOPREF = {2, 3}
    def addr_reg(s, partner=False):
        if s < 18: return (vA0, vA1)[s & 1]
        return ((vA2, vA3) if partner else (vA0, vA1))[s & 1]
    addr_set = set()
    def ensure_addr(s):
        if s in addr_set or s >= 36: return
        addr_set.add(s)
        base = slot[s]*SLOT
        e.valu(f'v_add_u32 v{addr_reg(s)}, {base}, v{vPAT1}', dst=[addr_reg(s)])
        if s >= 18:
            e.valu(f'v_add_u32 v{addr_reg(s, True)}, {base}, v{vPAT2}', dst=[addr_reg(s, True)])
    def p2_beat(b):
        return b >= 6, (b % 6) // 2, b % 2
    issued = set()
    def issue_reads(gb):
        if gb >= len(beats) or gb in issued: return
        issued.add(gb)
        s, b = beats[gb]
        fr = frag_reg(gb)
        if s < 18:
            a = addr_reg(s); o1 = b*2048; o2 = o1 + 512
        else:
            partner, u, tp = p2_beat(b)
            a = addr_reg(s, partner); o1 = u*8192 + tp*2048; o2 = o1 + 1024
        e.lds(f'ds_read_b64_tr_b16 v[{fr}:{fr+1}], v{a} offset:{o1}', ('af', gb, 0))
        e.lds(f'ds_read_b64_tr_b16 v[{fr+2}:{fr+3}], v{a} offset:{o2}', ('af', gb, 1))
    def bias_read(tile, j):
        acc = ACC[tile & 1]
        e.lds(f'ds_read_b128 v[{acc+4*j}:{acc+4*j+3}], v{vBIAS} offset:{256*tile + 32*j}', ('bias', tile, j))
    def gelu_ops(tile):
        acc = ACC[tile & 1]
        ops = []
        for pr in range(8):
            a = acc + 2*pr; b = a + 1
            t0, t1 = (tmp[0], tmp[1]) if pr % 2 == 0 else (tmp[2], tmp[3])
            h = HOWN + 8*tile + pr
            seq = [
                (f'v_mul_f32_e32 v{t0}, v{a}, v{a}', [t0], [a], False),
                (f'v_mul_f32_e32 v{t1}, v{b}, v{b}', [t1], [b], False),
                (f'v_fma_f32 v{t0}, v{t0}, s{sGC1}, v{vC0}', [t0], [t0], False),
                (f'v_fma_f32 v{t1}, v{t1}, s{sGC1}, v{vC0}', [t1], [t1], False),
                (f'v_mul_f32_e32 v{t0}, v{t0}, v{a}', [t0], [t0, a], False),
                (f'v_mul_f32_e32 v{t1}, v{t1}, v{b}', [t1], [t1, b], False),
                (f'v_exp_f32_e32 v{t0}, v{t0}', [t0], [t0], True),
                (f'v_exp_f32_e32 v{t1}, v{t1}', [t1], [t1], True),
                (f'v_add_f32_e32 v{t0}, 1.0, v{t0}', [t0], [t0], False),
                (f'v_add_f32_e32 v{t1}, 1.0, v{t1}', [t1], [t1], False),
                (f'v_rcp_f32_e32 v{t0}, v{t0}', [t0], [t0], True),
                (f'v_rcp_f32_e32 v{t1}, v{t1}', [t1], [t1], True),
                (f'v_mul_f32_e32 v{t0}, v{t0}, v{a}', [t0], [t0, a], False),
                (f'v_mul_f32_e32 v{t1}, v{t1}, v{b}', [t1], [t1, b], False),
                (f'v_cvt_pk_bf16_f32 v{h}, v{t0}, v{t1}', [h], [t0, t1], False),
            ]
            for (txt, d, s_, tr) in (seq if not cfg.nogelu else seq[-1:]):
                ops.append(lambda txt=txt, d=d, s_=s_, tr=tr: e.valu(txt, dst=d, src=s_, trans=tr))
            if pr % 2 == 1 and tile + 2 < 6:
                ops.append(lambda j=pr // 2: bias_read(tile + 2, j))
        return ops
    def store_ops(dp):
        acc = ACCP[dp & 1]
        ops = []
        for half in range(2):
            for k in range(4):
                r = acc + 8*half + 2*k
                d = PK + 4*half + k
                ops.append(lambda r=r, d=d: e.valu(f'v_cvt_pk_bf16_f32 v{d}, v{r}, v{r+1}', dst=[d], src=[r, r+1]))
            def st(half=half):
                if half == 0:
                    e.i(f's_mul_i32 s{sOFF}, s{sD2+dp}, {2*NCH*2048//128}')
                    e.i(f's_add_u32 s{sOFF}, s{sOFF}, s{sSTO}')
                else:
                    e.i(f's_mul_i32 s{sOFF}, s{sD2+dp}, {2*NCH*2048//128}')
                    e.i(f's_add_u32 s{sOFF}, s{sOFF}, s{sSTO}')
                if not cfg.nostore:
                    e.vm(f'buffer_store_dwordx4 v[{PK+4*half}:{PK+4*half+3}], v{vST}, s[{sWS}:{sWS+3}], s{sOFF} offen offset:{1024*half} {cfg.stflag}', ('st', dp, half))
            ops.append(st)
        return ops
    K = cfg.kffn if cfg.fuse else 0
    ufill, utail = ffn_unit.build(e, K, sWV, sC, sT, sWS, sX, sNONCE, vLANE) if K else ({}, [])
    flags_sent = set()
    st_waited = set()
    def send_flag(dp):
        if dp in flags_sent: return
        assert dp in st_waited, dp
        flags_sent.add(dp)
        e.i(f's_mul_i32 s{sOFF}, s{sD2+dp}, 24')
        e.i(f's_add_u32 s{sOFF}, s{sOFF}, s{sFLB}')
        e.vm(f'buffer_store_dword v{vNON}, v{vZERO}, s[{sWS}:{sWS+3}], s{sOFF} offen sc1', ('flag', dp))
    for j in range(4): bias_read(0, j)
    for j in range(4): bias_read(1, j)
    ensure_addr(0)
    e.nop(1)
    for gb in range(PD): issue_reads(gb)
    fill = []
    dma_list = []
    dp_done = {}
    for idx, (dp, kb) in enumerate(P2):
        if kb == 1: dp_done[18 + idx + 1] = dp
    flag_at = {}
    for st_s, dp_ in dp_done.items():
        fs = st_s + cfg.flaglag
        if fs > 35: fs = 35 if st_s + 2 <= 35 else None
        if fs is not None: flag_at.setdefault(fs, []).append(dp_)
    for gb, (s, b) in enumerate(beats):
        if b == 0:
            e.comment(f'---- stage {s} (slot {slot[s]}) ----')
            if s in cfg.stamps: stamp('stage')
            dma_list = [(it, i) for it in issue[s] for i in range(3)]
            if s in NOPREF:
                ensure_addr(s)
                for k in range(PD): issue_reads(gb + k)
            ensure_addr(s + 1)
            if s == 1:
                xaddr(4*SLOT)
                for t in range(12, 24): xread(t)
            if s == 2:
                xaddr(0)
                for t in range(24, 36): xread(t)
            if s < 18 and s % 3 == 0 and s >= 3:
                fill = gelu_ops(s // 3 - 1); nfill = len(fill); fill_span = (2, 34); fill_base = gb
            if s == 18:
                fill = gelu_ops(5); nfill = len(fill); fill_span = (2, 21); fill_base = gb
            if s in dp_done:
                assert not fill
                fill = store_ops(dp_done[s]); nfill = len(fill); fill_span = (3, 10); fill_base = gb
                if cfg.stspread and s >= 24 and s + 1 <= 35:
                    fill_span = (2, 21)
            if s == (15 if cfg.exspread else 16):
                e.valu(f'v_lshlrev_b32 v{vST}, 4, v{vLANE}', dst=[vST])
                if cfg.exspread:
                    e.i(f's_mul_i32 s41, s{sWV}, 3072')
                    e.i(f's_xor_b32 s43, s{sWV}, 4')
                    e.i(f's_mul_i32 s43, s43, 3072')
                    e.i(f's_add_u32 s41, s41, {ex[0]*SLOT}')
                    e.i(f's_add_u32 s43, s43, {ex[0]*SLOT}')
                else:
                    e.i(f's_mul_i32 s42, s{sMI}, 6144')
                    e.i(f's_mul_i32 s43, s{sP}, {(ex[1]-ex[0])*SLOT}')
                    e.i(f's_add_u32 s41, s43, {ex[0]*SLOT}')
                    e.i(f's_sub_u32 s43, {ex[1]*SLOT}, s43')
                    e.i(f's_add_u32 s41, s41, s42')
                    e.i(f's_add_u32 s43, s43, s42')
                e.valu(f'v_add_u32 v{vBIAS}, s41, v{vST}', dst=[vBIAS])
                e.valu(f'v_add_u32 v{vW1}, s43, v{vST}', dst=[vW1])
        if cfg.prio and cfg.priomode == 4 and b % 3 == 0:
            e.i(f's_setprio {3 - b // 3}')
        if cfg.prio and cfg.priomode == 2 and b % 6 == 0:
            e.i(f's_setprio {1 - b // 6}')
        if cfg.prio and cfg.priomode == 3 and b % 4 == 0:
            e.i(f's_setprio {2 - b // 4}')
        if cfg.looptest and b == 0 and s in (6, 9):
            if s == 6:
                e.i('s_mov_b32 s101, 0'); e.label('Lrep6')
            else:
                e.i('s_add_u32 s101, s101, 1'); e.i('s_cmp_lt_u32 s101, 2'); e.i('s_cbranch_scc1 Lrep6')
        if cfg.wmerge and b % 2 == 0 and gb + 1 in issued and beats[gb + 1][0] == s:
            e.wait_lds(('af', gb + 1, 1))
        e.wait_lds(('af', gb, 1))
        fr = frag_reg(gb)
        if s < 18:
            tile = s // 3; t = (s % 3)*12 + b
            if tile == 0: e.wait_lds(('x', t))
            acc = ACC[tile & 1]
            if t == 0:
                for j in range(4): e.wait_lds(('bias', tile, j))
            xb = XF + 4*t
            e.mfma(f'v_mfma_f32_32x32x16_bf16 v[{acc}:{acc+15}], v[{fr}:{fr+3}], v[{xb}:{xb+3}], v[{acc}:{acc+15}]',
                   list(range(acc, acc+16)), list(range(fr, fr+4)) + list(range(xb, xb+4)))
        else:
            dp, kb = P2[s-18]
            partner, u, tp = p2_beat(b)
            fp = 3*kb + u
            hb = (HPART if partner else HOWN) + 8*fp + 4*tp
            if partner and (s == 18 or s == 20):
                e.wait_lds(('exr', fp*2 + tp))
            acc = ACCP[dp & 1]
            c = '0' if (kb == 0 and b == 0) else f'v[{acc}:{acc+15}]'
            e.mfma(f'v_mfma_f32_32x32x16_bf16 v[{acc}:{acc+15}], v[{fr}:{fr+3}], v[{hb}:{hb+3}], {c}',
                   list(range(acc, acc+16)), list(range(fr, fr+4)) + list(range(hb, hb+4)))
        nb = gb + PD
        if nb < len(beats) and not (beats[nb][0] in NOPREF and beats[nb][0] != s):
            issue_reads(nb)
        if s == 1 and b == 3:
            e.wait_lds(('x', 23))
            e.i('s_barrier')
            dma_list += [(3, i) for i in range(3)] + [(4, i) for i in range(3)]
        if b == 0: ndma0 = len(dma_list); ndma_done = 0
        if s == 1 and b == 3: ndma0 = len(dma_list) ; ndma_done = 0; dma_b0 = 3
        elif b == 0: dma_b0 = 0
        if dma_list:
            if cfg.dmaspread:
                span = 10 - dma_b0
                tgt = ndma0 if b >= 10 else -(-ndma0 * (b - dma_b0) // span) if b > dma_b0 else 0
                if ndma0 <= 3:
                    pts = cfg.dmabeats
                    tgt = sum(1 for p_ in pts[:ndma0] if b >= p_)
                    if s < 3: tgt = ndma0 if b >= dma_b0 + 2 else min(ndma0, b - dma_b0 + 1)
                while ndma_done < tgt and dma_list:
                    dma_one(*dma_list.pop(0)); ndma_done += 1
            else:
                k = -(-len(dma_list) // max(1, 7 - b)) if b < 7 else len(dma_list)
                for _ in range(min(k, len(dma_list))):
                    dma_one(*dma_list.pop(0))
        if cfg.prefetch and s in (4, 5) and b == 8:
            k = s - 4
            e.i(f's_and_b32 s41, s{sT}, 7')
            e.i(f's_lshl_b32 s41, s41, 3')
            e.i(f's_add_u32 s41, s41, s{sWV}')
            e.i(f's_lshl_b32 s41, s41, 1')
            e.i(f's_add_u32 s41, s41, {k}')
            e.i(f's_lshl_b32 s41, s41, 12')
            e.i(f's_mul_i32 s42, s{sC}, {FC*1152}')
            e.i(f's_add_u32 s41, s41, s42')
            e.i(f's_min_u32 s41, s41, {F*D*2 - 4096}')
            e.valu(f'v_lshlrev_b32 v{vA3}, 6, v{vLANE}', dst=[vA3])
            e.vm(f'buffer_load_dword v{vA2}, v{vA3}, s[{sW2}:{sW2+3}], s41 offen', ('pf', k))
        if cfg.tlbwarm and s == cfg.tlbwarm and b == 8:
            e.valu(f'v_min_u32 v{vA3}, 9, v{vLANE}', dst=[vA3])
            e.valu(f'v_mul_u32_u24 v{vA3}, {2*NCH*2048}, v{vA3}', dst=[vA3])
            e.vm(f'buffer_load_dword v{vA2}, v{vA3}, s[{sWS}:{sWS+3}], s{sSTO} offen', ('tw', 0))
            e.valu(f'v_mov_b32 v{vA3}, 0', dst=[vA3])
            e.vm(f'buffer_load_dword v{vA2}, v{vA3}, s[{sWS}:{sWS+3}], s{sFLB} offen', ('tw', 1))
            e.valu(f'v_min_u32 v{vA3}, 6, v{vLANE}', dst=[vA3])
            e.valu(f'v_mul_u32_u24 v{vA3}, {64*1152}, v{vA3}', dst=[vA3])
            e.i(f's_mul_i32 s41, s{sC}, {FC*1152}')
            e.vm(f'buffer_load_dword v{vA2}, v{vA3}, s[{sW2}:{sW2+3}], s41 offen', ('tw', 2))
        if cfg.fuse and s == 17 and b == 0:
            e.i('s_mov_b32 s39, 0')
        if cfg.fuse and s == 17 and b == 1:
            e.valu(f'v_mov_b32 v{vZERO}, 0', dst=[vZERO])
            e.vm(f'buffer_load_dword v{vNON}, v{vZERO}, s[{sDB}:{sDB+3}], 0 offen offset:{DBG_NONCE} sc1', ('nonce',))
        if cfg.fuse and not cfg.nossm and s == 20 and b == 8:
            e.wait_vm(('nonce',))
            e.label('Lffn_npoll')
            e.i(f'v_readfirstlane_b32 s{sNONCE}, v{vNON}')
            e.i(f's_cmp_lg_u32 s{sNONCE}, 0')
            e.i('s_cbranch_scc1 Lffn_nok')
            e.i(f'buffer_load_dword v{vNON}, v{vZERO}, s[{sDB}:{sDB+3}], 0 offen offset:{DBG_NONCE} sc1')
            e.i('s_waitcnt vmcnt(0)')
            e.i('s_add_u32 s39, s39, 1'); e.i('s_cmp_lt_u32 s39, 0x40000'); e.i('s_cbranch_scc1 Lffn_npoll')
            e.label('Lffn_nok')
            e.valu(f'v_lshlrev_b32 v{vZERO}, 2, v{vLANE}', dst=[vZERO])
        if cfg.fuse and b == 1:
            for dp_ in flag_at.get(s, []): send_flag(dp_)
        def exoff(k):
            return ((ex[1]-ex[0])*SLOT if k >= 3 else 0) + 1024*(k % 3) if cfg.exspread else 1024*k
        def exw(k, r, tag):
            e.lds(f'ds_write_b128 v{vBIAS}, v[{r}:{r+3}] offset:{exoff(k)}', ('exw', tag))
        if not cfg.exspread:
            if s == 16 and b % 2 == 0: exw(b // 2, HOWN + 4*(b // 2), b // 2)
            if s == 19 and b in (0, 2, 4, 6): exw(b // 2, HOWN + 24 + 4*(b // 2), 6 + b // 2)
        else:
            if s == 15 and b in (2, 6, 10): k = (b - 2) // 4; exw(k, HOWN + 4*k, k)
            if s == 16 and b in (1, 5, 9): k = 3 + (b - 1) // 4; exw(k, HOWN + 4*k, k)
            if s == 18 and b in (1, 5, 9): k = (b - 1) // 4; exw(k, HOWN + 24 + 4*k, 6 + k)
            if s == 19 and b == 1: exw(3, HOWN + 24 + 12, 9)
        if s == 17 and b < 6:
            r = HPART + 4*b
            e.lds(f'ds_read_b128 v[{r}:{r+3}], v{vW1} offset:{exoff(b)}', ('exr', b))
        if s == 20 and b < 6:
            r = HPART + 24 + 4*b
            e.lds(f'ds_read_b128 v[{r}:{r+3}], v{vW1} offset:{exoff(b)}', ('exr', 6 + b))
        if s in ufill and ufill[s]:
            lst = ufill[s]
            if b == 0: ucount = len(lst)
            tgt = ucount if b >= 10 else (ucount * (b + 1)) // 11
            while ucount - len(lst) < tgt:
                lst.pop(0)()
        if fill:
            rel = gb - fill_base
            lo, hi = fill_span
            if rel >= lo:
                tgt = nfill if rel >= hi else (nfill * (rel - lo + 1)) // (hi - lo + 1)
                donec = nfill - len(fill)
                while donec < tgt:
                    fill.pop(0)(); donec += 1
        if s == 19 and b == 11:
            assert not fill
            for k in (4, 5):
                r = HOWN + 24 + 4*k
                e.lds(f'ds_write_b128 v{vBIAS}, v[{r}:{r+3}] offset:{exoff(k)}', ('exw', 6 + k))
        if s == 16 and b == 11:
            e.i(f's_lshl_b32 s42, s{sP}, 12')
            e.i(f's_xor_b32 s43, s42, 4096')
            e.valu(f'v_add_u32 v{vPAT1}, s42, v{vPAT2}', dst=[vPAT1])
            e.valu(f'v_add_u32 v{vPAT2}, s43, v{vPAT2}', dst=[vPAT2])
        if b == 11:
            assert not dma_list
            if s in cfg.prestamps: stamp('prewait')
            if s == 0:
                e.wait_vm(('xd', 5, 1))
            elif s == 1:
                e.wait_vm(('dma', 2, 2)); e.wait_vm(('xd', 8, 1))
            elif s + 2 < 36:
                e.wait_vm(('dma', s + 2, 2))
            if s in (16, 19):
                e.wait_lds(('exw', 5 if s == 16 else 11))
            if s == 17: e.wait_lds(('exr', 5))
            if s == 20: e.wait_lds(('exr', 11))
            if s == 2: e.wait_lds(('x', 35))
            if cfg.fuse:
                for dp_ in flag_at.get(s + 1, []):
                    if not cfg.nostore: e.wait_vm(('st', dp_, 1))
                    st_waited.add(dp_)
            if s in cfg.prestamps: stamp('postwait')
            if s < 35 and not (cfg.nobar and s >= 3):
                e.i('s_barrier')
    stamp('mainloop end')
    for op in store_ops(8): op()
    if cfg.fuse and K == 0:
        e.wait_vm_all()
        e.i('s_barrier')
        for dp in range(9):
            st_waited.add(dp); send_flag(dp)
        e.wait_vm_all()
    elif cfg.fuse:
        e.i(f's_cmp_lt_u32 s{ffn_unit.U.sU}, {8*K}')
        e.i('s_cbranch_scc0 Lffn_nounit')
        for op in utail: op()
        e.label('Lffn_nounit')
        stamp('pre done')
        e.i('s_waitcnt vmcnt(0) lgkmcnt(0)')
        e.vq = []; e.lq = []
        e.i('s_barrier')
        for dp in range(9):
            st_waited.add(dp); send_flag(dp)
        ffn_unit.tail(e, K, sT, sWS, sNONCE, cfg, stamp, utail)
    else:
        e.wait_vm_all()
    stamp('end')
    if cfg.prof:
        e.i('s_memrealtime s[100:101]')
        e.i('s_waitcnt lgkmcnt(0)')
        if cfg.wavestamps:
            e.i(f's_lshl_b32 s42, s2, 7'); e.i(f's_add_u32 s42, s42, {WS_PROF}'); e.i(f's_lshl_b32 s41, s{sWV}, 2'); e.i('s_add_u32 s42, s42, s41')
            e.i('v_mov_b32 v14, 0'); e.i(f'v_mov_b32 v13, s{sPROF}')
            e.i(f'buffer_store_dword v13, v14, s[{sWS}:{sWS+3}], s42 offen offset:{4*14}')
            e.i(f'v_mov_b32 v13, s{sPROF+2*cfg.wavestamps}')
            e.i(f'buffer_store_dword v13, v14, s[{sWS}:{sWS+3}], s42 offen offset:{4*22}')
            e.i('s_waitcnt vmcnt(0)')
        e.i(f's_cmp_eq_u32 s{sWV}, 0')
        e.i('s_cbranch_scc0 Lffn_noprof')
        e.i(f's_lshl_b32 s42, s2, 7')
        e.i(f's_add_u32 s42, s42, {WS_PROF}')
        e.i(f'v_mov_b32 v14, 0')
        for k in range(nprof[0]):
            e.i(f'v_mov_b32 v13, s{sPROF+2*k}')
            e.i(f'buffer_store_dword v13, v14, s[{sWS}:{sWS+3}], s42 offen offset:{4*k}')
        e.i(f'v_mov_b32 v13, s98')
        e.i(f'buffer_store_dword v13, v14, s[{sWS}:{sWS+3}], s42 offen offset:{4*30}')
        e.i(f'v_mov_b32 v13, s100')
        e.i(f'buffer_store_dword v13, v14, s[{sWS}:{sWS+3}], s42 offen offset:{4*31}')
        e.i('s_waitcnt vmcnt(0)')
        e.label('Lffn_noprof')
    e.i('s_endpgm')
```

```python
from common import *
from fin import *

WREG = 12928
OFF_O = 4160
OFF_X = 8320
R8 = 8*WREG
FB = 9*WREG

def gen_ssm(e, cfg):
    sQ = 8; sK = 12; sV = 16; sWS = 20; sSK = 24; sH = 40; sGW = 44; sDB = 48; sSD = 52; sB2 = 56; sOUT = 60
    sWV = 28; sJ = 29; sTILE = 30; sCH = 31; sBASE = 32
    sNONCE = 64; sN = 65; sPF = 4
    sPROF = 66
    nprof = [0]
    def stamp(name):
        if cfg.prof and nprof[0] < 16:
            k = nprof[0]; nprof[0] += 1
            e.i(f's_memtime s[{sPROF+2*k}:{sPROF+2*k+1}]')
    def lanes_lt(n, body):
        e.i(f'v_cmp_gt_u32 vcc, {n}, v1')
        e.i('s_and_saveexec_b64 s[38:39], vcc')
        body()
        e.i('s_mov_b64 exec, s[38:39]')
    def signal(off, lbl):
        e.i(f's_cmp_eq_u32 s{sWV}, 0')
        e.i(f's_cbranch_scc0 {lbl}')
        e.i('v_mov_b32 v2, 0')
        e.i('v_mov_b32 v3, 1')
        lanes_lt(1, lambda: e.i(f'buffer_atomic_add v3, v2, s[{sDB}:{sDB+3}], 0 offen offset:{off} sc1'))
        e.label(lbl)
    def wait_count(off, lbl):
        e.i(f's_cmp_eq_u32 s{sWV}, 0')
        e.i(f's_cbranch_scc0 {lbl}_bar')
        e.i('v_mov_b32 v12, 0')
        e.label(f'{lbl}_poll')
        e.i(f'buffer_load_dword v14, v12, s[{sDB}:{sDB+3}], 0 offen offset:{off} sc1')
        e.i('s_waitcnt vmcnt(0)')
        e.i('v_readfirstlane_b32 s37, v14')
        e.i('s_cmp_ge_u32 s37, 64')
        e.i(f's_cbranch_scc1 {lbl}_bar')
        e.i(f's_sleep {cfg.csleep}')
        e.i('s_add_u32 s7, s7, 1'); e.i('s_cmp_lt_u32 s7, 0x40000'); e.i(f's_cbranch_scc1 {lbl}_poll')
        e.label(f'{lbl}_bar')
        e.i('s_barrier')
    if cfg.nossm: e.i('s_endpgm')
    if cfg.prof: e.i('s_memrealtime s[98:99]')
    stamp('start')
    e.i(f's_sub_u32 s{sJ}, s2, 192')
    e.i('s_mov_b32 s7, 0')
    srds = ((sH, 'ssm_k', D*S*2), (sK, 'k', S*D*2), (sV, 'v', S*D*2), (sSK, 'shift_k', D*8), (sQ, 'q', S*D*2), (sWS, 'ws', WS_TOTAL),
            (sGW, 'gate_w', D*2), (sDB, 'dbg', 256), (sSD, 'ssm_D', D*2), (sB2, 'b2', D*2), (sOUT, 'out', S*D*2))
    for s_, nm, nb in srds:
        e.i(f's_load_dwordx2 s[{s_}:{s_+1}], s[0:1], {KA[nm]}')
    e.i(f's_memrealtime s[34:35]')
    e.i(f'v_and_b32 v1, 63, v0')
    e.i('v_lshrrev_b32 v2, 6, v0')
    e.i('s_nop 0')
    e.i(f'v_readfirstlane_b32 s{sWV}, v2')
    for s_, nm, nb in srds:
        e.i(f's_mov_b32 s{s_+2}, {nb}')
        e.i(f's_mov_b32 s{s_+3}, 0x00020000')
    e.i(f's_mul_i32 s{sCH}, s{sJ}, 9')
    e.i(f's_add_u32 s33, s{sCH}, 8')
    e.i(f's_add_u32 s{sCH}, s{sCH}, s{sWV}')
    e.i('s_waitcnt lgkmcnt(0)')
    for s_, nm, nb in srds:
        e.i(f's_and_b32 s{s_+1}, s{s_+1}, 0xffff')
    e.i(f's_or_b32 s34, s34, 1')
    e.i(f's_add_u32 s36, s{sJ}, s{sWV}')
    e.i(f's_cmp_eq_u32 s36, 0')
    e.i('s_cbranch_scc0 Lssm_nononce')
    e.i('v_mov_b32 v2, s34')
    e.i('v_mov_b32 v3, 0')
    e.i(f'buffer_store_dword v2, v3, s[{sDB}:{sDB+3}], 0 offen offset:{DBG_NONCE} sc1')
    e.label('Lssm_nononce')
    HR = 184; H9 = 220; vD = 216; vD9 = 217
    def hloads():
        e.i(f's_mul_i32 s33, s{sJ}, 9')
        e.i(f's_add_u32 s33, s33, 8')
        e.i(f's_lshl_b32 s35, s{sCH}, 12')
        e.i(f'v_lshlrev_b32 v12, 4, v1')
        for i in range(4):
            e.i(f'buffer_load_dwordx4 v[{HR+8*i}:{HR+8*i+3}], v12, s[{sH}:{sH+3}], s35 offen offset:{1024*i}')
            e.i(f'buffer_load_dword v{HR+8*i+4}, v12, s[{sH}:{sH+3}], s35 offen offset:{1024*i+16}')
        e.i(f's_lshl_b32 s35, s33, 12')
        e.i(f's_lshl_b32 s36, s{sWV}, 9')
        e.i(f's_add_u32 s35, s35, s36')
        e.i(f'buffer_load_dwordx4 v[{H9}:{H9+3}], v12, s[{sH}:{sH+3}], s35 offen')
        e.i(f'buffer_load_dword v{H9+4}, v12, s[{sH}:{sH+3}], s35 offen offset:16')
        e.i(f'v_mov_b32 v13, 0')
        e.i(f's_lshl_b32 s37, s{sCH}, 1')
        e.i(f's_and_b32 s37, s37, 0xfffffffc')
        e.i(f'buffer_load_dword v{vD}, v13, s[{sSD}:{sSD+3}], s37 offen')
        e.i(f's_lshl_b32 s37, s33, 1')
        e.i(f's_and_b32 s37, s37, 0xfffffffc')
        e.i(f'buffer_load_dword v{vD9}, v13, s[{sSD}:{sSD+3}], s37 offen')
    if not cfg.hlast: hloads()
    def hbuild():
        e.i(f's_mul_i32 s{sBASE}, s{sWV}, {WREG}')
        e.i(f'v_mov_b32 v52, 0'); e.i('v_mov_b32 v53, 0'); e.i('v_mov_b32 v54, 0'); e.i('v_mov_b32 v55, 0')
        e.i(f'v_lshl_add_u32 v13, v1, 4, s{sBASE}')
        e.i(f'v_lshlrev_b32 v15, 4, v1')
        lanes_lt(32, lambda: e.i(f'ds_write_b128 v13, v[52:55] offset:{OFF_X + 4096}'))
        def pads():
            e.i(f'ds_write_b128 v13, v[52:55]')
            e.i(f'ds_write_b128 v13, v[52:55] offset:{OFF_O}')
        lanes_lt(2, pads)
        e.i(f's_cmp_eq_u32 s{sWV}, 0')
        e.i('s_cbranch_scc0 Lssm_nopad9')
        e.i(f'v_add_u32 v14, {R8}, v15')
        lanes_lt(32, lambda: e.i(f'ds_write_b128 v14, v[52:55] offset:{OFF_X + 4096}'))
        def pads9():
            e.i(f'ds_write_b128 v14, v[52:55]')
            e.i(f'ds_write_b128 v14, v[52:55] offset:{OFF_O}')
        lanes_lt(2, pads9)
        e.label('Lssm_nopad9')
        e.i('s_waitcnt lgkmcnt(0)')
        for i in range(4):
            h = HR + 8*i
            e.i(f'ds_write_b128 v13, v[{h}:{h+3}] offset:{32 + 1024*i}')
            for k in range(4):
                e.i(f'v_alignbit_b32 v{56+k}, v{h+k+1}, v{h+k}, 16')
            e.i(f'ds_write_b128 v13, v[56:59] offset:{OFF_O + 32 + 1024*i}')
            e.i('s_nop 0')
        e.i(f'v_lshlrev_b32 v56, 16, v{HR}')
        lanes_lt(1, lambda: e.i(f'ds_write_b32 v13, v56 offset:{OFF_O + 28}'))
        e.i(f's_lshl_b32 s36, s{sWV}, 9')
        e.i(f's_add_u32 s36, s36, {R8}')
        e.i(f'v_add_u32 v14, s36, v15')
        for k in range(4):
            e.i(f'v_alignbit_b32 v{56+k}, v{H9+k+1}, v{H9+k}, 16')
        def w9():
            e.i(f'ds_write_b128 v14, v[{H9}:{H9+3}] offset:32')
            e.i(f'ds_write_b128 v14, v[56:59] offset:{OFF_O + 32}')
        lanes_lt(32, w9)
        e.i(f's_cmp_eq_u32 s{sWV}, 0')
        e.i('s_cbranch_scc0 Lssm_nosp9')
        e.i(f'v_lshlrev_b32 v56, 16, v{H9}')
        lanes_lt(1, lambda: e.i(f'ds_write_b32 v14, v56 offset:{OFF_O + 28}'))
        e.label('Lssm_nosp9')
        sDV = 33; sDV9 = 34
        e.i(f'v_readfirstlane_b32 s{sDV}, v{vD}')
        e.i(f'v_readfirstlane_b32 s{sDV9}, v{vD9}')
        e.i(f's_bitcmp1_b32 s{sCH}, 0')
        e.i(f's_cselect_b32 s37, 0, 16')
        e.i(f's_lshl_b32 s{sDV}, s{sDV}, s37')
        e.i(f's_and_b32 s{sDV}, s{sDV}, 0xffff0000')
        e.i(f's_bitcmp1_b32 s{sJ}, 0')
        e.i(f's_cselect_b32 s37, 0, 16')
        e.i(f's_lshl_b32 s{sDV9}, s{sDV9}, s37')
        e.i(f's_and_b32 s{sDV9}, s{sDV9}, 0xffff0000')
    sDV = 33; sDV9 = 34
    if cfg.hfirst:
        e.i('s_waitcnt vmcnt(0)')
        hbuild()
    e.i(f's_lshl_b32 s{sTILE}, s{sJ}, 2')
    e.i(f's_add_u32 s{sTILE}, s{sTILE}, s{sWV}')
    e.i(f's_cmp_lt_u32 s{sWV}, 4')
    e.i('s_cbranch_scc1 Lssm_prep')
    e.i(f's_add_u32 s{sTILE}, s{sJ}, 256')
    e.i(f's_cmp_eq_u32 s{sWV}, 4')
    e.i('s_cbranch_scc0 Lssm_noprep')
    e.i(f's_cmp_lt_u32 s{sJ}, 32')
    e.i('s_cbranch_scc1 Lssm_prep')
    e.label('Lssm_noprep')
    if cfg.pf1:
        e.i(f's_cmp_lt_u32 s{sWV}, 5')
        e.i('s_cbranch_scc1 Lssm_nopf1')
        e.i(f's_load_dwordx2 s[12:13], s[0:1], {KA["w1"]}')
        e.i(f's_mov_b32 s14, {F*D*2}'); e.i('s_mov_b32 s15, 0x00020000')
        e.i(f's_lshr_b32 s36, s{sJ}, 3'); e.i('s_mul_i32 s36, s36, 3'); e.i(f's_add_u32 s36, s36, s{sWV}'); e.i('s_sub_u32 s36, s36, 5')
        e.i(f's_and_b32 s37, s{sJ}, 1'); e.i('s_lshl_b32 s37, s37, 10')
        e.i('s_mul_i32 s35, s36, 43'); e.i('s_add_u32 s37, s37, s35')
        e.i('s_mul_i32 s37, s37, 1152'); e.i('s_add_u32 s37, s37, 768')
        e.i('v_mul_u32_u24 v12, 21846, v1'); e.i('v_lshrrev_b32 v12, 16, v12')
        e.i('v_mul_u32_u24 v13, 3, v12'); e.i('v_sub_u32 v13, v1, v13')
        e.i('v_mul_u32_u24 v12, 1152, v12'); e.i('v_lshl_add_u32 v12, v13, 7, v12')
        for i in range(2):
            e.i(f'buffer_load_dword v{200+i}, v12, s[{sQ}:{sQ+3}], s37 offen')
            e.i(f's_add_u32 s37, s37, {21*1152}')
        e.i('v_mul_u32_u24 v12, 7282, v1'); e.i('v_lshrrev_b32 v12, 16, v12')
        e.i('v_mul_u32_u24 v13, 9, v12'); e.i('v_sub_u32 v13, v1, v13')
        e.i('v_mul_u32_u24 v12, 9216, v12'); e.i('v_lshl_add_u32 v12, v13, 8, v12')
        e.i(f's_and_b32 s37, s{sJ}, 7'); e.i('s_lshr_b32 s37, s37, 1'); e.i('s_mul_i32 s37, s37, 2304')
        e.i('s_waitcnt lgkmcnt(0)')
        e.i('s_and_b32 s13, s13, 0xffff')
        e.i(f's_mul_i32 s35, s36, {8*9216}'); e.i('s_add_u32 s35, s35, s37'); e.i(f's_add_u32 s35, s35, {384*9216}')
        e.i(f'buffer_load_dword v202, v12, s[12:15], s35 offen')
        e.i(f's_add_u32 s35, s35, {1*9216}')
        e.i(f'buffer_load_dword v203, v12, s[12:15], s35 offen')
        if cfg.pf1 >= 2:
            e.i(f's_mul_i32 s35, s36, {16*9216}'); e.i('s_add_u32 s35, s35, s37'); e.i('s_add_u32 s35, s35, 128')
            for i in range(3):
                e.i(f'buffer_load_dword v{204+i}, v12, s[12:15], s35 offen')
                e.i(f's_add_u32 s35, s35, {(7 if i < 1 else 2)*9216}')
        e.label('Lssm_nopf1')
    e.i(f's_mov_b32 s{sPF}, -1')
    e.i('s_waitcnt vmcnt(0)')
    e.i('s_branch Lssm_hb')
    e.label('Lssm_prep')
    e.i(f's_mul_hi_u32 s36, s{sTILE}, {(1 << 32)//9 + 1}')
    e.i(f's_mul_i32 s37, s36, 9')
    e.i(f's_sub_u32 s37, s{sTILE}, s37')
    e.i(f's_lshl_b32 s{sPF}, s37, 5')
    e.i(f's_add_u32 s{sPF}, s{sPF}, s36')
    e.i(f's_lshl_b32 s{sPF}, s{sPF}, 8')
    e.i(f's_add_u32 s{sPF}, s{sPF}, {WS_FLAG2}')
    e.i(f's_lshl_b32 s36, s36, 6')
    e.i(f's_lshl_b32 s37, s37, 6')
    e.i(f'v_and_b32 v2, 7, v1')
    e.i(f'v_lshrrev_b32 v3, 3, v1')
    e.i(f'v_lshl_add_u32 v4, v3, 3, s36')
    e.i(f'v_lshl_add_u32 v5, v2, 3, s37')
    e.i(f'v_mul_u32_u24 v6, 1152, v4')
    e.i(f'v_lshl_add_u32 v6, v5, 1, v6')
    e.i(f'v_subrev_u32 v7, 3456, v6')
    e.i(f'v_cmp_eq_u32 vcc, 0, v4')
    e.i(f'v_mov_b32 v8, 0x80000000')
    e.i('s_nop 0')
    e.i(f'v_cndmask_b32 v7, v7, v8, vcc')
    e.i(f'v_lshlrev_b32 v8, 3, v5')
    KR = 16; VR = 60; WR = 92
    e.i('s_mov_b32 s35, 4608')
    for i in range(3):
        e.i(f'buffer_load_dwordx4 v[{KR+4*i}:{KR+4*i+3}], v7, s[{sK}:{sK+3}], 0 offen offset:{1152*i}')
    for i in range(8):
        so = '0' if i < 4 else 's35'
        e.i(f'buffer_load_dwordx4 v[{KR+12+4*i}:{KR+12+4*i+3}], v6, s[{sK}:{sK+3}], {so} offen offset:{1152*(i%4)}')
    for i in range(4):
        e.i(f'buffer_load_dwordx4 v[{WR+4*i}:{WR+4*i+3}], v8, s[{sSK}:{sSK+3}], 0 offen offset:{16*i}')
    for i in range(8):
        so = '0' if i < 4 else 's35'
        e.i(f'buffer_load_dwordx4 v[{VR+4*i}:{VR+4*i+3}], v6, s[{sV}:{sV+3}], {so} offen offset:{1152*(i%4)}')
    e.i(f'v_lshlrev_b32 v9, 12, v5')
    e.i(f'v_lshlrev_b32 v10, 1, v4')
    e.i(f'v_sub_u32 v9, v9, v10')
    e.i(f'v_add_u32 v9, {4080}, v9')
    e.i(f's_mov_b32 s35, {WS_XR}')
    KU = 108; VU = 130; WU = 146; AC = 154; PKD = 170
    e.i('s_waitcnt vmcnt(0)')
    for q in range(4):
        for r in range(11):
            e.i(f'v_lshlrev_b32 v{KU+2*r}, 16, v{KR+4*r+q}')
            e.i(f'v_and_b32 v{KU+2*r+1}, 0xffff0000, v{KR+4*r+q}')
        for c in range(2):
            w = WR + 2*(2*q + c)
            e.i(f'v_lshlrev_b32 v{WU+4*c}, 16, v{w}')
            e.i(f'v_and_b32 v{WU+4*c+1}, 0xffff0000, v{w}')
            e.i(f'v_lshlrev_b32 v{WU+4*c+2}, 16, v{w+1}')
            e.i(f'v_and_b32 v{WU+4*c+3}, 0xffff0000, v{w+1}')
        for r in range(8):
            e.i(f'v_lshlrev_b32 v{VU+2*r}, 16, v{VR+4*r+q}')
            e.i(f'v_and_b32 v{VU+2*r+1}, 0xffff0000, v{VR+4*r+q}')
        for r in range(8):
            for c in range(2):
                e.i(f'v_mul_f32 v{AC+2*r+c}, v{KU+2*(r+0)+c}, v{WU+4*c+3}')
        for j in (2, 1, 0):
            for r in range(8):
                for c in range(2):
                    e.i(f'v_fmac_f32 v{AC+2*r+c}, v{KU+2*(r+3-j)+c}, v{WU+4*c+j}')
        for r in range(8):
            for c in range(2):
                e.i(f'v_mul_f32 v{AC+2*r+c}, v{AC+2*r+c}, v{VU+2*r+c}')
        for c in range(2):
            for k in range(4):
                e.i(f'v_cvt_pk_bf16_f32 v{PKD+4*c+k}, v{AC+2*(7-2*k)+c}, v{AC+2*(6-2*k)+c}')
        for c in range(2):
            e.i(f'buffer_store_dwordx4 v[{PKD+4*c}:{PKD+4*c+3}], v9, s[{sWS}:{sWS+3}], s35 offen sc1')
            e.i(f'v_add_u32 v9, 4096, v9')
        e.i('s_nop 1')
    e.label('Lssm_hb')
    stamp('prep issued')
    if not cfg.hfirst and not cfg.hlast: hbuild()
    stamp('h built')
    e.i('v_mov_b32 v12, 0')
    e.label('Lssm_npoll')
    e.i(f'buffer_load_dword v14, v12, s[{sDB}:{sDB+3}], 0 offen offset:{DBG_NONCE} sc1')
    e.i('s_waitcnt vmcnt(0) lgkmcnt(0)')
    e.i(f'v_readfirstlane_b32 s{sNONCE}, v14')
    e.i(f's_cmp_lg_u32 s{sNONCE}, 0')
    e.i('s_cbranch_scc1 Lssm_nok')
    e.i('s_add_u32 s7, s7, 1'); e.i('s_cmp_lt_u32 s7, 0x40000'); e.i('s_cbranch_scc1 Lssm_npoll')
    e.label('Lssm_nok')
    e.i(f'v_mov_b32 v232, s{sNONCE}')
    e.i(f's_cmp_lt_u32 s{sPF}, 0x7fffffff')
    e.i('s_cbranch_scc0 Lssm_notileflag')
    e.i('v_lshlrev_b32 v12, 2, v1')
    e.i(f'buffer_store_dword v232, v12, s[{sWS}:{sWS+3}], s{sPF} offen sc1')
    e.label('Lssm_notileflag')
    stamp('prep done')
    if cfg.hlast:
        hloads()
        e.i('s_waitcnt vmcnt(0)')
        hbuild()
        e.i('s_waitcnt lgkmcnt(0)')
    e.i(f's_cmp_lt_u32 s{sWV}, 4')
    e.i('s_cbranch_scc1 Lssm_gate_done')
    e.i(f's_lshl_b32 s36, s{sJ}, 5')
    e.i(f's_sub_u32 s37, s{sWV}, 4')
    e.i(f's_lshl_b32 s37, s37, 3')
    e.i(f's_add_u32 s36, s36, s37')
    e.i(f'v_and_b32 v2, 7, v1')
    e.i(f'v_lshrrev_b32 v3, 3, v1')
    e.i(f'v_add_u32 v4, s36, v3')
    e.i(f'v_mul_u32_u24 v6, 1152, v4')
    e.i(f'v_lshl_add_u32 v6, v2, 4, v6')
    e.i(f'v_lshlrev_b32 v7, 4, v2')
    QR = 16; GR = 60
    for i in range(9):
        e.i(f'buffer_load_dwordx4 v[{QR+4*i}:{QR+4*i+3}], v6, s[{sQ}:{sQ+3}], 0 offen offset:{128*i}')
    for i in range(9):
        e.i(f'buffer_load_dwordx4 v[{GR+4*i}:{GR+4*i+3}], v7, s[{sGW}:{sGW+3}], 0 offen offset:{128*i}')
    e.i('v_mov_b32 v8, 0')
    e.i('v_mov_b32 v9, 0')
    e.i('s_waitcnt vmcnt(0)')
    for i in range(36):
        e.i(f'v_lshlrev_b32 v10, 16, v{QR+i}')
        e.i(f'v_lshlrev_b32 v11, 16, v{GR+i}')
        e.i(f'v_and_b32 v12, 0xffff0000, v{QR+i}')
        e.i(f'v_and_b32 v14, 0xffff0000, v{GR+i}')
        e.i(f'v_fmac_f32 v8, v10, v11')
        e.i(f'v_fmac_f32 v9, v12, v14')
    e.i('v_add_f32 v8, v8, v9')
    for off in (0x041F, 0x081F, 0x101F):
        e.i(f'ds_swizzle_b32 v9, v8 offset:{hex(off)}')
        e.i('s_waitcnt lgkmcnt(0)')
        e.i('v_add_f32 v8, v8, v9')
    e.i(f'v_mul_f32 v8, {hex(f2u(-1.4426950408889634))}, v8')
    e.i('v_exp_f32 v8, v8')
    e.i('s_nop 0')
    e.i('v_add_f32 v8, 1.0, v8')
    e.i('v_rcp_f32 v8, v8')
    e.i('v_lshlrev_b32 v10, 2, v4')
    e.i(f's_mov_b32 s35, {WS_G}')
    e.i('v_cmp_eq_u32 vcc, 0, v2')
    e.i('s_and_saveexec_b64 s[38:39], vcc')
    e.i(f'buffer_store_dword v8, v10, s[{sWS}:{sWS+3}], s35 offen sc1')
    e.i('s_mov_b64 exec, s[38:39]')
    e.label('Lssm_gate_done')
    if cfg.w2pf:
        e.i(f's_cmp_lt_u32 s{sWV}, 5')
        e.i('s_cbranch_scc1 Lssm_nopf')
        e.i(f's_load_dwordx2 s[12:13], s[0:1], {KA["w2"]}')
        e.i(f's_mov_b32 s14, {F*D*2}'); e.i('s_mov_b32 s15, 0x00020000')
        e.i(f's_and_b32 s36, s{sJ}, 7'); e.i('s_lshr_b32 s36, s36, 1')
        e.i(f's_mul_i32 s36, s36, {1152*1152}')
        e.i(f's_lshr_b32 s37, s{sJ}, 3'); e.i(f's_mul_i32 s37, s37, {1296*128}')
        e.i('s_add_u32 s36, s36, s37')
        e.i(f's_sub_u32 s37, s{sWV}, 5'); e.i(f's_mul_i32 s37, s37, {448*128}')
        e.i('s_add_u32 s36, s36, s37')
        e.i('v_lshlrev_b32 v12, 7, v1')
        e.i('s_waitcnt lgkmcnt(0)')
        e.i('s_and_b32 s13, s13, 0xffff')
        for i in range(7):
            e.i(f'buffer_load_dword v{200+i}, v12, s[12:15], s36 offen')
            e.i(f's_add_u32 s36, s36, {64*128}')
        e.label('Lssm_nopf')
    e.i(f's_cmp_eq_u32 s{sWV}, 0')
    e.i('s_cbranch_scc0 Lssm_w1_bar')
    e.i(f's_mul_i32 s36, s{sJ}, 9')
    e.i(f's_lshr_b32 s37, s36, 6')
    e.i(f's_add_u32 s36, s36, 8')
    e.i(f's_lshr_b32 s36, s36, 6')
    e.i('v_and_b32 v12, 31, v1')
    e.i('v_lshlrev_b32 v12, 8, v12')
    e.i(f's_lshl_b32 s37, s37, 13')
    e.i(f's_lshl_b32 s36, s36, 13')
    e.i('v_mov_b32 v14, s37')
    e.i('v_mov_b32 v16, s36')
    e.i('v_cmp_gt_u32 vcc, 32, v1')
    e.i('s_nop 1')
    e.i('v_cndmask_b32 v14, v16, v14, vcc')
    e.i('v_add_u32 v12, v12, v14')
    e.i(f's_mov_b32 s36, {WS_FLAG2}')
    e.label('Lssm_w1_poll')
    e.i(f'buffer_load_dword v14, v12, s[{sWS}:{sWS+3}], s36 offen sc1')
    e.i('s_waitcnt vmcnt(0)')
    e.i(f'v_cmp_eq_u32 vcc, s{sNONCE}, v14')
    e.i('s_nop 1')
    e.i('s_cmp_eq_u64 vcc, -1')
    e.i('s_cbranch_scc1 Lssm_w1_bar')
    e.i(f's_sleep {cfg.csleep}')
    e.i('s_add_u32 s7, s7, 1'); e.i('s_cmp_lt_u32 s7, 0x40000'); e.i(f's_cbranch_scc1 Lssm_w1_poll')
    e.label('Lssm_w1_bar')
    e.i('s_barrier')
    stamp('sync done')
    XL = 16
    e.i(f's_lshl_b32 s35, s{sCH}, 12')
    e.i(f's_add_u32 s35, s35, {WS_XR}')
    e.i(f'v_lshlrev_b32 v12, 4, v1')
    for i in range(4):
        e.i(f'buffer_load_dwordx4 v[{XL+4*i}:{XL+4*i+3}], v12, s[{sWS}:{sWS+3}], s35 offen offset:{1024*i} sc1')
    e.i(f's_mul_i32 s36, s{sJ}, 9')
    e.i(f's_add_u32 s36, s36, 8')
    e.i(f's_lshl_b32 s36, s36, 12')
    e.i(f's_lshl_b32 s37, s{sWV}, 9')
    e.i(f's_add_u32 s36, s36, s37')
    e.i(f's_add_u32 s36, s36, {WS_XR}')
    e.i(f'buffer_load_dwordx4 v[{XL+16}:{XL+19}], v12, s[{sWS}:{sWS+3}], s36 offen sc1')
    vN = 2; vG = 3; vAa = [4, 5, 6, 7]; vBa = 8; vXa = 9; vYo = 10
    e.i(f'v_and_b32 v{vN}, 15, v1')
    e.i(f'v_lshrrev_b32 v{vG}, 4, v1')
    e.i(f'v_add_u32 v12, 1, v{vN}')
    e.i(f'v_lshrrev_b32 v12, 1, v12')
    e.i(f'v_lshlrev_b32 v12, 2, v12')
    e.i(f'v_lshl_add_u32 v12, v{vG}, 4, v12')
    e.i(f'v_and_b32 v14, 1, v{vN}')
    e.i(f'v_xor_b32 v14, 1, v14')
    e.i(f'v_mul_u32_u24 v14, {OFF_O}, v14')
    e.i(f'v_add_u32 v11, v12, v14')
    for k in range(4):
        e.i(f'v_add_u32 v{vAa[k]}, {1024*k}, v11')
        e.i(f'v_add_u32 v{vAa[k]}, s{sBASE}, v{vAa[k]}')
    e.i(f'v_lshlrev_b32 v12, 5, v{vN}')
    e.i(f'v_lshlrev_b32 v14, 4, v{vG}')
    e.i(f'v_sub_u32 v60, v14, v12')
    e.i(f's_add_u32 s37, s{sBASE}, {OFF_X + 480}')
    e.i(f'v_add_u32 v{vBa}, s37, v60')
    e.i(f'v_lshlrev_b32 v14, 3, v{vG}')
    e.i(f'v_add_u32 v{vYo}, v14, v12')
    e.i(f's_add_u32 s37, s{sBASE}, {OFF_X + 504}')
    e.i(f'v_sub_u32 v{vXa}, s37, v{vYo}')
    e.i('s_waitcnt vmcnt(0)')
    for i in range(4):
        e.i(f'ds_write_b128 v13, v[{XL+4*i}:{XL+4*i+3}] offset:{OFF_X + 1024*i}')
    e.i(f's_lshl_b32 s36, s{sWV}, 9')
    e.i(f's_add_u32 s36, s36, {R8 + OFF_X}')
    e.i(f'v_add_u32 v14, s36, v15')
    lanes_lt(32, lambda: e.i(f'ds_write_b128 v14, v[{XL+16}:{XL+19}]'))
    e.i('s_waitcnt lgkmcnt(0)')
    e.i('s_barrier')
    stamp('x loaded')
    ACC = 16; AB = [48+16, 96]; BB = [128, 160]
    AB = [64, 96]
    def read_list(rho, st, aregs, breg):
        out = []
        for k in range(8):
            a = aregs[k >> 1]; o = 16*rho + 128*(k & 1)
            r = AB[st] + 4*k; rb = BB[st] + 4*k
            kap = 8*k - rho
            out.append((f'ds_read_b128 v[{rb}:{rb+3}], v{breg} offset:{3584 - 64*kap}', ('b', rho, st, k)))
            out.append((f'ds_read2_b32 v[{r}:{r+1}], v{a} offset0:{o} offset1:{o+1}', ('a', rho, st, k, 0)))
            out.append((f'ds_read2_b32 v[{r+2}:{r+3}], v{a} offset0:{o+2} offset1:{o+3}', ('a', rho, st, k, 1)))
        return out
    def mfmas(rho, st, nxt, first, ACC=16):
        cnt = 0
        for ee in range(8):
            for u in range(8 - ee):
                tau = ee + u
                e.wait_lds(('a', rho, st, ee, 1)); e.wait_lds(('b', rho, st, u))
                a = AB[st] + 4*ee; b = BB[st] + 4*u; acc = ACC + 4*tau
                c = '0' if (first and ee == 0) else f'v[{acc}:{acc+3}]'
                e.mfma(f'v_mfma_f32_16x16x32_bf16 v[{acc}:{acc+3}], v[{a}:{a+3}], v[{b}:{b+3}], {c}',
                       list(range(acc, acc+4)), [])
                cnt += 1
                if nxt and cnt >= 6:
                    t, tag = nxt.pop(0); e.lds(t, tag)
        assert not nxt
    a9 = [48, 49, 50, 51]; b9 = 52
    e.i(f's_lshl_b32 s36, s{sWV}, 6')
    e.i(f's_add_u32 s37, s36, {R8}')
    for k in range(4):
        e.i(f'v_add_u32 v{a9[k]}, {1024*k}, v11')
        e.i(f'v_add_u32 v{a9[k]}, s37, v{a9[k]}')
    e.i(f's_add_u32 s37, s37, {OFF_X + 480}')
    e.i(f'v_add_u32 v{b9}, s37, v60')
    e.lq = []
    for (t, tag) in read_list(0, 0, vAa, vBa): e.lds(t, tag)
    for rho in range(8):
        st = rho & 1
        if cfg.prio and rho % 2 == 0: e.i(f's_setprio {3 - rho // 2}')
        if rho < 7: nxt = read_list(rho + 1, st ^ 1, vAa, vBa)
        else: nxt = [(t, ('n',) + tag) for (t, tag) in read_list(0, 0, a9, b9)]
        mfmas(rho, st, nxt, rho == 0)
    ACC9 = 196
    for ee in range(8):
        for u in range(8 - ee):
            tau = ee + u
            e.wait_lds(('n', 'a', 0, 0, ee, 1)); e.wait_lds(('n', 'b', 0, 0, u))
            a = AB[0] + 4*ee; b = BB[0] + 4*u; acc = ACC9 + 4*tau
            c = '0' if ee == 0 else f'v[{acc}:{acc+3}]'
            e.mfma(f'v_mfma_f32_16x16x32_bf16 v[{acc}:{acc+3}], v[{a}:{a+3}], v[{b}:{b+3}], {c}', list(range(acc, acc+4)), [])
    for tau in range(8):
        e.lds(f'ds_read_b64 v[{96+2*tau}:{97+2*tau}], v{vXa} offset:{3584 - 512*tau}', ('xv', tau))
    e.i(f's_lshl_b32 s35, s{sCH}, 12')
    e.i(f's_add_u32 s35, s35, {WS_Y2}')
    def yout(x0, accs, sD, pk):
        e.valu(f'v_and_b32 v120, 0xffff0000, v{x0+1}', dst=[120])
        e.valu(f'v_lshlrev_b32 v121, 16, v{x0+1}', dst=[121])
        e.valu(f'v_and_b32 v122, 0xffff0000, v{x0}', dst=[122])
        e.valu(f'v_lshlrev_b32 v123, 16, v{x0}', dst=[123])
        for r in range(4):
            e.valu(f'v_fma_f32 v{120+r}, v{120+r}, s{sD}, v{accs[r]}', dst=[120+r], src=[accs[r]])
        e.valu(f'v_cvt_pk_bf16_f32 v{pk}, v120, v121', dst=[pk])
        e.valu(f'v_cvt_pk_bf16_f32 v{pk+1}, v122, v123', dst=[pk+1])
    for tau in range(8):
        e.wait_lds(('xv', tau))
        pk = 124 + 2*(tau & 1)
        yout(96 + 2*tau, [ACC+4*tau+r for r in range(4)], sDV, pk)
        e.i(f'buffer_store_dwordx2 v[{pk}:{pk+1}], v{vYo}, s[{sWS}:{sWS+3}], s35 offen offset:{512*tau} sc1')
    e.wait_lds_all()
    e.nop(8)
    for tau in range(8):
        e.lds(f'ds_write_b128 v13, v[{ACC9+4*tau}:{ACC9+4*tau+3}] offset:{1024*tau}', ('p9', tau))
    stamp('chan done')
    e.wait_lds_all()
    e.i('s_barrier')
    e.i(f's_lshl_b32 s36, s{sWV}, 10')
    e.i(f'v_add_u32 v54, s36, v15')
    e.i(f'v_add_u32 v55, {4*WREG}, v54')
    for k in range(8):
        a = 54 if k < 4 else 55
        e.lds(f'ds_read_b128 v[{64+4*k}:{67+4*k}], v{a} offset:{(k%4)*WREG}', ('f9', k))
    e.i(f's_lshl_b32 s36, s{sWV}, 9')
    e.i(f's_sub_u32 s36, {R8 + OFF_X + 4088}, s36')
    e.i(f'v_sub_u32 v54, s36, v{vYo}')
    e.lds(f'ds_read_b64 v[20:21], v54', ('x9',))
    e.i(f's_mul_i32 s35, s{sJ}, 9')
    e.i(f's_add_u32 s35, s35, 8')
    e.i(f's_lshl_b32 s35, s35, 12')
    e.i(f's_lshl_b32 s36, s{sWV}, 9')
    e.i(f's_add_u32 s35, s35, s36')
    e.i(f's_add_u32 s35, s35, {WS_Y2}')
    e.wait_lds_all()
    for k in range(1, 8):
        for r in range(4):
            e.i(f'v_add_f32 v{64+r}, v{64+r}, v{64+4*k+r}')
    yout(20, [64, 65, 66, 67], sDV9, 124)
    e.i(f'buffer_store_dwordx2 v[124:125], v{vYo}, s[{sWS}:{sWS+3}], s35 offen sc1')
    e.i('s_waitcnt vmcnt(0)')
    e.i('s_barrier')
    e.i(f's_cmp_eq_u32 s{sWV}, 0')
    e.i('s_cbranch_scc0 Lssm_nocf')
    e.i('v_lshlrev_b32 v12, 2, v1')
    e.i(f's_lshl_b32 s36, s{sJ}, 8')
    e.i(f's_add_u32 s36, s36, {WS_FLAG3}')
    e.i(f'buffer_store_dword v232, v12, s[{sWS}:{sWS+3}], s36 offen sc1')
    e.label('Lssm_nocf')
    stamp('conv done')
    if cfg.nored: e.i('s_branch Lssm_fin')
    gen_final_consts(e, 240)
    sT = 30; sMI = 31
    sDTk = [12, 13, 14]; sPBk = [16, 17, 18]; sOBk = [24, 25, 26]
    e.i(f's_lshr_b32 s{sT}, s{sJ}, 2')
    e.i(f's_and_b32 s{sMI}, s{sJ}, 3')
    def unitR(k):
        return dict(sWS=sWS, sQ=sQ, sB2=sB2, sOUT=sOUT, sT=sT, sMI=sMI, sDT=sDTk[k], sLDS=sBASE, tmp=(34, 35, 36, 37), ldflag='sc1', vA=240,
                    BR=128 + 8*k, QG=184 + 16*k, sPB=sPBk[k], sOB=sOBk[k], QR=96 + 8*k, YS=32 + 8*k, k=k, outflag=cfg.outflag)
    NU = 2*(9 - cfg.kffn)
    KMAX = -(-NU // 8)
    def for_units(fn, lbl):
        for k in range(KMAX):
            if NU - 8*k < 8:
                e.i(f's_cmp_lt_u32 s{sWV}, {NU - 8*k}')
                e.i(f's_cbranch_scc0 {lbl}')
            fn(k)
        e.label(lbl)
    def f_issue(k):
        e.i(f's_add_u32 s34, s{sWV}, {8*k}')
        e.i(f's_and_b32 s5, s34, 1')
        e.i(f's_lshr_b32 s34, s34, 1')
        e.i(f's_and_b32 s35, s{sT}, 7')
        e.i(f's_add_u32 s34, s34, s35')
        e.i(f's_sub_u32 s35, s34, 9')
        e.i(f's_min_u32 s34, s34, s35')
        e.i(f's_lshl_b32 s34, s34, 1')
        e.i(f's_add_u32 s{sDTk[k]}, s34, s5')
        gen_pre_a_issue(e, unitR(k), k == 0)
    for_units(f_issue, 'Lpre_a1')
    e.i('s_waitcnt vmcnt(0)')
    for_units(lambda k: gen_pre_a_comp(e, unitR(k), k == 0), 'Lpre_a2')
    if cfg.nocpoll: e.i('s_branch Lssm_cready')
    e.i(f's_cmp_eq_u32 s{sWV}, 0')
    e.i('s_cbranch_scc0 Lssm_cready')
    e.i('v_lshlrev_b32 v12, 8, v1')
    e.i(f's_mov_b32 s36, {WS_FLAG3}')
    e.label('Lssm_cpoll')
    e.i(f'buffer_load_dword v14, v12, s[{sWS}:{sWS+3}], s36 offen sc1')
    e.i('s_waitcnt vmcnt(0)')
    e.i(f'v_cmp_eq_u32 vcc, s{sNONCE}, v14')
    e.i('s_nop 1')
    e.i('s_cmp_eq_u64 vcc, -1')
    e.i('s_cbranch_scc1 Lssm_cready')
    e.i(f's_sleep {cfg.c2sleep}')
    e.i('s_add_u32 s7, s7, 1'); e.i('s_cmp_lt_u32 s7, 0x40000'); e.i(f's_cbranch_scc1 Lssm_cpoll')
    e.label('Lssm_cready')
    e.i('s_barrier')
    stamp('conv flags')
    if cfg.nounits: e.i('s_branch Lssm_fin')
    for_units(lambda k: gen_pre_c_issue(e, unitR(k), k == 0), 'Lpre_c1')
    e.i('s_waitcnt vmcnt(0)')
    for_units(lambda k: gen_pre_c_lds(e, unitR(k), k == 0), 'Lpre_c2')
    e.i('s_waitcnt lgkmcnt(0)')
    for_units(lambda k: gen_pre_c_comp(e, unitR(k)), 'Lpre_c3')
    stamp('pre done')
    for k in range(KMAX):
        if NU - 8*k < 8:
            e.i(f's_cmp_lt_u32 s{sWV}, {NU - 8*k}')
            e.i('s_cbranch_scc0 Lssm_fin')
        e.i(f's_mul_i32 s6, s{sT}, 9')
        e.i(f's_lshr_b32 s5, s{sDTk[k]}, 1')
        e.i(f's_add_u32 s6, s6, s5')
        e.i(f's_mul_i32 s6, s6, {12*256}')
        e.i(f's_add_u32 s6, s6, {WS_FLAG}')
        e.i(f'v_min_u32 v12, {NCH-1}, v1')
        e.i(f'v_lshlrev_b32 v12, 8, v12')
        e.label(f'Lssm_fpoll{k}')
        e.i(f'buffer_load_dword v14, v12, s[{sWS}:{sWS+3}], s6 offen sc1')
        e.i('s_waitcnt vmcnt(0)')
        e.i(f'v_cmp_eq_u32 vcc, s{sNONCE}, v14')
        e.i('s_nop 1')
        e.i('s_cmp_eq_u64 vcc, -1')
        e.i(f's_cbranch_scc1 Lssm_fready{k}')
        e.i(f's_sleep {cfg.fsleep}')
        e.i('s_add_u32 s7, s7, 1'); e.i('s_cmp_lt_u32 s7, 0x40000'); e.i(f's_cbranch_scc1 Lssm_fpoll{k}')
        e.label(f'Lssm_fready{k}')
        if cfg.prof: e.i(f's_memtime s[{sPROF+2*(10+2*k)}:{sPROF+2*(10+2*k)+1}]')
        gen_final_post(e, unitR(k))
        if cfg.prof:
            e.i('s_waitcnt vmcnt(0)')
            e.i(f's_memtime s[{sPROF+2*(11+2*k)}:{sPROF+2*(11+2*k)+1}]')
    e.label('Lssm_fin')
    e.i('s_waitcnt vmcnt(0)')
    nprof[0] = 16
    if cfg.prof:
        e.i('s_memrealtime s[100:101]')
        e.i('s_waitcnt lgkmcnt(0)')
        e.i(f's_cmp_eq_u32 s{sWV}, 1')
        e.i('s_cbranch_scc0 Lssm_noprof')
        e.i(f's_lshl_b32 s34, s2, 7')
        e.i(f's_add_u32 s34, s34, {WS_PROF}')
        e.i(f'v_mov_b32 v14, 0')
        for k in range(nprof[0]):
            e.i(f'v_mov_b32 v13, s{sPROF+2*k}')
            e.i(f'buffer_store_dword v13, v14, s[{sWS}:{sWS+3}], s34 offen offset:{4*k}')
        e.i(f'v_mov_b32 v13, s98')
        e.i(f'buffer_store_dword v13, v14, s[{sWS}:{sWS+3}], s34 offen offset:{4*30}')
        e.i(f'v_mov_b32 v13, s100')
        e.i(f'buffer_store_dword v13, v14, s[{sWS}:{sWS+3}], s34 offen offset:{4*31}')
        e.i('s_waitcnt vmcnt(0)')
        e.label('Lssm_noprof')
    e.i('s_endpgm')
```

```python
import sys, os
from emit import Emit
from common import *
from ffn import gen_ffn
from ssm import gen_ssm


class Cfg:
    prof = False
    stflag = 'sc1'
    nostore = False
    prio = False
    looptest = False
    prefetch = False
    gatefirst = False
    dma2 = False
    exspread = False
    pf1 = False
    latexb = False
    wavestamps = 0
    w2pf = False
    outflag = ''
    stspread = False
    pd = 3
    nb = 4
    wmerge = False
    priomode = 4
    startbar = 0
    hlast = False
    touch = False
    earlyxc = False
    hfirst = False
    kffn = 0
    rot = 6
    startprio = False
    ffnfirst = False
    nocpoll = False
    nounits = False
    presleep = 0
    tlbwarm = 0
    c2sleep = 32
    unitprof = None
    csleep = 2
    nored = False
    nossm = False
    fsleep = 2
    fuse = True
    flaglag = 2
    prostamps = False
    nodma = False
    nogelu = False
    nobar = False
    dmaspread = False
    dmabeats = (1, 5, 9)
    stamps = (1, 2, 3, 6, 9, 12, 15, 18, 20, 22, 25, 28, 31)
    prestamps = ()

def kernel_header(e, name):
    e.raw('.p2align 8')
    e.raw(f'.globl {name}')
    e.raw(f'.type {name},@function')
    e.raw(f'{name}:')

def kernel_desc(name, vgpr=256, sgpr=102):
    return f'''.amdhsa_kernel {name}
  .amdhsa_next_free_vgpr {vgpr}
  .amdhsa_next_free_sgpr {sgpr}
  .amdhsa_accum_offset {((vgpr+3)//4)*4}
  .amdhsa_group_segment_fixed_size 0
  .amdhsa_kernarg_size 120
  .amdhsa_user_sgpr_count 2
  .amdhsa_user_sgpr_kernarg_segment_ptr 1
  .amdhsa_system_sgpr_workgroup_id_x 1
.end_amdhsa_kernel
'''

def main():
    cfg = Cfg()
    cfg.prof = '--prof' in sys.argv
    for a in sys.argv:
        if a.startswith('--st='): cfg.stflag = a[5:].replace('+', ' ')
    cfg.nostore = '--nostore' in sys.argv
    cfg.prio = '--prio' in sys.argv
    cfg.looptest = '--looptest' in sys.argv
    cfg.prefetch = '--prefetch' in sys.argv
    cfg.nored = '--nored' in sys.argv
    cfg.gatefirst = '--gatefirst' in sys.argv
    cfg.dma2 = '--dma2' in sys.argv
    cfg.exspread = '--exspread' in sys.argv
    cfg.pf1 = 0
    for a in sys.argv:
        if a.startswith('--pf1='): cfg.pf1 = int(a[6:])
    cfg.latexb = '--latexb' in sys.argv
    cfg.w2pf = '--w2pf' in sys.argv
    cfg.stspread = '--stspread' in sys.argv
    cfg.wmerge = '--wmerge' in sys.argv
    cfg.hlast = '--hlast' in sys.argv
    cfg.touch = '--touch' in sys.argv
    cfg.earlyxc = '--earlyxc' in sys.argv
    cfg.hfirst = '--hfirst' in sys.argv
    cfg.startprio = '--startprio' in sys.argv
    cfg.ffnfirst = '--ffnfirst' in sys.argv
    for a in sys.argv:
        if a.startswith('--rot='): cfg.rot = int(a[6:])
        if a.startswith('--wavestamps='): cfg.wavestamps = int(a[13:])
        if a.startswith('--outflag='): cfg.outflag = a[10:].replace('+', ' ')
        if a.startswith('--pd='): cfg.pd = int(a[5:])
        if a.startswith('--nb='): cfg.nb = int(a[5:])
        if a.startswith('--priomode='): cfg.priomode = int(a[11:])
        if a.startswith('--startbar='): cfg.startbar = int(a[11:])
        if a.startswith('--kffn='): cfg.kffn = int(a[7:])
    cfg.nocpoll = '--nocpoll' in sys.argv
    cfg.nounits = '--nounits' in sys.argv
    cfg.nossm = '--nossm' in sys.argv
    for a in sys.argv:
        if a.startswith('--flaglag='): cfg.flaglag = int(a[10:])
        if a.startswith('--fsleep='): cfg.fsleep = int(a[9:])
        if a.startswith('--tlbwarm='): cfg.tlbwarm = int(a[10:])
        if a.startswith('--c2sleep='): cfg.c2sleep = int(a[10:])
        if a.startswith('--unitprof='): cfg.unitprof = int(a[11:])
        if a.startswith('--csleep='): cfg.csleep = int(a[9:])
    cfg.prostamps = '--prostamps' in sys.argv
    cfg.nodma = '--nodma' in sys.argv
    cfg.nogelu = '--nogelu' in sys.argv
    cfg.nobar = '--nobar' in sys.argv
    cfg.dmaspread = '--dmaspread' in sys.argv
    for a in sys.argv:
        if a.startswith('--dmabeats='): cfg.dmabeats = tuple(int(x) for x in a[11:].split(','))
    for a in sys.argv:
        if a.startswith('--stamps='): cfg.stamps = tuple(int(x) for x in a[9:].split(',') if x)
        if a.startswith('--prestamps='): cfg.prestamps = tuple(int(x) for x in a[12:].split(',') if x)
    e = Emit()
    k1 = NAME + '_kernel'
    here = os.path.dirname(os.path.abspath(__file__))
    hdr = open(here + '/header.txt').read()
    out = [hdr.rstrip('\n')]
    out.append(f'; @launch grid=(256,1,1) block=(512,1,1) lds={LDS_BYTES}')
    out.append('.amdgcn_target "amdgcn-amd-amdhsa--gfx950"')
    out.append('.text')
    kernel_header(e, k1)
    if not cfg.ffnfirst:
        e.i('s_cmp_ge_u32 s2, 256') ; e.i('s_cbranch_scc1 Lk1_exit')
        e.i('s_cmp_ge_u32 s2, 192') ; e.i('s_cbranch_scc1 Lk1_ssm')
        e.i('s_branch Lk1_ffn')
        e.label('Lk1_exit')
        e.i('s_endpgm')
        e.label('Lk1_ssm')
        es = Emit(); gen_ssm(es, cfg); e.raw(es.text())
        e.label('Lk1_ffn')
        ef = Emit(); gen_ffn(ef, cfg); e.raw(ef.text())
    else:
        e.i('s_cmp_ge_u32 s2, 192') ; e.i('s_cbranch_scc0 Lk1_ffn')
        e.i('s_cmp_ge_u32 s2, 256') ; e.i('s_cbranch_scc1 Lk1_exit')
        e.i('s_branch Lk1_ssm')
        e.label('Lk1_exit')
        e.i('s_endpgm')
        e.label('Lk1_ffn')
        ef = Emit(); gen_ffn(ef, cfg); e.raw(ef.text())
        e.label('Lk1_ssm')
        es = Emit(); gen_ssm(es, cfg); e.raw(es.text())
    out.append(e.text())
    out.append('.section .rodata,"a"\n.p2align 6')
    out.append(kernel_desc(k1))

    print('\n'.join(out))

if __name__ == '__main__':
    main()
```

```python
from common import *
from fin import *

WREG = 12928
OFF_O = 4160
OFF_X = 8320
R8 = 8*WREG
FB = 9*WREG

def gen_ssm(e, cfg):
    sQ = 8; sK = 12; sV = 16; sWS = 20; sSK = 24; sH = 40; sGW = 44; sDB = 48; sSD = 52; sB2 = 56; sOUT = 60
    sWV = 28; sJ = 29; sTILE = 30; sCH = 31; sBASE = 32
    sNONCE = 64; sN = 65; sPF = 4
    sPROF = 66
    nprof = [0]
    def stamp(name):
        if cfg.prof and nprof[0] < 16:
            k = nprof[0]; nprof[0] += 1
            e.i(f's_memtime s[{sPROF+2*k}:{sPROF+2*k+1}]')
    def lanes_lt(n, body):
        e.i(f'v_cmp_gt_u32 vcc, {n}, v1')
        e.i('s_and_saveexec_b64 s[38:39], vcc')
        body()
        e.i('s_mov_b64 exec, s[38:39]')
    def signal(off, lbl):
        e.i(f's_cmp_eq_u32 s{sWV}, 0')
        e.i(f's_cbranch_scc0 {lbl}')
        e.i('v_mov_b32 v2, 0')
        e.i('v_mov_b32 v3, 1')
        lanes_lt(1, lambda: e.i(f'buffer_atomic_add v3, v2, s[{sDB}:{sDB+3}], 0 offen offset:{off} sc1'))
        e.label(lbl)
    def wait_count(off, lbl):
        e.i(f's_cmp_eq_u32 s{sWV}, 0')
        e.i(f's_cbranch_scc0 {lbl}_bar')
        e.i('v_mov_b32 v12, 0')
        e.label(f'{lbl}_poll')
        e.i(f'buffer_load_dword v14, v12, s[{sDB}:{sDB+3}], 0 offen offset:{off} sc1')
        e.i('s_waitcnt vmcnt(0)')
        e.i('v_readfirstlane_b32 s37, v14')
        e.i('s_cmp_ge_u32 s37, 64')
        e.i(f's_cbranch_scc1 {lbl}_bar')
        e.i(f's_sleep {cfg.csleep}')
        e.i('s_add_u32 s7, s7, 1'); e.i('s_cmp_lt_u32 s7, 0x40000'); e.i(f's_cbranch_scc1 {lbl}_poll')
        e.label(f'{lbl}_bar')
        e.i('s_barrier')
    if cfg.nossm: e.i('s_endpgm')
    if cfg.prof: e.i('s_memrealtime s[98:99]')
    stamp('start')
    e.i(f's_sub_u32 s{sJ}, s2, 192')
    e.i('s_mov_b32 s7, 0')
    srds = ((sH, 'ssm_k', D*S*2), (sK, 'k', S*D*2), (sV, 'v', S*D*2), (sSK, 'shift_k', D*8), (sQ, 'q', S*D*2), (sWS, 'ws', WS_TOTAL),
            (sGW, 'gate_w', D*2), (sDB, 'dbg', 256), (sSD, 'ssm_D', D*2), (sB2, 'b2', D*2), (sOUT, 'out', S*D*2))
    for s_, nm, nb in srds:
        e.i(f's_load_dwordx2 s[{s_}:{s_+1}], s[0:1], {KA[nm]}')
    e.i(f's_memrealtime s[34:35]')
    e.i(f'v_and_b32 v1, 63, v0')
    e.i('v_lshrrev_b32 v2, 6, v0')
    e.i('s_nop 0')
    e.i(f'v_readfirstlane_b32 s{sWV}, v2')
    for s_, nm, nb in srds:
        e.i(f's_mov_b32 s{s_+2}, {nb}')
        e.i(f's_mov_b32 s{s_+3}, 0x00020000')
    e.i(f's_mul_i32 s{sCH}, s{sJ}, 9')
    e.i(f's_add_u32 s33, s{sCH}, 8')
    e.i(f's_add_u32 s{sCH}, s{sCH}, s{sWV}')
    e.i('s_waitcnt lgkmcnt(0)')
    for s_, nm, nb in srds:
        e.i(f's_and_b32 s{s_+1}, s{s_+1}, 0xffff')
    e.i(f's_or_b32 s34, s34, 1')
    e.i(f's_add_u32 s36, s{sJ}, s{sWV}')
    e.i(f's_cmp_eq_u32 s36, 0')
    e.i('s_cbranch_scc0 Lssm_nononce')
    e.i('v_mov_b32 v2, s34')
    e.i('v_mov_b32 v3, 0')
    e.i(f'buffer_store_dword v2, v3, s[{sDB}:{sDB+3}], 0 offen offset:{DBG_NONCE} sc1')
    e.label('Lssm_nononce')
    HR = 184; H9 = 220; vD = 216; vD9 = 217
    def hloads():
        e.i(f's_mul_i32 s33, s{sJ}, 9')
        e.i(f's_add_u32 s33, s33, 8')
        e.i(f's_lshl_b32 s35, s{sCH}, 12')
        e.i(f'v_lshlrev_b32 v12, 4, v1')
        for i in range(4):
            e.i(f'buffer_load_dwordx4 v[{HR+8*i}:{HR+8*i+3}], v12, s[{sH}:{sH+3}], s35 offen offset:{1024*i}')
            e.i(f'buffer_load_dword v{HR+8*i+4}, v12, s[{sH}:{sH+3}], s35 offen offset:{1024*i+16}')
        e.i(f's_lshl_b32 s35, s33, 12')
        e.i(f's_lshl_b32 s36, s{sWV}, 9')
        e.i(f's_add_u32 s35, s35, s36')
        e.i(f'buffer_load_dwordx4 v[{H9}:{H9+3}], v12, s[{sH}:{sH+3}], s35 offen')
        e.i(f'buffer_load_dword v{H9+4}, v12, s[{sH}:{sH+3}], s35 offen offset:16')
        e.i(f'v_mov_b32 v13, 0')
        e.i(f's_lshl_b32 s37, s{sCH}, 1')
        e.i(f's_and_b32 s37, s37, 0xfffffffc')
        e.i(f'buffer_load_dword v{vD}, v13, s[{sSD}:{sSD+3}], s37 offen')
        e.i(f's_lshl_b32 s37, s33, 1')
        e.i(f's_and_b32 s37, s37, 0xfffffffc')
        e.i(f'buffer_load_dword v{vD9}, v13, s[{sSD}:{sSD+3}], s37 offen')
    if not cfg.hlast: hloads()
    def hbuild():
        e.i(f's_mul_i32 s{sBASE}, s{sWV}, {WREG}')
        e.i(f'v_mov_b32 v52, 0'); e.i('v_mov_b32 v53, 0'); e.i('v_mov_b32 v54, 0'); e.i('v_mov_b32 v55, 0')
        e.i(f'v_lshl_add_u32 v13, v1, 4, s{sBASE}')
        e.i(f'v_lshlrev_b32 v15, 4, v1')
        lanes_lt(32, lambda: e.i(f'ds_write_b128 v13, v[52:55] offset:{OFF_X + 4096}'))
        def pads():
            e.i(f'ds_write_b128 v13, v[52:55]')
            e.i(f'ds_write_b128 v13, v[52:55] offset:{OFF_O}')
        lanes_lt(2, pads)
        e.i(f's_cmp_eq_u32 s{sWV}, 0')
        e.i('s_cbranch_scc0 Lssm_nopad9')
        e.i(f'v_add_u32 v14, {R8}, v15')
        lanes_lt(32, lambda: e.i(f'ds_write_b128 v14, v[52:55] offset:{OFF_X + 4096}'))
        def pads9():
            e.i(f'ds_write_b128 v14, v[52:55]')
            e.i(f'ds_write_b128 v14, v[52:55] offset:{OFF_O}')
        lanes_lt(2, pads9)
        e.label('Lssm_nopad9')
        e.i('s_waitcnt lgkmcnt(0)')
        for i in range(4):
            h = HR + 8*i
            e.i(f'ds_write_b128 v13, v[{h}:{h+3}] offset:{32 + 1024*i}')
            for k in range(4):
                e.i(f'v_alignbit_b32 v{56+k}, v{h+k+1}, v{h+k}, 16')
            e.i(f'ds_write_b128 v13, v[56:59] offset:{OFF_O + 32 + 1024*i}')
            e.i('s_nop 0')
        e.i(f'v_lshlrev_b32 v56, 16, v{HR}')
        lanes_lt(1, lambda: e.i(f'ds_write_b32 v13, v56 offset:{OFF_O + 28}'))
        e.i(f's_lshl_b32 s36, s{sWV}, 9')
        e.i(f's_add_u32 s36, s36, {R8}')
        e.i(f'v_add_u32 v14, s36, v15')
        for k in range(4):
            e.i(f'v_alignbit_b32 v{56+k}, v{H9+k+1}, v{H9+k}, 16')
        def w9():
            e.i(f'ds_write_b128 v14, v[{H9}:{H9+3}] offset:32')
            e.i(f'ds_write_b128 v14, v[56:59] offset:{OFF_O + 32}')
        lanes_lt(32, w9)
        e.i(f's_cmp_eq_u32 s{sWV}, 0')
        e.i('s_cbranch_scc0 Lssm_nosp9')
        e.i(f'v_lshlrev_b32 v56, 16, v{H9}')
        lanes_lt(1, lambda: e.i(f'ds_write_b32 v14, v56 offset:{OFF_O + 28}'))
        e.label('Lssm_nosp9')
        sDV = 33; sDV9 = 34
        e.i(f'v_readfirstlane_b32 s{sDV}, v{vD}')
        e.i(f'v_readfirstlane_b32 s{sDV9}, v{vD9}')
        e.i(f's_bitcmp1_b32 s{sCH}, 0')
        e.i(f's_cselect_b32 s37, 0, 16')
        e.i(f's_lshl_b32 s{sDV}, s{sDV}, s37')
        e.i(f's_and_b32 s{sDV}, s{sDV}, 0xffff0000')
        e.i(f's_bitcmp1_b32 s{sJ}, 0')
        e.i(f's_cselect_b32 s37, 0, 16')
        e.i(f's_lshl_b32 s{sDV9}, s{sDV9}, s37')
        e.i(f's_and_b32 s{sDV9}, s{sDV9}, 0xffff0000')
    sDV = 33; sDV9 = 34
    if cfg.hfirst:
        e.i('s_waitcnt vmcnt(0)')
        hbuild()
    def gate(first):
        e.i(f's_cmp_lt_u32 s{sWV}, 4')
        e.i('s_cbranch_scc0 Lssm_gate_done' if first else 's_cbranch_scc1 Lssm_gate_done')
        e.i(f's_lshl_b32 s36, s{sJ}, 5')
        e.i(f's_and_b32 s37, s{sWV}, 3')
        e.i(f's_lshl_b32 s37, s37, 3')
        e.i(f's_add_u32 s36, s36, s37')
        e.i(f'v_and_b32 v2, 7, v1')
        e.i(f'v_lshrrev_b32 v3, 3, v1')
        e.i(f'v_add_u32 v4, s36, v3')
        e.i(f'v_mul_u32_u24 v6, 1152, v4')
        e.i(f'v_lshl_add_u32 v6, v2, 4, v6')
        e.i(f'v_lshlrev_b32 v7, 4, v2')
        QR = 16; GR = 60
        for i in range(9):
            e.i(f'buffer_load_dwordx4 v[{QR+4*i}:{QR+4*i+3}], v6, s[{sQ}:{sQ+3}], 0 offen offset:{128*i}')
        for i in range(9):
            e.i(f'buffer_load_dwordx4 v[{GR+4*i}:{GR+4*i+3}], v7, s[{sGW}:{sGW+3}], 0 offen offset:{128*i}')
        e.i('v_mov_b32 v8, 0')
        e.i('v_mov_b32 v9, 0')
        e.i('s_waitcnt vmcnt(0)')
        for i in range(36):
            e.i(f'v_lshlrev_b32 v10, 16, v{QR+i}')
            e.i(f'v_lshlrev_b32 v11, 16, v{GR+i}')
            e.i(f'v_and_b32 v12, 0xffff0000, v{QR+i}')
            e.i(f'v_and_b32 v14, 0xffff0000, v{GR+i}')
            e.i(f'v_fmac_f32 v8, v10, v11')
            e.i(f'v_fmac_f32 v9, v12, v14')
        e.i('v_add_f32 v8, v8, v9')
        for off in (0x041F, 0x081F, 0x101F):
            e.i(f'ds_swizzle_b32 v9, v8 offset:{hex(off)}')
            e.i('s_waitcnt lgkmcnt(0)')
            e.i('v_add_f32 v8, v8, v9')
        e.i(f'v_mul_f32 v8, {hex(f2u(-1.4426950408889634))}, v8')
        e.i('v_exp_f32 v8, v8')
        e.i('s_nop 0')
        e.i('v_add_f32 v8, 1.0, v8')
        e.i('v_rcp_f32 v8, v8')
        e.i('v_lshlrev_b32 v10, 2, v4')
        e.i(f's_mov_b32 s35, {WS_G}')
        e.i('v_cmp_eq_u32 vcc, 0, v2')
        e.i('s_and_saveexec_b64 s[38:39], vcc')
        e.i(f'buffer_store_dword v8, v10, s[{sWS}:{sWS+3}], s35 offen sc1')
        e.i('s_mov_b64 exec, s[38:39]')

    if cfg.gatefirst:
        gate(True)
        e.label('Lssm_gate_done')
    e.i(f's_lshl_b32 s{sTILE}, s{sJ}, 2')
    e.i(f's_add_u32 s{sTILE}, s{sTILE}, s{sWV}')
    e.i(f's_cmp_lt_u32 s{sWV}, 4')
    e.i('s_cbranch_scc1 Lssm_prep')
    e.i(f's_add_u32 s{sTILE}, s{sJ}, 256')
    e.i(f's_cmp_eq_u32 s{sWV}, 4')
    e.i('s_cbranch_scc0 Lssm_noprep')
    e.i(f's_cmp_lt_u32 s{sJ}, 32')
    e.i('s_cbranch_scc1 Lssm_prep')
    e.label('Lssm_noprep')
    if cfg.pf1:
        e.i(f's_cmp_lt_u32 s{sWV}, 5')
        e.i('s_cbranch_scc1 Lssm_nopf1')
        e.i(f's_load_dwordx2 s[12:13], s[0:1], {KA["w1"]}')
        e.i(f's_mov_b32 s14, {F*D*2}'); e.i('s_mov_b32 s15, 0x00020000')
        e.i(f's_lshr_b32 s36, s{sJ}, 3'); e.i('s_mul_i32 s36, s36, 3'); e.i(f's_add_u32 s36, s36, s{sWV}'); e.i('s_sub_u32 s36, s36, 5')
        e.i(f's_and_b32 s37, s{sJ}, 1'); e.i('s_lshl_b32 s37, s37, 10')
        e.i('s_mul_i32 s35, s36, 43'); e.i('s_add_u32 s37, s37, s35')
        e.i('s_mul_i32 s37, s37, 1152'); e.i('s_add_u32 s37, s37, 768')
        e.i('v_mul_u32_u24 v12, 21846, v1'); e.i('v_lshrrev_b32 v12, 16, v12')
        e.i('v_mul_u32_u24 v13, 3, v12'); e.i('v_sub_u32 v13, v1, v13')
        e.i('v_mul_u32_u24 v12, 1152, v12'); e.i('v_lshl_add_u32 v12, v13, 7, v12')
        for i in range(2):
            e.i(f'buffer_load_dword v{200+i}, v12, s[{sQ}:{sQ+3}], s37 offen')
            e.i(f's_add_u32 s37, s37, {21*1152}')
        e.i('v_mul_u32_u24 v12, 7282, v1'); e.i('v_lshrrev_b32 v12, 16, v12')
        e.i('v_mul_u32_u24 v13, 9, v12'); e.i('v_sub_u32 v13, v1, v13')
        e.i('v_mul_u32_u24 v12, 9216, v12'); e.i('v_lshl_add_u32 v12, v13, 8, v12')
        e.i(f's_and_b32 s37, s{sJ}, 7'); e.i('s_lshr_b32 s37, s37, 1'); e.i('s_mul_i32 s37, s37, 2304')
        e.i('s_waitcnt lgkmcnt(0)')
        e.i('s_and_b32 s13, s13, 0xffff')
        e.i(f's_mul_i32 s35, s36, {8*9216}'); e.i('s_add_u32 s35, s35, s37'); e.i(f's_add_u32 s35, s35, {384*9216}')
        e.i(f'buffer_load_dword v202, v12, s[12:15], s35 offen')
        e.i(f's_add_u32 s35, s35, {1*9216}')
        e.i(f'buffer_load_dword v203, v12, s[12:15], s35 offen')
        if cfg.pf1 >= 2:
            e.i(f's_mul_i32 s35, s36, {16*9216}'); e.i('s_add_u32 s35, s35, s37'); e.i('s_add_u32 s35, s35, 128')
            for i in range(3):
                e.i(f'buffer_load_dword v{204+i}, v12, s[12:15], s35 offen')
                e.i(f's_add_u32 s35, s35, {(7 if i < 1 else 2)*9216}')
        e.label('Lssm_nopf1')
    e.i(f's_mov_b32 s{sPF}, -1')
    e.i('s_waitcnt vmcnt(0)')
    e.i('s_branch Lssm_hb')
    e.label('Lssm_prep')
    e.i(f's_mul_hi_u32 s36, s{sTILE}, {(1 << 32)//9 + 1}')
    e.i(f's_mul_i32 s37, s36, 9')
    e.i(f's_sub_u32 s37, s{sTILE}, s37')
    e.i(f's_lshl_b32 s{sPF}, s37, 5')
    e.i(f's_add_u32 s{sPF}, s{sPF}, s36')
    e.i(f's_lshl_b32 s{sPF}, s{sPF}, 8')
    e.i(f's_add_u32 s{sPF}, s{sPF}, {WS_FLAG2}')
    e.i(f's_lshl_b32 s36, s36, 6')
    e.i(f's_lshl_b32 s37, s37, 6')
    e.i(f'v_and_b32 v2, 7, v1')
    e.i(f'v_lshrrev_b32 v3, 3, v1')
    e.i(f'v_lshl_add_u32 v4, v3, 3, s36')
    e.i(f'v_lshl_add_u32 v5, v2, 3, s37')
    e.i(f'v_mul_u32_u24 v6, 1152, v4')
    e.i(f'v_lshl_add_u32 v6, v5, 1, v6')
    e.i(f'v_subrev_u32 v7, 3456, v6')
    e.i(f'v_cmp_eq_u32 vcc, 0, v4')
    e.i(f'v_mov_b32 v8, 0x80000000')
    e.i('s_nop 0')
    e.i(f'v_cndmask_b32 v7, v7, v8, vcc')
    e.i(f'v_lshlrev_b32 v8, 3, v5')
    KR = 16; VR = 60; WR = 92
    e.i('s_mov_b32 s35, 4608')
    for i in range(3):
        e.i(f'buffer_load_dwordx4 v[{KR+4*i}:{KR+4*i+3}], v7, s[{sK}:{sK+3}], 0 offen offset:{1152*i}')
    for i in range(8):
        so = '0' if i < 4 else 's35'
        e.i(f'buffer_load_dwordx4 v[{KR+12+4*i}:{KR+12+4*i+3}], v6, s[{sK}:{sK+3}], {so} offen offset:{1152*(i%4)}')
    for i in range(4):
        e.i(f'buffer_load_dwordx4 v[{WR+4*i}:{WR+4*i+3}], v8, s[{sSK}:{sSK+3}], 0 offen offset:{16*i}')
    for i in range(8):
        so = '0' if i < 4 else 's35'
        e.i(f'buffer_load_dwordx4 v[{VR+4*i}:{VR+4*i+3}], v6, s[{sV}:{sV+3}], {so} offen offset:{1152*(i%4)}')
    e.i(f'v_lshlrev_b32 v9, 12, v5')
    e.i(f'v_lshlrev_b32 v10, 1, v4')
    e.i(f'v_sub_u32 v9, v9, v10')
    e.i(f'v_add_u32 v9, {4080}, v9')
    e.i(f's_mov_b32 s35, {WS_XR}')
    KU = 108; VU = 130; WU = 146; AC = 154; PKD = 170
    e.i('s_waitcnt vmcnt(0)')
    for q in range(4):
        for r in range(11):
            e.i(f'v_lshlrev_b32 v{KU+2*r}, 16, v{KR+4*r+q}')
            e.i(f'v_and_b32 v{KU+2*r+1}, 0xffff0000, v{KR+4*r+q}')
        for c in range(2):
            w = WR + 2*(2*q + c)
            e.i(f'v_lshlrev_b32 v{WU+4*c}, 16, v{w}')
            e.i(f'v_and_b32 v{WU+4*c+1}, 0xffff0000, v{w}')
            e.i(f'v_lshlrev_b32 v{WU+4*c+2}, 16, v{w+1}')
            e.i(f'v_and_b32 v{WU+4*c+3}, 0xffff0000, v{w+1}')
        for r in range(8):
            e.i(f'v_lshlrev_b32 v{VU+2*r}, 16, v{VR+4*r+q}')
            e.i(f'v_and_b32 v{VU+2*r+1}, 0xffff0000, v{VR+4*r+q}')
        for r in range(8):
            for c in range(2):
                e.i(f'v_mul_f32 v{AC+2*r+c}, v{KU+2*(r+0)+c}, v{WU+4*c+3}')
        for j in (2, 1, 0):
            for r in range(8):
                for c in range(2):
                    e.i(f'v_fmac_f32 v{AC+2*r+c}, v{KU+2*(r+3-j)+c}, v{WU+4*c+j}')
        for r in range(8):
            for c in range(2):
                e.i(f'v_mul_f32 v{AC+2*r+c}, v{AC+2*r+c}, v{VU+2*r+c}')
        for c in range(2):
            for k in range(4):
                e.i(f'v_cvt_pk_bf16_f32 v{PKD+4*c+k}, v{AC+2*(7-2*k)+c}, v{AC+2*(6-2*k)+c}')
        for c in range(2):
            e.i(f'buffer_store_dwordx4 v[{PKD+4*c}:{PKD+4*c+3}], v9, s[{sWS}:{sWS+3}], s35 offen sc1')
            e.i(f'v_add_u32 v9, 4096, v9')
        e.i('s_nop 1')
    e.label('Lssm_hb')
    stamp('prep issued')
    if not cfg.hfirst and not cfg.hlast: hbuild()
    stamp('h built')
    e.i('v_mov_b32 v12, 0')
    e.label('Lssm_npoll')
    e.i(f'buffer_load_dword v14, v12, s[{sDB}:{sDB+3}], 0 offen offset:{DBG_NONCE} sc1')
    e.i('s_waitcnt vmcnt(0) lgkmcnt(0)')
    e.i(f'v_readfirstlane_b32 s{sNONCE}, v14')
    e.i(f's_cmp_lg_u32 s{sNONCE}, 0')
    e.i('s_cbranch_scc1 Lssm_nok')
    e.i('s_add_u32 s7, s7, 1'); e.i('s_cmp_lt_u32 s7, 0x40000'); e.i('s_cbranch_scc1 Lssm_npoll')
    e.label('Lssm_nok')
    e.i(f'v_mov_b32 v232, s{sNONCE}')
    e.i(f's_cmp_lt_u32 s{sPF}, 0x7fffffff')
    e.i('s_cbranch_scc0 Lssm_notileflag')
    e.i('v_lshlrev_b32 v12, 2, v1')
    e.i(f'buffer_store_dword v232, v12, s[{sWS}:{sWS+3}], s{sPF} offen sc1')
    e.label('Lssm_notileflag')
    stamp('prep done')
    if cfg.hlast:
        hloads()
        e.i('s_waitcnt vmcnt(0)')
        hbuild()
        e.i('s_waitcnt lgkmcnt(0)')
    if not cfg.gatefirst: gate(False)
    if not cfg.gatefirst: e.label('Lssm_gate_done')
    if cfg.w2pf:
        e.i(f's_cmp_lt_u32 s{sWV}, 5')
        e.i('s_cbranch_scc1 Lssm_nopf')
        e.i(f's_load_dwordx2 s[12:13], s[0:1], {KA["w2"]}')
        e.i(f's_mov_b32 s14, {F*D*2}'); e.i('s_mov_b32 s15, 0x00020000')
        e.i(f's_and_b32 s36, s{sJ}, 7'); e.i('s_lshr_b32 s36, s36, 1')
        e.i(f's_mul_i32 s36, s36, {1152*1152}')
        e.i(f's_lshr_b32 s37, s{sJ}, 3'); e.i(f's_mul_i32 s37, s37, {1296*128}')
        e.i('s_add_u32 s36, s36, s37')
        e.i(f's_sub_u32 s37, s{sWV}, 5'); e.i(f's_mul_i32 s37, s37, {448*128}')
        e.i('s_add_u32 s36, s36, s37')
        e.i('v_lshlrev_b32 v12, 7, v1')
        e.i('s_waitcnt lgkmcnt(0)')
        e.i('s_and_b32 s13, s13, 0xffff')
        for i in range(7):
            e.i(f'buffer_load_dword v{200+i}, v12, s[12:15], s36 offen')
            e.i(f's_add_u32 s36, s36, {64*128}')
        e.label('Lssm_nopf')
    e.i(f's_cmp_eq_u32 s{sWV}, 0')
    e.i('s_cbranch_scc0 Lssm_w1_bar')
    e.i(f's_mul_i32 s36, s{sJ}, 9')
    e.i(f's_lshr_b32 s37, s36, 6')
    e.i(f's_add_u32 s36, s36, 8')
    e.i(f's_lshr_b32 s36, s36, 6')
    e.i('v_and_b32 v12, 31, v1')
    e.i('v_lshlrev_b32 v12, 8, v12')
    e.i(f's_lshl_b32 s37, s37, 13')
    e.i(f's_lshl_b32 s36, s36, 13')
    e.i('v_mov_b32 v14, s37')
    e.i('v_mov_b32 v16, s36')
    e.i('v_cmp_gt_u32 vcc, 32, v1')
    e.i('s_nop 1')
    e.i('v_cndmask_b32 v14, v16, v14, vcc')
    e.i('v_add_u32 v12, v12, v14')
    e.i(f's_mov_b32 s36, {WS_FLAG2}')
    e.label('Lssm_w1_poll')
    e.i(f'buffer_load_dword v14, v12, s[{sWS}:{sWS+3}], s36 offen sc1')
    e.i('s_waitcnt vmcnt(0)')
    e.i(f'v_cmp_eq_u32 vcc, s{sNONCE}, v14')
    e.i('s_nop 1')
    e.i('s_cmp_eq_u64 vcc, -1')
    e.i('s_cbranch_scc1 Lssm_w1_bar')
    e.i(f's_sleep {cfg.csleep}')
    e.i('s_add_u32 s7, s7, 1'); e.i('s_cmp_lt_u32 s7, 0x40000'); e.i(f's_cbranch_scc1 Lssm_w1_poll')
    e.label('Lssm_w1_bar')
    e.i('s_barrier')
    stamp('sync done')
    XL = 16
    e.i(f's_lshl_b32 s35, s{sCH}, 12')
    e.i(f's_add_u32 s35, s35, {WS_XR}')
    e.i(f'v_lshlrev_b32 v12, 4, v1')
    for i in range(4):
        e.i(f'buffer_load_dwordx4 v[{XL+4*i}:{XL+4*i+3}], v12, s[{sWS}:{sWS+3}], s35 offen offset:{1024*i} sc1')
    e.i(f's_mul_i32 s36, s{sJ}, 9')
    e.i(f's_add_u32 s36, s36, 8')
    e.i(f's_lshl_b32 s36, s36, 12')
    e.i(f's_lshl_b32 s37, s{sWV}, 9')
    e.i(f's_add_u32 s36, s36, s37')
    e.i(f's_add_u32 s36, s36, {WS_XR}')
    e.i(f'buffer_load_dwordx4 v[{XL+16}:{XL+19}], v12, s[{sWS}:{sWS+3}], s36 offen sc1')
    vN = 2; vG = 3; vAa = [4, 5, 6, 7]; vBa = 8; vXa = 9; vYo = 10
    e.i(f'v_and_b32 v{vN}, 15, v1')
    e.i(f'v_lshrrev_b32 v{vG}, 4, v1')
    e.i(f'v_add_u32 v12, 1, v{vN}')
    e.i(f'v_lshrrev_b32 v12, 1, v12')
    e.i(f'v_lshlrev_b32 v12, 2, v12')
    e.i(f'v_lshl_add_u32 v12, v{vG}, 4, v12')
    e.i(f'v_and_b32 v14, 1, v{vN}')
    e.i(f'v_xor_b32 v14, 1, v14')
    e.i(f'v_mul_u32_u24 v14, {OFF_O}, v14')
    e.i(f'v_add_u32 v11, v12, v14')
    for k in range(4):
        e.i(f'v_add_u32 v{vAa[k]}, {1024*k}, v11')
        e.i(f'v_add_u32 v{vAa[k]}, s{sBASE}, v{vAa[k]}')
    e.i(f'v_lshlrev_b32 v12, 5, v{vN}')
    e.i(f'v_lshlrev_b32 v14, 4, v{vG}')
    e.i(f'v_sub_u32 v60, v14, v12')
    e.i(f's_add_u32 s37, s{sBASE}, {OFF_X + 480}')
    e.i(f'v_add_u32 v{vBa}, s37, v60')
    e.i(f'v_lshlrev_b32 v14, 3, v{vG}')
    e.i(f'v_add_u32 v{vYo}, v14, v12')
    e.i(f's_add_u32 s37, s{sBASE}, {OFF_X + 504}')
    e.i(f'v_sub_u32 v{vXa}, s37, v{vYo}')
    e.i('s_waitcnt vmcnt(0)')
    for i in range(4):
        e.i(f'ds_write_b128 v13, v[{XL+4*i}:{XL+4*i+3}] offset:{OFF_X + 1024*i}')
    e.i(f's_lshl_b32 s36, s{sWV}, 9')
    e.i(f's_add_u32 s36, s36, {R8 + OFF_X}')
    e.i(f'v_add_u32 v14, s36, v15')
    lanes_lt(32, lambda: e.i(f'ds_write_b128 v14, v[{XL+16}:{XL+19}]'))
    e.i('s_waitcnt lgkmcnt(0)')
    e.i('s_barrier')
    stamp('x loaded')
    ACC = 16; AB = [48+16, 96]; BB = [128, 160]
    AB = [64, 96]
    def read_list(rho, st, aregs, breg):
        out = []
        for k in range(8):
            a = aregs[k >> 1]; o = 16*rho + 128*(k & 1)
            r = AB[st] + 4*k; rb = BB[st] + 4*k
            kap = 8*k - rho
            out.append((f'ds_read_b128 v[{rb}:{rb+3}], v{breg} offset:{3584 - 64*kap}', ('b', rho, st, k)))
            out.append((f'ds_read2_b32 v[{r}:{r+1}], v{a} offset0:{o} offset1:{o+1}', ('a', rho, st, k, 0)))
            out.append((f'ds_read2_b32 v[{r+2}:{r+3}], v{a} offset0:{o+2} offset1:{o+3}', ('a', rho, st, k, 1)))
        return out
    def mfmas(rho, st, nxt, first, ACC=16):
        cnt = 0
        for ee in range(8):
            for u in range(8 - ee):
                tau = ee + u
                e.wait_lds(('a', rho, st, ee, 1)); e.wait_lds(('b', rho, st, u))
                a = AB[st] + 4*ee; b = BB[st] + 4*u; acc = ACC + 4*tau
                c = '0' if (first and ee == 0) else f'v[{acc}:{acc+3}]'
                e.mfma(f'v_mfma_f32_16x16x32_bf16 v[{acc}:{acc+3}], v[{a}:{a+3}], v[{b}:{b+3}], {c}',
                       list(range(acc, acc+4)), [])
                cnt += 1
                if nxt and cnt >= 6:
                    t, tag = nxt.pop(0); e.lds(t, tag)
        assert not nxt
    a9 = [48, 49, 50, 51]; b9 = 52
    e.i(f's_lshl_b32 s36, s{sWV}, 6')
    e.i(f's_add_u32 s37, s36, {R8}')
    for k in range(4):
        e.i(f'v_add_u32 v{a9[k]}, {1024*k}, v11')
        e.i(f'v_add_u32 v{a9[k]}, s37, v{a9[k]}')
    e.i(f's_add_u32 s37, s37, {OFF_X + 480}')
    e.i(f'v_add_u32 v{b9}, s37, v60')
    e.lq = []
    for (t, tag) in read_list(0, 0, vAa, vBa): e.lds(t, tag)
    for rho in range(8):
        st = rho & 1
        if cfg.prio and rho % 2 == 0: e.i(f's_setprio {3 - rho // 2}')
        if rho < 7: nxt = read_list(rho + 1, st ^ 1, vAa, vBa)
        else: nxt = [(t, ('n',) + tag) for (t, tag) in read_list(0, 0, a9, b9)]
        mfmas(rho, st, nxt, rho == 0)
    ACC9 = 196
    for ee in range(8):
        for u in range(8 - ee):
            tau = ee + u
            e.wait_lds(('n', 'a', 0, 0, ee, 1)); e.wait_lds(('n', 'b', 0, 0, u))
            a = AB[0] + 4*ee; b = BB[0] + 4*u; acc = ACC9 + 4*tau
            c = '0' if ee == 0 else f'v[{acc}:{acc+3}]'
            e.mfma(f'v_mfma_f32_16x16x32_bf16 v[{acc}:{acc+3}], v[{a}:{a+3}], v[{b}:{b+3}], {c}', list(range(acc, acc+4)), [])
    for tau in range(8):
        e.lds(f'ds_read_b64 v[{96+2*tau}:{97+2*tau}], v{vXa} offset:{3584 - 512*tau}', ('xv', tau))
    e.i(f's_lshl_b32 s35, s{sCH}, 12')
    e.i(f's_add_u32 s35, s35, {WS_Y2}')
    def yout(x0, accs, sD, pk):
        e.valu(f'v_and_b32 v120, 0xffff0000, v{x0+1}', dst=[120])
        e.valu(f'v_lshlrev_b32 v121, 16, v{x0+1}', dst=[121])
        e.valu(f'v_and_b32 v122, 0xffff0000, v{x0}', dst=[122])
        e.valu(f'v_lshlrev_b32 v123, 16, v{x0}', dst=[123])
        for r in range(4):
            e.valu(f'v_fma_f32 v{120+r}, v{120+r}, s{sD}, v{accs[r]}', dst=[120+r], src=[accs[r]])
        e.valu(f'v_cvt_pk_bf16_f32 v{pk}, v120, v121', dst=[pk])
        e.valu(f'v_cvt_pk_bf16_f32 v{pk+1}, v122, v123', dst=[pk+1])
    for tau in range(8):
        e.wait_lds(('xv', tau))
        pk = 124 + 2*(tau & 1)
        yout(96 + 2*tau, [ACC+4*tau+r for r in range(4)], sDV, pk)
        e.i(f'buffer_store_dwordx2 v[{pk}:{pk+1}], v{vYo}, s[{sWS}:{sWS+3}], s35 offen offset:{512*tau} sc1')
    e.wait_lds_all()
    e.nop(8)
    for tau in range(8):
        e.lds(f'ds_write_b128 v13, v[{ACC9+4*tau}:{ACC9+4*tau+3}] offset:{1024*tau}', ('p9', tau))
    stamp('chan done')
    e.wait_lds_all()
    e.i('s_barrier')
    e.i(f's_lshl_b32 s36, s{sWV}, 10')
    e.i(f'v_add_u32 v54, s36, v15')
    e.i(f'v_add_u32 v55, {4*WREG}, v54')
    for k in range(8):
        a = 54 if k < 4 else 55
        e.lds(f'ds_read_b128 v[{64+4*k}:{67+4*k}], v{a} offset:{(k%4)*WREG}', ('f9', k))
    e.i(f's_lshl_b32 s36, s{sWV}, 9')
    e.i(f's_sub_u32 s36, {R8 + OFF_X + 4088}, s36')
    e.i(f'v_sub_u32 v54, s36, v{vYo}')
    e.lds(f'ds_read_b64 v[20:21], v54', ('x9',))
    e.i(f's_mul_i32 s35, s{sJ}, 9')
    e.i(f's_add_u32 s35, s35, 8')
    e.i(f's_lshl_b32 s35, s35, 12')
    e.i(f's_lshl_b32 s36, s{sWV}, 9')
    e.i(f's_add_u32 s35, s35, s36')
    e.i(f's_add_u32 s35, s35, {WS_Y2}')
    e.wait_lds_all()
    for k in range(1, 8):
        for r in range(4):
            e.i(f'v_add_f32 v{64+r}, v{64+r}, v{64+4*k+r}')
    yout(20, [64, 65, 66, 67], sDV9, 124)
    e.i(f'buffer_store_dwordx2 v[124:125], v{vYo}, s[{sWS}:{sWS+3}], s35 offen sc1')
    e.i('s_waitcnt vmcnt(0)')
    e.i('s_barrier')
    e.i(f's_cmp_eq_u32 s{sWV}, 0')
    e.i('s_cbranch_scc0 Lssm_nocf')
    e.i('v_lshlrev_b32 v12, 2, v1')
    e.i(f's_lshl_b32 s36, s{sJ}, 8')
    e.i(f's_add_u32 s36, s36, {WS_FLAG3}')
    e.i(f'buffer_store_dword v232, v12, s[{sWS}:{sWS+3}], s36 offen sc1')
    e.label('Lssm_nocf')
    stamp('conv done')
    if cfg.nored: e.i('s_branch Lssm_fin')
    gen_final_consts(e, 240)
    sT = 30; sMI = 31
    sDTk = [12, 13, 14]; sPBk = [16, 17, 18]; sOBk = [24, 25, 26]
    e.i(f's_lshr_b32 s{sT}, s{sJ}, 2')
    e.i(f's_and_b32 s{sMI}, s{sJ}, 3')
    def unitR(k):
        return dict(sWS=sWS, sQ=sQ, sB2=sB2, sOUT=sOUT, sT=sT, sMI=sMI, sDT=sDTk[k], sLDS=sBASE, tmp=(34, 35, 36, 37), ldflag='sc1', vA=240,
                    BR=128 + 8*k, QG=184 + 16*k, sPB=sPBk[k], sOB=sOBk[k], QR=96 + 8*k, YS=32 + 8*k, k=k, outflag=cfg.outflag)
    NU = 2*(9 - cfg.kffn)
    KMAX = -(-NU // 8)
    def for_units(fn, lbl):
        for k in range(KMAX):
            if NU - 8*k < 8:
                e.i(f's_cmp_lt_u32 s{sWV}, {NU - 8*k}')
                e.i(f's_cbranch_scc0 {lbl}')
            fn(k)
        e.label(lbl)
    def f_issue(k):
        e.i(f's_add_u32 s34, s{sWV}, {8*k}')
        e.i(f's_and_b32 s5, s34, 1')
        e.i(f's_lshr_b32 s34, s34, 1')
        e.i(f's_and_b32 s35, s{sT}, 7')
        e.i(f's_add_u32 s34, s34, s35')
        e.i(f's_sub_u32 s35, s34, 9')
        e.i(f's_min_u32 s34, s34, s35')
        e.i(f's_lshl_b32 s34, s34, 1')
        e.i(f's_add_u32 s{sDTk[k]}, s34, s5')
        gen_pre_a_issue(e, unitR(k), k == 0)
    for_units(f_issue, 'Lpre_a1')
    e.i('s_waitcnt vmcnt(0)')
    for_units(lambda k: gen_pre_a_comp(e, unitR(k), k == 0), 'Lpre_a2')
    if cfg.nocpoll: e.i('s_branch Lssm_cready')
    e.i(f's_cmp_eq_u32 s{sWV}, 0')
    e.i('s_cbranch_scc0 Lssm_cready')
    e.i('v_lshlrev_b32 v12, 8, v1')
    e.i(f's_mov_b32 s36, {WS_FLAG3}')
    e.label('Lssm_cpoll')
    e.i(f'buffer_load_dword v14, v12, s[{sWS}:{sWS+3}], s36 offen sc1')
    e.i('s_waitcnt vmcnt(0)')
    e.i(f'v_cmp_eq_u32 vcc, s{sNONCE}, v14')
    e.i('s_nop 1')
    e.i('s_cmp_eq_u64 vcc, -1')
    e.i('s_cbranch_scc1 Lssm_cready')
    e.i(f's_sleep {cfg.c2sleep}')
    e.i('s_add_u32 s7, s7, 1'); e.i('s_cmp_lt_u32 s7, 0x40000'); e.i(f's_cbranch_scc1 Lssm_cpoll')
    e.label('Lssm_cready')
    e.i('s_barrier')
    stamp('conv flags')
    if cfg.nounits: e.i('s_branch Lssm_fin')
    for_units(lambda k: gen_pre_c_issue(e, unitR(k), k == 0), 'Lpre_c1')
    e.i('s_waitcnt vmcnt(0)')
    for_units(lambda k: gen_pre_c_lds(e, unitR(k), k == 0), 'Lpre_c2')
    e.i('s_waitcnt lgkmcnt(0)')
    for_units(lambda k: gen_pre_c_comp(e, unitR(k)), 'Lpre_c3')
    stamp('pre done')
    for k in range(KMAX):
        if NU - 8*k < 8:
            e.i(f's_cmp_lt_u32 s{sWV}, {NU - 8*k}')
            e.i('s_cbranch_scc0 Lssm_fin')
        e.i(f's_mul_i32 s6, s{sT}, 9')
        e.i(f's_lshr_b32 s5, s{sDTk[k]}, 1')
        e.i(f's_add_u32 s6, s6, s5')
        e.i(f's_mul_i32 s6, s6, {12*256}')
        e.i(f's_add_u32 s6, s6, {WS_FLAG}')
        e.i(f'v_min_u32 v12, {NCH-1}, v1')
        e.i(f'v_lshlrev_b32 v12, 8, v12')
        e.label(f'Lssm_fpoll{k}')
        e.i(f'buffer_load_dword v14, v12, s[{sWS}:{sWS+3}], s6 offen sc1')
        e.i('s_waitcnt vmcnt(0)')
        e.i(f'v_cmp_eq_u32 vcc, s{sNONCE}, v14')
        e.i('s_nop 1')
        e.i('s_cmp_eq_u64 vcc, -1')
        e.i(f's_cbranch_scc1 Lssm_fready{k}')
        e.i(f's_sleep {cfg.fsleep}')
        e.i('s_add_u32 s7, s7, 1'); e.i('s_cmp_lt_u32 s7, 0x40000'); e.i(f's_cbranch_scc1 Lssm_fpoll{k}')
        e.label(f'Lssm_fready{k}')
        if cfg.prof: e.i(f's_memtime s[{sPROF+2*(10+2*k)}:{sPROF+2*(10+2*k)+1}]')
        gen_final_post(e, unitR(k))
        if cfg.prof:
            e.i('s_waitcnt vmcnt(0)')
            e.i(f's_memtime s[{sPROF+2*(11+2*k)}:{sPROF+2*(11+2*k)+1}]')
    e.label('Lssm_fin')
    e.i('s_waitcnt vmcnt(0)')
    nprof[0] = 16
    if cfg.prof:
        e.i('s_memrealtime s[100:101]')
        e.i('s_waitcnt lgkmcnt(0)')
        e.i(f's_cmp_eq_u32 s{sWV}, 1')
        e.i('s_cbranch_scc0 Lssm_noprof')
        e.i(f's_lshl_b32 s34, s2, 7')
        e.i(f's_add_u32 s34, s34, {WS_PROF}')
        e.i(f'v_mov_b32 v14, 0')
        for k in range(nprof[0]):
            e.i(f'v_mov_b32 v13, s{sPROF+2*k}')
            e.i(f'buffer_store_dword v13, v14, s[{sWS}:{sWS+3}], s34 offen offset:{4*k}')
        e.i(f'v_mov_b32 v13, s98')
        e.i(f'buffer_store_dword v13, v14, s[{sWS}:{sWS+3}], s34 offen offset:{4*30}')
        e.i(f'v_mov_b32 v13, s100')
        e.i(f'buffer_store_dword v13, v14, s[{sWS}:{sWS+3}], s34 offen offset:{4*31}')
        e.i('s_waitcnt vmcnt(0)')
        e.label('Lssm_noprof')
    e.i('s_endpgm')
```

```python
from common import *
from fin import *
import ffn_unit

def ring_plan(maxper=3, exfree=21):
    slot = {0: 2, 1: 3}
    issue = {s: [] for s in range(0, 36)}
    slot[2] = 2; issue[1].append(2)
    slot[3] = 4; slot[4] = 5
    slot[5] = 3; issue[2].append(5)
    free = []
    nxt = 6
    ex = []
    for s in range(3, 36):
        free.append(slot[s-1])
        if s == 3: free = [0, 1] + free
        if s in (15, 16):
            ex.append(free.pop())
            assert not free
            continue
        if s == exfree: free += ex
        while free and nxt < 36 and len(issue[s]) < maxper:
            slot[nxt] = free.pop(0); issue[s].append(nxt); nxt += 1
    assert nxt == 36, nxt
    return slot, issue, ex

P2_STD = [(0,0),(1,0),(0,1),(1,1)] + [(dp, kb) for dp in range(2, 9) for kb in range(2)]
P2_ALT = [(0,0),(1,0),(2,0),(0,1),(1,1),(2,1)] + [(dp, kb) for dp in range(3, 9) for kb in range(2)]

def gen_ffn(e, cfg):
    P2 = P2_ALT if cfg.p2alt else P2_STD
    SB = 21 if cfg.p2alt else 20
    slot, issue, ex = ring_plan(2 if cfg.dma2 else 3, SB + 1)
    def p2acc(dp):
        if not cfg.p2alt: return ACCP[dp & 1]
        return {0: 168, 1: 184, 2: 32}.get(dp, (168, 184)[(dp + 1) & 1])
    vLANE = 1; vA0 = 2; vA1 = 3
    vPAT1 = 4; vPAT2 = 5
    vW1 = 6; vW2 = 7; vBIAS = 8; vC0 = 9
    vST = 10; vA2 = 11; vA3 = 12
    tmp = [13, 14, 15, 0]
    AF = 16
    ACC = [32, 48]
    HOWN = 64
    XF = 112
    HPART = 112
    PK = 160
    ACCP = [168, 184]
    vX0 = 32; vX1 = 33
    sW1 = 8; sW2 = 12; sX = 16; sWS = 20; sB1 = 24
    sWV = 28; sMI = 29; sP = 30; sC = 31; sT = 32
    sW1B = 33; sXB = 34; sM0B = 35; sOFF = 36; sGC1 = 37; sSTO = 38; sROT = 39
    sC1 = 44
    sR2 = 50
    sD2 = 56
    sNONCE = 66; sFLB = 67; sDB = 68
    vNON = 200; vZERO = 201
    sPROF = 72
    nprof = [0]
    def stamp(name):
        if cfg.prof and nprof[0] < 11:
            k = nprof[0]; nprof[0] += 1
            e.i(f's_memtime s[{sPROF+2*k}:{sPROF+2*k+1}]')
    if cfg.prof: e.i('s_memrealtime s[98:99]')
    stamp('start')
    e.i('s_and_b32 s40, s2, 7')
    e.i('s_lshr_b32 s41, s2, 3')
    e.i('s_lshr_b32 s42, s40, 1')
    e.i('s_mul_i32 s42, s42, 3')
    e.i('s_lshr_b32 s43, s41, 3')
    e.i(f's_add_u32 s{sC}, s42, s43')
    e.i('s_and_b32 s42, s40, 1')
    e.i('s_lshl_b32 s42, s42, 3')
    e.i('s_and_b32 s43, s41, 7')
    e.i(f's_add_u32 s{sT}, s42, s43')
    e.i(f's_load_dwordx2 s[{sX}:{sX+1}], s[0:1], {KA["q"]}')
    e.i(f's_load_dwordx2 s[{sW1}:{sW1+1}], s[0:1], {KA["w1"]}')
    e.i(f's_load_dwordx2 s[{sB1}:{sB1+1}], s[0:1], {KA["b1"]}')
    e.i(f's_load_dwordx2 s[{sW2}:{sW2+1}], s[0:1], {KA["w2"]}')
    e.i(f's_load_dwordx2 s[{sWS}:{sWS+1}], s[0:1], {KA["ws"]}')
    e.i(f's_load_dwordx2 s[{sDB}:{sDB+1}], s[0:1], {KA["dbg"]}')
    e.i(f's_load_dwordx2 s[4:5], s[0:1], {KA["out"]}')
    e.i(f's_load_dwordx2 s[6:7], s[0:1], {KA["b2"]}')
    L = vLANE
    e.i(f'v_and_b32 v{L}, 63, v0')
    e.i('v_lshrrev_b32 v13, 6, v0')
    e.i('s_nop 0')
    e.i(f'v_readfirstlane_b32 s{sWV}, v13')
    for s_, nb in ((sW1, D*F*2), (sW2, F*D*2), (sX, S*D*2), (sWS, WS_TOTAL), (sB1, F*2), (sDB, 256)):
        e.i(f's_mov_b32 s{s_+2}, {nb}')
        e.i(f's_mov_b32 s{s_+3}, 0x00020000')
    e.i(f's_mov_b32 s{sGC1}, {hex(f2u(GC1))}')
    e.i(f'v_mov_b32 v{vC0}, {hex(f2u(GC0))}')
    e.i(f's_and_b32 s{sMI}, s{sWV}, 3')
    e.i(f's_lshr_b32 s{sP}, s{sWV}, 2')
    e.i(f'v_lshrrev_b32 v13, 3, v{L}')
    e.i(f'v_lshrrev_b32 v14, 4, v{L}')
    e.i(f'v_and_b32 v15, 7, v{L}')
    e.i(f'v_xor_b32 v16, v15, v14')
    e.i(f'v_mul_u32_u24 v17, 1152, v13')
    e.i(f'v_lshl_add_u32 v{vX0}, v16, 4, v17')
    e.i(f'v_xor_b32 v16, 4, v16')
    e.i(f'v_lshl_add_u32 v{vX1}, v16, 4, v17')
    e.i(f'v_add_u32 v{vX1}, {8*1152}, v{vX1}')
    e.i(f's_lshl_b32 s41, s{sT}, 7')
    e.i(f's_lshl_b32 s42, s{sWV}, 4')
    e.i(f's_add_u32 s41, s41, s42')
    e.i(f's_mul_i32 s{sXB}, s41, 1152')
    e.i(f's_lshl_b32 s{sM0B}, s{sWV}, 11')
    e.i(f'v_and_b32 v14, 1, v14')
    e.i(f'v_lshlrev_b32 v14, 2, v14')
    e.i(f'v_xor_b32 v15, v15, v14')
    e.i(f'v_lshlrev_b32 v15, 4, v15')
    e.i(f'v_mul_u32_u24 v14, 9216, v13')
    e.i(f'v_add_u32 v{vW1}, v14, v15')
    e.i(f'v_add_u32 v{vW2}, v17, v15')
    e.i(f's_and_b32 s43, s{sT}, 7')
    if cfg.rot == 6:
        e.i(f's_sub_u32 s42, s43, 6')
        e.i(f's_min_u32 s{sROT}, s43, s42')
    elif cfg.rot == 5:
        e.i(f's_sub_u32 s42, s43, 5')
        e.i(f's_min_u32 s{sROT}, s43, s42')
    elif cfg.rot == 2:
        e.i(f's_and_b32 s42, s43, 1')
        e.i(f's_mul_i32 s{sROT}, s42, 3')
    elif cfg.rot == 3:
        e.i(f's_and_b32 s42, s43, 3')
        e.i(f's_lshl_b32 s42, s42, 1')
        e.i(f's_sub_u32 s41, s42, 6')
        e.i(f's_min_u32 s{sROT}, s42, s41')
    else:
        e.i(f's_mov_b32 s{sROT}, 0')
    e.i(f's_mul_i32 s40, s{sC}, {FC}')
    e.i(f's_lshl_b32 s41, s40, 1')
    e.i(f's_mul_i32 s42, s{sWV}, {24*9216}')
    e.i(f's_add_u32 s{sW1B}, s41, s42')
    for fp in range(6):
        if cfg.rot == 5:
            if fp == 0:
                e.i(f's_mov_b32 s{sC1}, s{sW1B}'); continue
            e.i(f's_add_u32 s42, s{sROT}, {fp-1}')
            e.i(f's_sub_u32 s41, s42, 5')
            e.i(f's_min_u32 s42, s42, s41')
            e.i(f's_add_u32 s42, s42, 1')
        else:
            e.i(f's_add_u32 s42, s{sROT}, {fp}')
            e.i(f's_sub_u32 s41, s42, 6')
            e.i(f's_min_u32 s42, s42, s41')
        e.i(f's_lshl_b32 s42, s42, 7')
        e.i(f's_add_u32 s{sC1+fp}, s{sW1B}, s42')
    e.i('s_waitcnt lgkmcnt(0)')
    if cfg.prostamps: stamp('kernarg')
    for s_ in (sW1, sW2, sX, sWS, sB1, sDB):
        e.i(f's_and_b32 s{s_+1}, s{s_+1}, 0xffff')
    sXG = (94, 95, 96); sKR = (24, 25, 26)
    if cfg.krot:
        e.i(f's_lshr_b32 s41, s2, 6')
        for g_ in range(3):
            e.i(f's_add_u32 s42, s41, {g_}'); e.i(f's_sub_u32 s{sXG[g_]}, s42, 3'); e.i(f's_min_u32 s42, s42, s{sXG[g_]}')
            e.i(f's_mul_i32 s42, s42, 384'); e.i(f's_add_u32 s{sXG[g_]}, s{sXB}, s42')
    def xdma(blk, base):
        for a, vx in ((0, vX0), (1, vX1)):
            e.i(f's_add_u32 m0, s{sM0B}, {base + a*1024}')
            if cfg.krot: e.i(f's_add_u32 s{sOFF}, s{sXG[blk // 3]}, {(blk % 3)*128}')
            else: e.i(f's_add_u32 s{sOFF}, s{sXB}, {blk*128}')
            e.vm(f'buffer_load_dwordx4 v{vx}, s[{sX}:{sX+3}], s{sOFF} offen lds', ('xd', blk, a))
    def dma_one(it, i):
        if cfg.nodma and it >= 6:
            e.vq.append(('dma', it, i)); e.vm_done.add(('dma', it, i)); e.vq.pop(); return
        sl = slot[it]
        e.i(f's_add_u32 m0, s{sM0C}, {sl*SLOT + i*1024}')
        if it < 18:
            fp, kb = it // 3, it % 3
            if cfg.krot:
                e.i(f's_add_u32 s{sOFF}, s{sC1+fp}, s{sKR[kb]}')
                if i: e.i(f's_add_u32 s{sOFF}, s{sOFF}, {8*i*9216}')
            else:
                e.i(f's_add_u32 s{sOFF}, s{sC1+fp}, {(192*kb + 8*i)*9216}')
            e.vm(f'buffer_load_dwordx4 v{vW1}, s[{sW1}:{sW1+3}], s{sOFF} offen {cfg.dmaflag} lds', ('dma', it, i))
        else:
            dp, kb = P2[it-18]
            e.i(f's_add_u32 s{sOFF}, s{sR2+3*kb+i}, s{sD2+dp}')
            e.vm(f'buffer_load_dwordx4 v{vW2}, s[{sW2}:{sW2+3}], s{sOFF} offen {cfg.dmaflag} lds', ('dma', it, i))
    sM0C = 65
    e.i(f's_mul_i32 s{sM0C}, s{sWV}, 3072')
    def dma_item(it):
        for i in range(3): dma_one(it, i)
    if cfg.startprio: e.i('s_setprio 3')
    for b in range(3): xdma(b, b*16384)
    e.i(f'v_lshrrev_b32 v13, 5, v{L}')
    e.i(f's_lshl_b32 s42, s{sWV}, 1')
    if cfg.rot == 5:
        e.i(f'v_add_u32 v13, s42, v13')
        e.i(f'v_cmp_eq_u32 vcc, 0, v13')
        e.i(f's_sub_u32 s42, s{sROT}, 1')
        e.i(f'v_add_u32 v13, s42, v13')
        e.i(f'v_subrev_u32 v14, 5, v13')
        e.i(f'v_min_u32 v13, v13, v14')
        e.i(f'v_add_u32 v13, 1, v13')
        e.i(f'v_cndmask_b32 v13, v13, 0, vcc') if False else None
        e.i(f'v_mov_b32 v14, 0')
        e.i(f'v_cndmask_b32 v13, v13, v14, vcc')
    else:
        e.i(f's_add_u32 s42, s42, s{sROT}')
        e.i(f'v_add_u32 v13, s42, v13')
        e.i(f'v_subrev_u32 v14, 6, v13')
        e.i(f'v_min_u32 v13, v13, v14')
    e.i(f'v_lshlrev_b32 v13, 7, v13')
    e.i(f'v_and_b32 v14, 31, v{L}')
    e.i(f'v_lshl_add_u32 v13, v14, 2, v13')
    e.i(f's_lshl_b32 s44, s40, 1') if False else None
    e.i(f's_lshl_b32 s41, s40, 1')
    e.i(f's_cmp_lt_u32 s{sWV}, 3')
    e.i(f's_cbranch_scc0 Lffn_nobias_ld')
    e.i(f'buffer_load_dword v34, v13, s[{sB1}:{sB1+3}], s41 offen')
    e.label('Lffn_nobias_ld')
    if cfg.krot:
        e.i(f's_lshr_b32 s41, s2, 6')
        for k_ in range(3):
            e.i(f's_add_u32 s42, s41, {k_}'); e.i(f's_sub_u32 s{sKR[k_]}, s42, 3'); e.i(f's_min_u32 s42, s42, s{sKR[k_]}')
            e.i(f's_mul_i32 s{sKR[k_]}, s42, {192*9216}')
    if cfg.startbar >= 1: e.i('s_barrier')
    dma_item(0)
    if cfg.startprio: e.i('s_setprio 2')
    if cfg.startbar >= 2: e.i('s_barrier')
    dma_item(1)
    if cfg.startbar >= 3: e.i('s_barrier')
    if cfg.startprio: e.i('s_setprio 0')
    if not cfg.latexb:
        for b in range(3, 6): xdma(b, 4*SLOT + (b-3)*16384)
    if cfg.touch:
        e.i(f'v_mul_u32_u24 v38, 1152, v{L}')
        e.i(f'v_mul_u32_u24 v39, 9216, v{L}')
        e.i(f's_cmp_ge_u32 s{sWV}, 3')
        e.i(f's_cselect_b32 s41, 1, 0')
        e.i(f's_mul_i32 s42, s41, 3')
        e.i(f's_sub_u32 s42, s{sWV}, s42')
        e.i(f's_lshl_b32 s42, s42, 7')
        e.i(f's_mul_i32 s41, s41, {64*1152}')
        e.i(f's_add_u32 s41, s41, s42')
        e.i(f's_lshl_b32 s42, s{sT}, 7')
        e.i(f's_mul_i32 s42, s42, 1152')
        e.i(f's_add_u32 s41, s41, s42')
        e.i(f's_add_u32 s41, s41, 768')
        e.i(f's_cmp_lt_u32 s{sWV}, 6')
        e.i(f's_cselect_b32 s41, s41, 0x70000000')
        e.vm(f'buffer_load_dword v104, v38, s[{sX}:{sX+3}], s41 offen', ('touch', 0))
        e.i(f's_mul_i32 s42, s{sWV}, {24*9216}')
        e.i(f's_sub_u32 s41, s{sC1}, s42')
        e.i(f's_sub_u32 s42, s{sC1+1}, s42')
        e.i(f's_add_u32 s41, s41, {192*2*9216}')
        e.i(f's_mul_i32 s38, s{sWV}, {64*9216}')
        e.i(f's_add_u32 s41, s41, s38')
        e.i(f's_sub_u32 s38, s38, {3*64*9216}')
        e.i(f's_add_u32 s38, s38, s42')
        e.i(f's_cmp_lt_u32 s{sWV}, 3')
        e.i(f's_cselect_b32 s41, s41, s38')
        e.vm(f'buffer_load_dword v105, v39, s[{sW1}:{sW1+3}], s41 offen', ('touch', 1))
        e.i(f's_add_u32 s42, s42, {5*64*9216}')
        e.i(f's_cmp_eq_u32 s{sWV}, 0')
        e.i(f's_cselect_b32 s42, s42, 0x70000000')
        e.vm(f'buffer_load_dword v106, v39, s[{sW1}:{sW1+3}], s42 offen', ('touch', 2))
    if cfg.prostamps: stamp('issued')
    for i in range(3):
        e.i(f's_mul_i32 s41, s{sWV}, 24')
        e.i(f's_add_u32 s41, s41, {8*i}')
        e.i(f's_lshr_b32 s42, s41, 6')
        e.i(f's_and_b32 s41, s41, 63')
        e.i(f's_add_u32 s41, s41, s40')
        if cfg.rot != 5: e.i(f's_add_u32 s42, s42, s{sROT}')
        for kb in range(2):
            if cfg.rot == 5:
                e.i(f's_add_u32 s{sOFF}, s42, {3*kb}')
                e.i(f's_add_u32 s{sSTO}, s{sOFF}, s{sROT}')
                e.i(f's_sub_u32 s{sSTO}, s{sSTO}, 1')
                e.i(f's_sub_u32 s66, s{sSTO}, 5')
                e.i(f's_min_u32 s{sSTO}, s{sSTO}, s66')
                e.i(f's_add_u32 s{sSTO}, s{sSTO}, 1')
                e.i(f's_cmp_eq_u32 s{sOFF}, 0')
                e.i(f's_cselect_b32 s{sOFF}, 0, s{sSTO}')
            else:
                e.i(f's_add_u32 s{sOFF}, s42, {3*kb}')
                e.i(f's_sub_u32 s{sSTO}, s{sOFF}, 6')
                e.i(f's_min_u32 s{sOFF}, s{sOFF}, s{sSTO}')
            e.i(f's_lshl_b32 s{sOFF}, s{sOFF}, 6')
            e.i(f's_add_u32 s{sOFF}, s{sOFF}, s41')
            e.i(f's_mul_i32 s{sR2+3*kb+i}, s{sOFF}, 1152')
    for dp in range(9):
        e.i(f's_add_u32 s42, s43, {dp}')
        e.i(f's_sub_u32 s41, s42, 9')
        e.i(f's_min_u32 s42, s42, s41')
        e.i(f's_lshl_b32 s{sD2+dp}, s42, 7')
    e.i(f's_lshl_b32 s42, s{sT}, 2')
    e.i(f's_add_u32 s42, s42, s{sMI}')
    e.i(f's_mul_i32 s42, s42, 18')
    e.i(f's_add_u32 s42, s42, s{sP}')
    e.i(f's_mul_i32 s42, s42, {NCH}')
    e.i(f's_add_u32 s42, s42, s{sC}')
    e.i(f's_lshl_b32 s{sSTO}, s42, 11')
    e.i(f's_add_u32 s{sSTO}, s{sSTO}, {WS_PART}')
    e.i(f's_mul_i32 s42, s{sT}, {9*12}')
    e.i(f's_add_u32 s42, s42, s{sC}')
    e.i(f's_lshl_b32 s42, s42, 8')
    e.i(f's_add_u32 s42, s42, {WS_FLAG}')
    e.i(f's_cmp_eq_u32 s{sWV}, 0')
    e.i(f's_cselect_b32 s{sFLB}, s42, 0x70000000')
    e.i(f'v_lshrrev_b32 v15, 5, v{L}')
    e.i(f's_lshl_b32 s42, s{sP}, 7')
    e.i(f's_add_u32 s42, s42, {LDS_BIAS}')
    e.i(f'v_lshl_add_u32 v{vBIAS}, v15, 4, s42')
    e.i(f'v_and_b32 v13, 15, v{L}')
    e.i(f'v_lshrrev_b32 v14, 2, v13')
    e.i(f'v_lshrrev_b32 v0, 3, v13')
    e.i(f'v_xor_b32 v0, s{sP}, v0')
    e.i(f'v_lshlrev_b32 v0, 6, v0')
    e.i(f'v_lshrrev_b32 v{vA0}, 4, v{L}')
    e.i(f'v_and_b32 v{vA0}, 1, v{vA0}')
    e.i(f'v_lshl_add_u32 v0, v{vA0}, 5, v0')
    e.i(f'v_and_b32 v{vA0}, 3, v13')
    e.i(f'v_lshl_add_u32 v0, v{vA0}, 3, v0')
    e.i(f'v_lshl_add_u32 v{vA0}, v15, 3, v14')
    e.i(f'v_lshl_add_u32 v{vPAT1}, v{vA0}, 7, v0')
    e.i(f'v_lshl_add_u32 v{vA0}, v15, 2, v14')
    e.i(f'v_lshl_add_u32 v{vPAT2}, v{vA0}, 7, v0')
    e.i(f'v_and_b32 v13, 31, v{L}')
    e.i(f'v_lshrrev_b32 v14, 1, v13')
    e.i(f'v_and_b32 v14, 7, v14')
    e.i(f'v_xor_b32 v14, v14, v15')
    e.i(f'v_lshlrev_b32 v14, 4, v14')
    e.i(f's_lshl_b32 s42, s{sMI}, 12')
    e.i(f'v_lshl_add_u32 v13, v13, 7, v14')
    e.i(f'v_add_u32 v{vST}, s42, v13')
    def xaddr(region):
        for tl in range(4):
            e.valu(f'v_xor_b32 v{tmp[tl]}, {32*tl}, v{vST}', dst=[tmp[tl]])
            if region:
                e.valu(f'v_add_u32 v{tmp[tl]}, {region}, v{tmp[tl]}', dst=[tmp[tl]])
    def xread(t):
        g = t // 12; tt = t % 12
        e.lds(f'ds_read_b128 v[{XF+4*t}:{XF+4*t+3}], v{tmp[tt & 3]} offset:{(tt >> 2)*16384}', ('x', t))
    if cfg.prostamps: stamp('setup done')
    if cfg.prostamps:
        e.wait_vm(('xd', 0, 0)); stamp('first landed')
    e.wait_vm(('xd', 2, 1))
    if cfg.prostamps: stamp('XA landed')
    e.i('s_barrier')
    stamp('Ba')
    xaddr(0)
    for t in range(12): xread(t)
    if cfg.latexb:
        for b in range(3, 6): xdma(b, 4*SLOT + (b-3)*16384)
    if cfg.earlyxc:
        e.i('s_waitcnt lgkmcnt(0)')
        e.i('s_barrier')
        for b in range(6, 9): xdma(b, (b-6)*16384)
    e.wait_vm(('dma', 0, 0))
    e.i(f's_cmp_lt_u32 s{sWV}, 3')
    e.i(f's_cbranch_scc0 Lffn_nobias_st')
    e.i('v_lshlrev_b32 v36, 16, v34')
    e.i('v_and_b32 v37, 0xffff0000, v34')
    e.i(f'v_lshlrev_b32 v35, 3, v{L}')
    e.i(f's_lshl_b32 s42, s{sWV}, 9')
    e.i(f's_add_u32 s42, s42, {LDS_BIAS}')
    e.i(f'v_add_u32 v35, s42, v35')
    e.i('ds_write_b64 v35, v[36:37]')
    e.label('Lffn_nobias_st')
    e.i('s_waitcnt lgkmcnt(0)')
    e.lq = []; e.lds_done.update(('x', t) for t in range(12))
    e.wait_vm(('dma', 1, 2))
    e.i('s_barrier')
    stamp('Bb')
    if not cfg.earlyxc:
        for b in range(6, 9): xdma(b, (b-6)*16384)

    beats = [(s, b) for s in range(36) for b in range(12)]
    PD = cfg.pd
    def frag_reg(gb):
        s_ = beats[gb][0]
        if cfg.nb == 4: return AF + 4*(gb % 4)
        k = gb % cfg.nb
        if k < 4: return AF + 4*k
        return (104 + 4*(k - 4)) if s_ < 18 else (204 + 4*(k - 4))
    NOPREF = {2, 3}
    def addr_reg(s, partner=False):
        if s < 18: return (vA0, vA1)[s & 1]
        return ((vA2, vA3) if partner else (vA0, vA1))[s & 1]
    addr_set = set()
    def ensure_addr(s):
        if s in addr_set or s >= 36: return
        addr_set.add(s)
        base = slot[s]*SLOT
        e.valu(f'v_add_u32 v{addr_reg(s)}, {base}, v{vPAT1}', dst=[addr_reg(s)])
        if s >= 18:
            e.valu(f'v_add_u32 v{addr_reg(s, True)}, {base}, v{vPAT2}', dst=[addr_reg(s, True)])
    def p2_beat(b):
        return b >= 6, (b % 6) // 2, b % 2
    issued = set()
    def issue_reads(gb):
        if gb >= len(beats) or gb in issued: return
        issued.add(gb)
        s, b = beats[gb]
        fr = frag_reg(gb)
        if s < 18:
            a = addr_reg(s); o1 = b*2048; o2 = o1 + 512
        else:
            partner, u, tp = p2_beat(b)
            a = addr_reg(s, partner); o1 = u*8192 + tp*2048; o2 = o1 + 1024
        e.lds(f'ds_read_b64_tr_b16 v[{fr}:{fr+1}], v{a} offset:{o1}', ('af', gb, 0))
        e.lds(f'ds_read_b64_tr_b16 v[{fr+2}:{fr+3}], v{a} offset:{o2}', ('af', gb, 1))
    def bias_read(tile, j):
        acc = ACC[tile & 1]
        e.lds(f'ds_read_b128 v[{acc+4*j}:{acc+4*j+3}], v{vBIAS} offset:{256*tile + 32*j}', ('bias', tile, j))
    def gelu_ops(tile):
        acc = ACC[tile & 1]
        ops = []
        for pr in range(8):
            a = acc + 2*pr; b = a + 1
            t0, t1 = (tmp[0], tmp[1]) if pr % 2 == 0 else (tmp[2], tmp[3])
            h = HOWN + 8*tile + pr
            seq = [
                (f'v_mul_f32_e32 v{t0}, v{a}, v{a}', [t0], [a], False),
                (f'v_mul_f32_e32 v{t1}, v{b}, v{b}', [t1], [b], False),
                (f'v_fma_f32 v{t0}, v{t0}, s{sGC1}, v{vC0}', [t0], [t0], False),
                (f'v_fma_f32 v{t1}, v{t1}, s{sGC1}, v{vC0}', [t1], [t1], False),
                (f'v_mul_f32_e32 v{t0}, v{t0}, v{a}', [t0], [t0, a], False),
                (f'v_mul_f32_e32 v{t1}, v{t1}, v{b}', [t1], [t1, b], False),
                (f'v_exp_f32_e32 v{t0}, v{t0}', [t0], [t0], True),
                (f'v_exp_f32_e32 v{t1}, v{t1}', [t1], [t1], True),
                (f'v_add_f32_e32 v{t0}, 1.0, v{t0}', [t0], [t0], False),
                (f'v_add_f32_e32 v{t1}, 1.0, v{t1}', [t1], [t1], False),
                (f'v_rcp_f32_e32 v{t0}, v{t0}', [t0], [t0], True),
                (f'v_rcp_f32_e32 v{t1}, v{t1}', [t1], [t1], True),
                (f'v_mul_f32_e32 v{t0}, v{t0}, v{a}', [t0], [t0, a], False),
                (f'v_mul_f32_e32 v{t1}, v{t1}, v{b}', [t1], [t1, b], False),
                (f'v_cvt_pk_bf16_f32 v{h}, v{t0}, v{t1}', [h], [t0, t1], False),
            ]
            for (txt, d, s_, tr) in (seq if not cfg.nogelu else seq[-1:]):
                ops.append(lambda txt=txt, d=d, s_=s_, tr=tr: e.valu(txt, dst=d, src=s_, trans=tr))
            if pr % 2 == 1 and tile + 2 < 6:
                ops.append(lambda j=pr // 2: bias_read(tile + 2, j))
        return ops
    def store_ops(dp):
        acc = p2acc(dp)
        ops = []
        for half in range(2):
            for k in range(4):
                r = acc + 8*half + 2*k
                d = PK + 4*half + k
                ops.append(lambda r=r, d=d: e.valu(f'v_cvt_pk_bf16_f32 v{d}, v{r}, v{r+1}', dst=[d], src=[r, r+1]))
            def st(half=half):
                if half == 0:
                    e.i(f's_mul_i32 s{sOFF}, s{sD2+dp}, {2*NCH*2048//128}')
                    e.i(f's_add_u32 s{sOFF}, s{sOFF}, s{sSTO}')
                else:
                    e.i(f's_mul_i32 s{sOFF}, s{sD2+dp}, {2*NCH*2048//128}')
                    e.i(f's_add_u32 s{sOFF}, s{sOFF}, s{sSTO}')
                if not cfg.nostore:
                    e.vm(f'buffer_store_dwordx4 v[{PK+4*half}:{PK+4*half+3}], v{vST}, s[{sWS}:{sWS+3}], s{sOFF} offen offset:{1024*half} {cfg.stflag}', ('st', dp, half))
            ops.append(st)
        return ops
    K = cfg.kffn if cfg.fuse else 0
    ufill, utail = ffn_unit.build(e, K, sWV, sC, sT, sWS, sX, sNONCE, vLANE) if K else ({}, [])
    flags_sent = set()
    st_waited = set()
    def send_flag(dp):
        if dp in flags_sent: return
        assert dp in st_waited, dp
        flags_sent.add(dp)
        if cfg.flagbr:
            e.i(f's_cmp_eq_u32 s{sWV}, 0')
            e.i(f's_cbranch_scc0 Lffn_nf{dp}')
            e.i(f's_mul_i32 s{sOFF}, s{sD2+dp}, 24')
            e.i(f's_add_u32 s{sOFF}, s{sOFF}, s{sFLB}')
            e.i(f'buffer_store_dword v{vNON}, v{vZERO}, s[{sWS}:{sWS+3}], s{sOFF} offen sc1')
            e.label(f'Lffn_nf{dp}')
            return
        e.i(f's_mul_i32 s{sOFF}, s{sD2+dp}, 24')
        e.i(f's_add_u32 s{sOFF}, s{sOFF}, s{sFLB}')
        e.vm(f'buffer_store_dword v{vNON}, v{vZERO}, s[{sWS}:{sWS+3}], s{sOFF} offen sc1', ('flag', dp))
    for j in range(4): bias_read(0, j)
    for j in range(4): bias_read(1, j)
    ensure_addr(0)
    e.nop(1)
    for gb in range(PD): issue_reads(gb)
    fill = []
    dma_list = []
    dp_done = {}
    for idx, (dp, kb) in enumerate(P2):
        if kb == 1: dp_done[18 + idx + 1] = dp
    flag_at = {}
    for st_s, dp_ in dp_done.items():
        fs = st_s + cfg.flaglag
        if fs > 35: fs = 35 if st_s + 2 <= 35 else None
        if fs is not None: flag_at.setdefault(fs, []).append(dp_)
    for gb, (s, b) in enumerate(beats):
        if b == 0:
            e.comment(f'---- stage {s} (slot {slot[s]}) ----')
            if s in cfg.stamps: stamp('stage')
            dma_list = [(it, i) for it in issue[s] for i in range(3)]
            if s in NOPREF:
                ensure_addr(s)
                for k in range(PD): issue_reads(gb + k)
            ensure_addr(s + 1)
            if s == 1:
                xaddr(4*SLOT)
                for t in range(12, 24): xread(t)
            if s == 2:
                xaddr(0)
                for t in range(24, 36): xread(t)
            if s < 18 and s % 3 == 0 and s >= 3:
                fill = gelu_ops(s // 3 - 1); nfill = len(fill); fill_span = (2, 34); fill_base = gb
            if s == 18:
                fill = gelu_ops(5); nfill = len(fill); fill_span = (2, 33) if cfg.p2alt else (2, 21); fill_base = gb
            if s in dp_done:
                assert not fill
                fill = store_ops(dp_done[s]); nfill = len(fill); fill_span = (3, 10); fill_base = gb
                if cfg.stspread and s >= 24 and s + 1 <= 35:
                    fill_span = (2, 21)
            if s == (15 if cfg.exspread else 16):
                e.valu(f'v_lshlrev_b32 v{vST}, 4, v{vLANE}', dst=[vST])
                if cfg.exspread:
                    e.i(f's_mul_i32 s41, s{sWV}, 3072')
                    e.i(f's_xor_b32 s43, s{sWV}, 4')
                    e.i(f's_mul_i32 s43, s43, 3072')
                    e.i(f's_add_u32 s41, s41, {ex[0]*SLOT}')
                    e.i(f's_add_u32 s43, s43, {ex[0]*SLOT}')
                else:
                    e.i(f's_mul_i32 s42, s{sMI}, 6144')
                    e.i(f's_mul_i32 s43, s{sP}, {(ex[1]-ex[0])*SLOT}')
                    e.i(f's_add_u32 s41, s43, {ex[0]*SLOT}')
                    e.i(f's_sub_u32 s43, {ex[1]*SLOT}, s43')
                    e.i(f's_add_u32 s41, s41, s42')
                    e.i(f's_add_u32 s43, s43, s42')
                e.valu(f'v_add_u32 v{vBIAS}, s41, v{vST}', dst=[vBIAS])
                e.valu(f'v_add_u32 v{vW1}, s43, v{vST}', dst=[vW1])
        if cfg.prio and cfg.priomode == 4 and b % 3 == 0:
            e.i(f's_setprio {3 - b // 3}')
        if cfg.prio and cfg.priomode == 2 and b % 6 == 0:
            e.i(f's_setprio {1 - b // 6}')
        if cfg.prio and cfg.priomode == 3 and b % 4 == 0:
            e.i(f's_setprio {2 - b // 4}')
        if cfg.looptest and b == 0 and s in (6, 9):
            if s == 6:
                e.i('s_mov_b32 s101, 0'); e.label('Lrep6')
            else:
                e.i('s_add_u32 s101, s101, 1'); e.i('s_cmp_lt_u32 s101, 2'); e.i('s_cbranch_scc1 Lrep6')
        if cfg.wmerge and b % 2 == 0 and gb + 1 in issued and beats[gb + 1][0] == s:
            e.wait_lds(('af', gb + 1, 1))
        e.wait_lds(('af', gb, 1))
        fr = frag_reg(gb)
        if s < 18:
            tile = s // 3; t = (s % 3)*12 + b
            if tile == 0: e.wait_lds(('x', t))
            acc = ACC[tile & 1]
            if t == 0:
                for j in range(4): e.wait_lds(('bias', tile, j))
            xb = XF + 4*t
            e.mfma(f'v_mfma_f32_32x32x16_bf16 v[{acc}:{acc+15}], v[{fr}:{fr+3}], v[{xb}:{xb+3}], v[{acc}:{acc+15}]',
                   list(range(acc, acc+16)), list(range(fr, fr+4)) + list(range(xb, xb+4)))
        else:
            dp, kb = P2[s-18]
            partner, u, tp = p2_beat(b)
            fp = 3*kb + u
            hb = (HPART if partner else HOWN) + 8*fp + 4*tp
            if partner and (s == 18 or s == SB):
                e.wait_lds(('exr', fp*2 + tp))
            acc = p2acc(dp)
            c = '0' if (kb == 0 and b == 0) else f'v[{acc}:{acc+15}]'
            e.mfma(f'v_mfma_f32_32x32x16_bf16 v[{acc}:{acc+15}], v[{fr}:{fr+3}], v[{hb}:{hb+3}], {c}',
                   list(range(acc, acc+16)), list(range(fr, fr+4)) + list(range(hb, hb+4)))
        nb = gb + PD
        if nb < len(beats) and not (beats[nb][0] in NOPREF and beats[nb][0] != s):
            issue_reads(nb)
        if s == 1 and b == 3:
            e.wait_lds(('x', 23))
            e.i('s_barrier')
            dma_list += [(3, i) for i in range(3)] + [(4, i) for i in range(3)]
        if b == 0: ndma0 = len(dma_list); ndma_done = 0
        if s == 1 and b == 3: ndma0 = len(dma_list) ; ndma_done = 0; dma_b0 = 3
        elif b == 0: dma_b0 = 0
        if dma_list:
            if cfg.dmaspread:
                span = 10 - dma_b0
                tgt = ndma0 if b >= 10 else -(-ndma0 * (b - dma_b0) // span) if b > dma_b0 else 0
                if ndma0 <= 3:
                    pts = cfg.dmabeats
                    tgt = sum(1 for p_ in pts[:ndma0] if b >= p_)
                    if s < 3: tgt = ndma0 if b >= dma_b0 + 2 else min(ndma0, b - dma_b0 + 1)
                while ndma_done < tgt and dma_list:
                    dma_one(*dma_list.pop(0)); ndma_done += 1
            else:
                k = -(-len(dma_list) // max(1, 7 - b)) if b < 7 else len(dma_list)
                for _ in range(min(k, len(dma_list))):
                    dma_one(*dma_list.pop(0))
        if cfg.prefetch and s in (4, 5) and b == 8:
            k = s - 4
            e.i(f's_and_b32 s41, s{sT}, 7')
            e.i(f's_lshl_b32 s41, s41, 3')
            e.i(f's_add_u32 s41, s41, s{sWV}')
            e.i(f's_lshl_b32 s41, s41, 1')
            e.i(f's_add_u32 s41, s41, {k}')
            e.i(f's_lshl_b32 s41, s41, 12')
            e.i(f's_mul_i32 s42, s{sC}, {FC*1152}')
            e.i(f's_add_u32 s41, s41, s42')
            e.i(f's_min_u32 s41, s41, {F*D*2 - 4096}')
            e.valu(f'v_lshlrev_b32 v{vA3}, 6, v{vLANE}', dst=[vA3])
            e.vm(f'buffer_load_dword v{vA2}, v{vA3}, s[{sW2}:{sW2+3}], s41 offen', ('pf', k))
        if cfg.tlbwarm and s == cfg.tlbwarm and b == 8:
            e.valu(f'v_min_u32 v{vA3}, 9, v{vLANE}', dst=[vA3])
            e.valu(f'v_mul_u32_u24 v{vA3}, {2*NCH*2048}, v{vA3}', dst=[vA3])
            e.vm(f'buffer_load_dword v{vA2}, v{vA3}, s[{sWS}:{sWS+3}], s{sSTO} offen', ('tw', 0))
            e.valu(f'v_mov_b32 v{vA3}, 0', dst=[vA3])
            e.vm(f'buffer_load_dword v{vA2}, v{vA3}, s[{sWS}:{sWS+3}], s{sFLB} offen', ('tw', 1))
            e.valu(f'v_min_u32 v{vA3}, 6, v{vLANE}', dst=[vA3])
            e.valu(f'v_mul_u32_u24 v{vA3}, {64*1152}, v{vA3}', dst=[vA3])
            e.i(f's_mul_i32 s41, s{sC}, {FC*1152}')
            e.vm(f'buffer_load_dword v{vA2}, v{vA3}, s[{sW2}:{sW2+3}], s41 offen', ('tw', 2))
        if cfg.fuse and s == 17 and b == 0:
            e.i('s_mov_b32 s39, 0')
        if cfg.fuse and s == 17 and b == 1:
            e.valu(f'v_mov_b32 v{vZERO}, 0', dst=[vZERO])
            e.vm(f'buffer_load_dword v{vNON}, v{vZERO}, s[{sDB}:{sDB+3}], 0 offen offset:{DBG_NONCE} sc1', ('nonce',))
        if cfg.fuse and not cfg.nossm and s == 20 and b == 8:
            e.wait_vm(('nonce',))
            e.label('Lffn_npoll')
            e.i(f'v_readfirstlane_b32 s{sNONCE}, v{vNON}')
            e.i(f's_cmp_lg_u32 s{sNONCE}, 0')
            e.i('s_cbranch_scc1 Lffn_nok')
            e.i(f'buffer_load_dword v{vNON}, v{vZERO}, s[{sDB}:{sDB+3}], 0 offen offset:{DBG_NONCE} sc1')
            e.i('s_waitcnt vmcnt(0)')
            e.i('s_add_u32 s39, s39, 1'); e.i('s_cmp_lt_u32 s39, 0x40000'); e.i('s_cbranch_scc1 Lffn_npoll')
            e.label('Lffn_nok')
            e.valu(f'v_lshlrev_b32 v{vZERO}, 2, v{vLANE}', dst=[vZERO])
        if cfg.fuse and b == 1:
            for dp_ in flag_at.get(s, []): send_flag(dp_)
        def exoff(k):
            return ((ex[1]-ex[0])*SLOT if k >= 3 else 0) + 1024*(k % 3) if cfg.exspread else 1024*k
        def exw(k, r, tag):
            e.lds(f'ds_write_b128 v{vBIAS}, v[{r}:{r+3}] offset:{exoff(k)}', ('exw', tag))
        if not cfg.exspread:
            if s == 16 and b % 2 == 0: exw(b // 2, HOWN + 4*(b // 2), b // 2)
            if s == 19 and b in (0, 2, 4, 6): exw(b // 2, HOWN + 24 + 4*(b // 2), 6 + b // 2)
        else:
            if s == 15 and b in (2, 6, 10): k = (b - 2) // 4; exw(k, HOWN + 4*k, k)
            if s == 16 and b in (1, 5, 9): k = 3 + (b - 1) // 4; exw(k, HOWN + 4*k, k)
            if s == 18 and b in (1, 5, 9): k = (b - 1) // 4; exw(k, HOWN + 24 + 4*k, 6 + k)
            if s == 19 and b == 1: exw(3, HOWN + 24 + 12, 9)
        if s == 17 and b < 6:
            r = HPART + 4*b
            e.lds(f'ds_read_b128 v[{r}:{r+3}], v{vW1} offset:{exoff(b)}', ('exr', b))
        if s == SB and b < 6:
            r = HPART + 24 + 4*b
            e.lds(f'ds_read_b128 v[{r}:{r+3}], v{vW1} offset:{exoff(b)}', ('exr', 6 + b))
        if s in ufill and ufill[s]:
            lst = ufill[s]
            if b == 0: ucount = len(lst)
            tgt = ucount if b >= 10 else (ucount * (b + 1)) // 11
            while ucount - len(lst) < tgt:
                lst.pop(0)()
        if fill:
            rel = gb - fill_base
            lo, hi = fill_span
            if cfg.gskip is not None and 3 <= s < 18:
                g0, g1 = cfg.gskip
                per = g1 - g0 + 1
                act = [r for r in range(36) if g0 <= r % 12 <= g1 and r >= 2]
                cnt = len([r for r in act if r <= rel])
                tgt = (nfill * cnt) // len(act) if rel < act[-1] else nfill
                donec = nfill - len(fill)
                while donec < tgt:
                    fill.pop(0)(); donec += 1
            elif rel >= lo:
                tgt = nfill if rel >= hi else (nfill * (rel - lo + 1)) // (hi - lo + 1)
                donec = nfill - len(fill)
                while donec < tgt:
                    fill.pop(0)(); donec += 1
        if s == SB - 1 and b == 11:
            assert not fill
            for k in (4, 5):
                r = HOWN + 24 + 4*k
                e.lds(f'ds_write_b128 v{vBIAS}, v[{r}:{r+3}] offset:{exoff(k)}', ('exw', 6 + k))
        if s == 16 and b == 11:
            e.i(f's_lshl_b32 s42, s{sP}, 12')
            e.i(f's_xor_b32 s43, s42, 4096')
            e.valu(f'v_add_u32 v{vPAT1}, s42, v{vPAT2}', dst=[vPAT1])
            e.valu(f'v_add_u32 v{vPAT2}, s43, v{vPAT2}', dst=[vPAT2])
        if b == 11:
            assert not dma_list
            if s in cfg.prestamps: stamp('prewait')
            if s == 0:
                e.wait_vm(('xd', 5, 1))
            elif s == 1:
                e.wait_vm(('dma', 2, 2)); e.wait_vm(('xd', 8, 1))
            elif s + 2 < 36:
                e.wait_vm(('dma', s + 2, 2))
            if s in (16, SB - 1):
                e.wait_lds(('exw', 5 if s == 16 else 11))
            if s == 17: e.wait_lds(('exr', 5))
            if s == SB: e.wait_lds(('exr', 11))
            if s == 2: e.wait_lds(('x', 35))
            if cfg.fuse:
                for dp_ in flag_at.get(s + 1, []):
                    if not cfg.nostore: e.wait_vm(('st', dp_, 1))
                    st_waited.add(dp_)
            if s in cfg.prestamps: stamp('postwait')
            if s < 35 and not (cfg.nobar and s >= 3):
                e.i('s_barrier')
    stamp('mainloop end')
    for op in store_ops(8): op()
    if cfg.fuse and K == 0:
        e.wait_vm_all()
        e.i('s_barrier')
        for dp in range(9):
            st_waited.add(dp); send_flag(dp)
        e.wait_vm_all()
    elif cfg.fuse:
        e.i(f's_cmp_lt_u32 s{ffn_unit.U.sU}, {8*K}')
        e.i('s_cbranch_scc0 Lffn_nounit')
        for op in utail: op()
        e.label('Lffn_nounit')
        stamp('pre done')
        e.i('s_waitcnt vmcnt(0) lgkmcnt(0)')
        e.vq = []; e.lq = []
        e.i('s_barrier')
        for dp in range(9):
            st_waited.add(dp); send_flag(dp)
        ffn_unit.tail(e, K, sT, sWS, sNONCE, cfg, stamp, utail)
    else:
        e.wait_vm_all()
    stamp('end')
    if cfg.prof:
        e.i('s_memrealtime s[100:101]')
        e.i('s_waitcnt lgkmcnt(0)')
        if cfg.wavestamps:
            e.i(f's_lshl_b32 s42, s2, 7'); e.i(f's_add_u32 s42, s42, {WS_PROF}'); e.i(f's_lshl_b32 s41, s{sWV}, 2'); e.i('s_add_u32 s42, s42, s41')
            e.i('v_mov_b32 v14, 0'); e.i(f'v_mov_b32 v13, s{sPROF}')
            e.i(f'buffer_store_dword v13, v14, s[{sWS}:{sWS+3}], s42 offen offset:{4*14}')
            e.i(f'v_mov_b32 v13, s{sPROF+2*cfg.wavestamps}')
            e.i(f'buffer_store_dword v13, v14, s[{sWS}:{sWS+3}], s42 offen offset:{4*22}')
            e.i('s_waitcnt vmcnt(0)')
        e.i(f's_cmp_eq_u32 s{sWV}, 0')
        e.i('s_cbranch_scc0 Lffn_noprof')
        e.i(f's_lshl_b32 s42, s2, 7')
        e.i(f's_add_u32 s42, s42, {WS_PROF}')
        e.i(f'v_mov_b32 v14, 0')
        for k in range(nprof[0]):
            e.i(f'v_mov_b32 v13, s{sPROF+2*k}')
            e.i(f'buffer_store_dword v13, v14, s[{sWS}:{sWS+3}], s42 offen offset:{4*k}')
        e.i(f'v_mov_b32 v13, s98')
        e.i(f'buffer_store_dword v13, v14, s[{sWS}:{sWS+3}], s42 offen offset:{4*30}')
        e.i(f'v_mov_b32 v13, s100')
        e.i(f'buffer_store_dword v13, v14, s[{sWS}:{sWS+3}], s42 offen offset:{4*31}')
        e.i('s_waitcnt vmcnt(0)')
        e.label('Lffn_noprof')
    e.i('s_endpgm')
```

```python
from common import *

class U:
    sU = 40; sDT = 44; sPB = 45; sOB = 46; sMIu = 47; sLD = 48; sYO = 49
    sOUT = 8; sB2 = 24
    QG = 202; BR = 220; QR = 32; YS = 40; YR = 48; YU = 32; A = 240
    G = 228; OMG = 229; QO = 230; L16 = 231; YA = 232; TR = 233; LW = 234; T0 = 235; T1 = 236; T2 = 237; FL = 238
BIG = 0x70000000

def build(e, K, sWV, sC, sT, sWS, sX, sNONCE, vLANE):
    u = U
    def V(txt, dst=(), src=()):
        return lambda: e.valu(txt, dst=list(dst), src=list(src))
    def Sx(*txts):
        def f():
            for t in txts: e.i(t)
        return f
    def setup():
        ops = []
        ops += [Sx(f's_mov_b32 s{u.sOUT}, s4'), Sx(f's_and_b32 s{u.sOUT+1}, s5, 0xffff'), Sx(f's_mov_b32 s{u.sOUT+2}, {S*D*2}'), Sx(f's_mov_b32 s{u.sOUT+3}, 0x00020000')]
        ops += [Sx(f's_mov_b32 s{u.sB2}, s6'), Sx(f's_and_b32 s{u.sB2+1}, s7, 0xffff'), Sx(f's_mov_b32 s{u.sB2+2}, {D*2}'), Sx(f's_mov_b32 s{u.sB2+3}, 0x00020000')]
        ops += [Sx(f's_mul_i32 s{u.sU}, s{sWV}, 12'), Sx(f's_add_u32 s{u.sU}, s{u.sU}, s{sC}')]
        ops += [Sx(f's_lshr_b32 s41, s{u.sU}, 3'), Sx(f's_add_u32 s41, s41, {9-K}'), Sx(f's_and_b32 s42, s{sT}, 7'), Sx(f's_add_u32 s41, s41, s42'),
                Sx(f's_sub_u32 s42, s41, 9'), Sx(f's_min_u32 s41, s41, s42'), Sx(f's_sub_u32 s42, s41, 9'), Sx(f's_min_u32 s41, s41, s42'),
                Sx(f's_lshl_b32 s41, s41, 1'), Sx(f's_and_b32 s42, s{u.sU}, 1'), Sx(f's_add_u32 s{u.sDT}, s41, s42'),
                Sx(f's_lshr_b32 s{u.sMIu}, s{u.sU}, 1'), Sx(f's_and_b32 s{u.sMIu}, s{u.sMIu}, 3')]
        ops += [Sx(f's_lshl_b32 s41, s{sT}, 2'), Sx(f's_add_u32 s41, s41, s{u.sMIu}')]
        ops += [Sx(f's_mul_i32 s{u.sOB}, s41, {32*1152}'), Sx(f's_lshl_b32 s42, s{u.sDT}, 6'), Sx(f's_add_u32 s{u.sOB}, s{u.sOB}, s42')]
        ops += [Sx(f's_mul_i32 s{u.sPB}, s41, 18'), Sx(f's_add_u32 s{u.sPB}, s{u.sPB}, s{u.sDT}'), Sx(f's_mul_i32 s{u.sPB}, s{u.sPB}, {NCH*2048}'), Sx(f's_add_u32 s{u.sPB}, s{u.sPB}, {WS_PART}')]
        ops += [Sx(f's_lshl_b32 s{u.sYO}, s{u.sDT}, 17'), Sx(f's_lshl_b32 s43, s41, 6'), Sx(f's_add_u32 s{u.sYO}, s{u.sYO}, s43'), Sx(f's_add_u32 s{u.sYO}, s{u.sYO}, {WS_Y2}')]
        ops += [Sx(f's_lshl_b32 s43, s41, 7'), Sx(f's_add_u32 s43, s43, {WS_G}')]
        ops += [Sx(f's_cmp_lt_u32 s{u.sU}, {8*K}',
                   f's_cselect_b32 s{u.sOB}, s{u.sOB}, {BIG}', f's_cselect_b32 s{u.sYO}, s{u.sYO}, {BIG}', f's_cselect_b32 s43, s43, {BIG}',
                   f's_cselect_b32 s42, s42, {BIG}')]
        ops += [Sx(f's_lshl_b32 s{u.sLD}, s{sWV}, 11'), Sx(f's_add_u32 s{u.sLD}, s{u.sLD}, {LDS_BIAS}')]
        ops += [Sx(f's_mov_b32 s33, s43', f's_mov_b32 s34, s42')]
        return ops
    def loads():
        ops = []
        ops += [V(f'v_lshrrev_b32 v{u.T0}, 5, v{vLANE}', [u.T0]), V(f'v_and_b32 v{u.T1}, 31, v{vLANE}', [u.T1]),
                V(f'v_mul_u32_u24 v{u.QO}, 1152, v{u.T1}', [u.QO]), V(f'v_lshl_add_u32 v{u.QO}, v{u.T0}, 4, v{u.QO}', [u.QO]),
                V(f'v_lshlrev_b32 v{u.L16}, 4, v{vLANE}', [u.L16]),
                V(f'v_lshlrev_b32 v{u.T1}, 2, v{u.T1}', [u.T1]), V(f'v_lshlrev_b32 v{u.T2}, 3, v{u.T0}', [u.T2])]
        ops += [lambda: e.vm(f'buffer_load_dword v{u.G}, v{u.T1}, s[{sWS}:{sWS+3}], s33 offen sc1', ('u', 'g'))]
        for j in range(4):
            ops += [lambda j=j: e.vm(f'buffer_load_dwordx2 v[{u.BR+2*j}:{u.BR+2*j+1}], v{u.T2}, s[{u.sB2}:{u.sB2+3}], s34 offen offset:{16*j}', ('u', 'b', j))]
        for jj in range(2):
            ops += [lambda jj=jj: e.vm(f'buffer_load_dwordx4 v[{u.QR+4*jj}:{u.QR+4*jj+3}], v{u.QO}, s[{sX}:{sX+3}], s{u.sOB} offen offset:{32*jj}', ('u', 'q', jj))]
        return ops
    def cfload():
        ops = []
        ops += [Sx(f's_lshl_b32 s41, s{u.sDT}, 5'), Sx(f's_add_u32 s42, s41, 31'), Sx(f's_mul_i32 s41, s41, 7282'), Sx(f's_lshr_b32 s41, s41, 16'),
                Sx(f's_mul_i32 s42, s42, 7282'), Sx(f's_lshr_b32 s42, s42, 16'),
                V(f'v_add_u32 v{u.FL}, s41, v{vLANE}', [u.FL]), V(f'v_min_u32 v{u.FL}, s42, v{u.FL}', [u.FL]),
                Sx(f's_lshl_b32 s41, s{sT}, 2'), Sx(f's_add_u32 s41, s41, s{u.sMIu}'),
                lambda: (e.valu(f'v_mov_b32 v{u.T2}, s41', dst=[u.T2]), e.valu(f'v_cmp_gt_u32 vcc, 8, v{vLANE}'), e.i('s_nop 1'),
                         e.valu(f'v_cndmask_b32 v{u.FL}, v{u.T2}, v{u.FL}, vcc', dst=[u.FL])),
                V(f'v_lshlrev_b32 v{u.FL}, 8, v{u.FL}', [u.FL]),
                V(f'v_add_u32 v{u.FL}, {WS_FLAG3}, v{u.FL}', [u.FL]),
                lambda: e.vm(f'buffer_load_dword v{u.LW}, v{u.FL}, s[{sWS}:{sWS+3}], 0 offen sc1', ('u', 'cf'))]
        return ops
    def consts():
        ops = [V(f'v_and_b32 v{u.T1}, 31, v{vLANE}', [u.T1]), V(f'v_lshrrev_b32 v{u.T2}, 5, v{vLANE}', [u.T2]), V(f'v_lshlrev_b32 v{u.T2}, 2, v{u.T2}', [u.T2]),
               V(f'v_sub_u32 v{u.T1}, v{u.T1}, v{u.T2}', [u.T1]), V(f'v_mov_b32 v{u.YA}, 0x3f80', [u.YA]), V(f'v_mov_b32 v{u.TR}, 0x3f800000', [u.TR])]
        for m in range(2):
            for k in range(4):
                r = u.A + 4*m + k; j = 2*k
                t_lo = 16*m + 8*(j >> 2) + (j & 3)
                def grp(r=r, t_lo=t_lo):
                    e.valu(f'v_cmp_eq_u32 vcc, {t_lo}, v{u.T1}'); e.i('s_nop 1'); e.valu(f'v_cndmask_b32 v{r}, 0, v{u.YA}, vcc', dst=[r])
                    e.valu(f'v_cmp_eq_u32 vcc, {t_lo+1}, v{u.T1}'); e.i('s_nop 1'); e.valu(f'v_cndmask_b32 v{r}, v{r}, v{u.TR}, vcc', dst=[r])
                ops.append(grp)
        return ops
    def part_a():
        ops = []
        def chk():
            e.wait_vm(('u', 'cf'))
            e.label('Lffn_cpoll')
            e.i(f'v_cmp_eq_u32 vcc, s{sNONCE}, v{u.LW}')
            e.i('s_nop 1')
            e.i('s_cmp_eq_u64 vcc, -1')
            e.i('s_cbranch_scc1 Lffn_cready')
            e.i('s_sleep 8')
            e.i(f'buffer_load_dword v{u.LW}, v{u.FL}, s[{sWS}:{sWS+3}], 0 offen sc1')
            e.i('s_waitcnt vmcnt(0)')
            e.i('s_add_u32 s39, s39, 1'); e.i('s_cmp_lt_u32 s39, 0x40000'); e.i(f's_cbranch_scc1 Lffn_cpoll')
            e.label('Lffn_cready')
        ops.append(chk)
        ops += [V(f'v_lshrrev_b32 v{u.YA}, 2, v{vLANE}', [u.YA]), V(f'v_lshlrev_b32 v{u.YA}, 12, v{u.YA}', [u.YA]),
                V(f'v_and_b32 v{u.T1}, 3, v{vLANE}', [u.T1]), V(f'v_lshl_add_u32 v{u.YA}, v{u.T1}, 4, v{u.YA}', [u.YA]),
                lambda: e.vm(f'buffer_load_dwordx4 v[{u.YS}:{u.YS+3}], v{u.YA}, s[{sWS}:{sWS+3}], s{u.sYO} offen sc1', ('u', 'y', 0)),
                Sx(f's_add_u32 s41, s{u.sYO}, {16*4096}'),
                lambda: e.vm(f'buffer_load_dwordx4 v[{u.YS+4}:{u.YS+7}], v{u.YA}, s[{sWS}:{sWS+3}], s41 offen sc1', ('u', 'y', 1))]
        return ops
    def part_b():
        ops = []
        ops.append(lambda: e.wait_vm(('u', 'q', 1)))
        for jj in range(2):
            ops += [V(f'v_permlane32_swap_b32 v{u.QR+4*jj}, v{u.QR+4*jj+2}'), V(f'v_permlane32_swap_b32 v{u.QR+4*jj+1}, v{u.QR+4*jj+3}')]
        ops += [V(f'v_sub_f32 v{u.OMG}, 1.0, v{u.G}', [u.OMG])]
        for j in range(4):
            for k in range(2):
                q = u.QR + 2*j + k
                ops += [V(f'v_lshlrev_b32 v{u.QG+4*j+2*k}, 16, v{q}', [u.QG+4*j+2*k]), V(f'v_and_b32 v{u.QG+4*j+2*k+1}, 0xffff0000, v{q}', [u.QG+4*j+2*k+1])]
        for r in range(16):
            ops += [V(f'v_mul_f32 v{u.QG+r}, v{u.QG+r}, v{u.G}', [u.QG+r])]
        return ops
    def part_c():
        ops = [V(f'v_add_u32 v{u.LW}, s{u.sLD}, v{u.L16}', [u.LW]),
               V(f'v_and_b32 v{u.T1}, 15, v{vLANE}', [u.T1]), V(f'v_lshrrev_b32 v{u.TR}, 2, v{u.T1}', [u.TR]),
               V(f'v_lshrrev_b32 v{u.T2}, 5, v{vLANE}', [u.T2]), V(f'v_lshl_add_u32 v{u.TR}, v{u.T2}, 2, v{u.TR}', [u.TR]),
               V(f'v_lshlrev_b32 v{u.TR}, 6, v{u.TR}', [u.TR]), V(f'v_and_b32 v{u.T1}, 3, v{u.T1}', [u.T1]),
               V(f'v_lshl_add_u32 v{u.TR}, v{u.T1}, 3, v{u.TR}', [u.TR]), V(f'v_lshrrev_b32 v{u.T1}, 4, v{vLANE}', [u.T1]),
               V(f'v_and_b32 v{u.T1}, 1, v{u.T1}', [u.T1]), V(f'v_lshl_add_u32 v{u.TR}, v{u.T1}, 5, v{u.TR}', [u.TR]),
               V(f'v_add_u32 v{u.TR}, s{u.sLD}, v{u.TR}', [u.TR])]
        ops += [lambda: e.wait_vm(('u', 'y', 1)),
                lambda: e.lds(f'ds_write_b128 v{u.LW}, v[{u.YS}:{u.YS+3}]', ('u', 'yw', 0)),
                lambda: e.lds(f'ds_write_b128 v{u.LW}, v[{u.YS+4}:{u.YS+7}] offset:1024', ('u', 'yw', 1))]
        return ops
    def part_d():
        ops = [lambda: e.wait_lds(('u', 'yw', 1))]
        for j in range(4):
            ops += [lambda j=j: e.lds(f'ds_read_b64_tr_b16 v[{u.YR+2*j}:{u.YR+2*j+1}], v{u.TR} offset:{512*j}', ('u', 'yr', j))]
        return ops
    def part_e():
        ops = [lambda: e.wait_lds(('u', 'yr', 3))]
        for j in range(4):
            for k in range(2):
                y = u.YR + 2*j + k
                ops += [V(f'v_lshlrev_b32 v{u.YU+4*j+2*k}, 16, v{y}', [u.YU+4*j+2*k]), V(f'v_and_b32 v{u.YU+4*j+2*k+1}, 0xffff0000, v{y}', [u.YU+4*j+2*k+1])]
        for r in range(16):
            ops += [V(f'v_mul_f32 v{u.QG+r}, v{u.QG+r}, v{u.YU+r}', [u.QG+r])]
        return ops
    inloop = {27: setup(), 29: cfload(), 31: part_a(), 33: loads()}
    tail_ops = consts() + part_b() + part_c() + part_d() + part_e()
    return inloop, tail_ops

def tail(e, K, sT, sWS, sNONCE, cfg, stamp, tail_ops):
    u = U
    e.i(f's_cmp_lt_u32 s{u.sU}, {8*K}')
    e.i('s_cbranch_scc1 Lffn_unit')
    e.i('s_waitcnt vmcnt(0)')
    e.i('s_endpgm')
    e.label('Lffn_unit')
    e.i(f's_mul_i32 s53, s{sT}, 9')
    e.i(f's_lshr_b32 s41, s{u.sDT}, 1')
    e.i(f's_add_u32 s53, s53, s41')
    e.i(f's_mul_i32 s53, s53, {12*256}')
    e.i(f's_add_u32 s53, s53, {WS_FLAG}')
    e.i(f'v_min_u32 v12, {NCH-1}, v1')
    e.i(f'v_lshlrev_b32 v12, 8, v12')
    PRf = 64; ACf = 32; OPf = 48
    e.i(f'v_mfma_f32_32x32x16_bf16 v[{ACf}:{ACf+15}], v[{u.A}:{u.A+3}], v[{u.BR}:{u.BR+3}], 0')
    e.i(f'v_mfma_f32_32x32x16_bf16 v[{ACf}:{ACf+15}], v[{u.A+4}:{u.A+7}], v[{u.BR+4}:{u.BR+7}], v[{ACf}:{ACf+15}]')
    e.label('Lffn_fpoll')
    e.i(f'buffer_load_dword v14, v12, s[{sWS}:{sWS+3}], s53 offen sc1')
    e.i('s_waitcnt vmcnt(0)')
    e.i(f'v_cmp_eq_u32 vcc, s{sNONCE}, v14')
    e.i('s_nop 1')
    e.i('s_cmp_eq_u64 vcc, -1')
    e.i('s_cbranch_scc1 Lffn_fready')
    e.i(f's_sleep {cfg.fsleep}')
    e.i('s_add_u32 s39, s39, 1'); e.i('s_cmp_lt_u32 s39, 0x40000'); e.i(f's_cbranch_scc1 Lffn_fpoll')
    e.label('Lffn_fready')
    stamp('fready')
    for i in range(2*NCH):
        if i and i % 4 == 0:
            e.i(f's_add_u32 s{u.sPB}, s{u.sPB}, 4096')
        e.i(f'buffer_load_dwordx4 v[{PRf+4*i}:{PRf+4*i+3}], v{u.L16}, s[{sWS}:{sWS+3}], s{u.sPB} offen offset:{1024*(i%4)} sc1')
    for i in range(2*NCH):
        e.i(f's_waitcnt vmcnt({2*NCH - 1 - i})')
        a_ = u.A + 4*(i & 1)
        e.i(f'v_mfma_f32_32x32x16_bf16 v[{ACf}:{ACf+15}], v[{a_}:{a_+3}], v[{PRf+4*i}:{PRf+4*i+3}], v[{ACf}:{ACf+15}]')
    e.i('s_nop 7'); e.i('s_nop 3')
    for r in range(16):
        e.i(f'v_fma_f32 v{ACf+r}, v{ACf+r}, v{u.OMG}, v{u.QG+r}')
    for j in range(8):
        e.i(f'v_cvt_pk_bf16_f32 v{OPf+j}, v{ACf+2*j}, v{ACf+2*j+1}')
    e.i('s_nop 1')
    for jj in range(2):
        e.i(f'v_permlane32_swap_b32 v{OPf+4*jj}, v{OPf+4*jj+2}')
        e.i(f'v_permlane32_swap_b32 v{OPf+4*jj+1}, v{OPf+4*jj+3}')
    for jj in range(2):
        e.i(f'buffer_store_dwordx4 v[{OPf+4*jj}:{OPf+4*jj+3}], v{u.QO}, s[{u.sOUT}:{u.sOUT+3}], s{u.sOB} offen offset:{32*jj} {cfg.outflag}')
    e.i('s_waitcnt vmcnt(0)')
    e.vq = []
```

```python
import sys, os
from emit import Emit
from common import *
from ffn import gen_ffn
from ssm import gen_ssm


class Cfg:
    prof = False
    stflag = 'sc1'
    nostore = False
    prio = False
    looptest = False
    prefetch = False
    dmaflag = ''
    p2alt = False
    gskip = None
    krot = False
    flagbr = False
    gatefirst = False
    dma2 = False
    exspread = False
    pf1 = False
    latexb = False
    wavestamps = 0
    w2pf = False
    outflag = ''
    stspread = False
    pd = 3
    nb = 4
    wmerge = False
    priomode = 4
    startbar = 0
    hlast = False
    touch = False
    earlyxc = False
    hfirst = False
    kffn = 0
    rot = 6
    startprio = False
    ffnfirst = False
    nocpoll = False
    nounits = False
    presleep = 0
    tlbwarm = 0
    c2sleep = 32
    unitprof = None
    csleep = 2
    nored = False
    nossm = False
    fsleep = 2
    fuse = True
    flaglag = 2
    prostamps = False
    nodma = False
    nogelu = False
    nobar = False
    dmaspread = False
    dmabeats = (1, 5, 9)
    stamps = (1, 2, 3, 6, 9, 12, 15, 18, 20, 22, 25, 28, 31)
    prestamps = ()

def kernel_header(e, name):
    e.raw('.p2align 8')
    e.raw(f'.globl {name}')
    e.raw(f'.type {name},@function')
    e.raw(f'{name}:')

def kernel_desc(name, vgpr=256, sgpr=102):
    return f'''.amdhsa_kernel {name}
  .amdhsa_next_free_vgpr {vgpr}
  .amdhsa_next_free_sgpr {sgpr}
  .amdhsa_accum_offset {((vgpr+3)//4)*4}
  .amdhsa_group_segment_fixed_size 0
  .amdhsa_kernarg_size 120
  .amdhsa_user_sgpr_count 2
  .amdhsa_user_sgpr_kernarg_segment_ptr 1
  .amdhsa_system_sgpr_workgroup_id_x 1
.end_amdhsa_kernel
'''

def main():
    cfg = Cfg()
    cfg.prof = '--prof' in sys.argv
    for a in sys.argv:
        if a.startswith('--st='): cfg.stflag = a[5:].replace('+', ' ')
    cfg.nostore = '--nostore' in sys.argv
    cfg.prio = '--prio' in sys.argv
    cfg.looptest = '--looptest' in sys.argv
    cfg.prefetch = '--prefetch' in sys.argv
    cfg.nored = '--nored' in sys.argv
    cfg.p2alt = '--p2alt' in sys.argv
    cfg.krot = '--krot' in sys.argv
    cfg.flagbr = '--flagbr' in sys.argv
    cfg.gatefirst = '--gatefirst' in sys.argv
    cfg.dma2 = '--dma2' in sys.argv
    cfg.exspread = '--exspread' in sys.argv
    cfg.pf1 = 0
    for a in sys.argv:
        if a.startswith('--pf1='): cfg.pf1 = int(a[6:])
    cfg.latexb = '--latexb' in sys.argv
    cfg.w2pf = '--w2pf' in sys.argv
    cfg.stspread = '--stspread' in sys.argv
    cfg.wmerge = '--wmerge' in sys.argv
    cfg.hlast = '--hlast' in sys.argv
    cfg.touch = '--touch' in sys.argv
    cfg.earlyxc = '--earlyxc' in sys.argv
    cfg.hfirst = '--hfirst' in sys.argv
    cfg.startprio = '--startprio' in sys.argv
    cfg.ffnfirst = '--ffnfirst' in sys.argv
    for a in sys.argv:
        if a.startswith('--rot='): cfg.rot = int(a[6:])
        if a.startswith('--dmaflag='): cfg.dmaflag = a[10:].replace('+', ' ')
        if a.startswith('--gskip='): cfg.gskip = tuple(int(x) for x in a[8:].split(','))
        if a.startswith('--wavestamps='): cfg.wavestamps = int(a[13:])
        if a.startswith('--outflag='): cfg.outflag = a[10:].replace('+', ' ')
        if a.startswith('--pd='): cfg.pd = int(a[5:])
        if a.startswith('--nb='): cfg.nb = int(a[5:])
        if a.startswith('--priomode='): cfg.priomode = int(a[11:])
        if a.startswith('--startbar='): cfg.startbar = int(a[11:])
        if a.startswith('--kffn='): cfg.kffn = int(a[7:])
    cfg.nocpoll = '--nocpoll' in sys.argv
    cfg.nounits = '--nounits' in sys.argv
    cfg.nossm = '--nossm' in sys.argv
    for a in sys.argv:
        if a.startswith('--flaglag='): cfg.flaglag = int(a[10:])
        if a.startswith('--fsleep='): cfg.fsleep = int(a[9:])
        if a.startswith('--tlbwarm='): cfg.tlbwarm = int(a[10:])
        if a.startswith('--c2sleep='): cfg.c2sleep = int(a[10:])
        if a.startswith('--unitprof='): cfg.unitprof = int(a[11:])
        if a.startswith('--csleep='): cfg.csleep = int(a[9:])
    cfg.prostamps = '--prostamps' in sys.argv
    cfg.nodma = '--nodma' in sys.argv
    cfg.nogelu = '--nogelu' in sys.argv
    cfg.nobar = '--nobar' in sys.argv
    cfg.dmaspread = '--dmaspread' in sys.argv
    for a in sys.argv:
        if a.startswith('--dmabeats='): cfg.dmabeats = tuple(int(x) for x in a[11:].split(','))
    for a in sys.argv:
        if a.startswith('--stamps='): cfg.stamps = tuple(int(x) for x in a[9:].split(',') if x)
        if a.startswith('--prestamps='): cfg.prestamps = tuple(int(x) for x in a[12:].split(',') if x)
    e = Emit()
    k1 = NAME + '_kernel'
    here = os.path.dirname(os.path.abspath(__file__))
    hdr = open(here + '/header.txt').read()
    out = [hdr.rstrip('\n')]
    out.append(f'; @launch grid=(256,1,1) block=(512,1,1) lds={LDS_BYTES}')
    out.append('.amdgcn_target "amdgcn-amd-amdhsa--gfx950"')
    out.append('.text')
    kernel_header(e, k1)
    if not cfg.ffnfirst:
        e.i('s_cmp_ge_u32 s2, 256') ; e.i('s_cbranch_scc1 Lk1_exit')
        e.i('s_cmp_ge_u32 s2, 192') ; e.i('s_cbranch_scc1 Lk1_ssm')
        e.i('s_branch Lk1_ffn')
        e.label('Lk1_exit')
        e.i('s_endpgm')
        e.label('Lk1_ssm')
        es = Emit(); gen_ssm(es, cfg); e.raw(es.text())
        e.label('Lk1_ffn')
        ef = Emit(); gen_ffn(ef, cfg); e.raw(ef.text())
    else:
        e.i('s_cmp_ge_u32 s2, 192') ; e.i('s_cbranch_scc0 Lk1_ffn')
        e.i('s_cmp_ge_u32 s2, 256') ; e.i('s_cbranch_scc1 Lk1_exit')
        e.i('s_branch Lk1_ssm')
        e.label('Lk1_exit')
        e.i('s_endpgm')
        e.label('Lk1_ffn')
        ef = Emit(); gen_ffn(ef, cfg); e.raw(ef.text())
        e.label('Lk1_ssm')
        es = Emit(); gen_ssm(es, cfg); e.raw(es.text())
    out.append(e.text())
    out.append('.section .rodata,"a"\n.p2align 6')
    out.append(kernel_desc(k1))

    print('\n'.join(out))

if __name__ == '__main__':
    main()
```
